```python
import torch

def _softmax(x, axis=-1):
    return torch.softmax(x, dim=axis)
def _gelu(x):
    return torch.nn.functional.gelu(x, approximate="tanh")
def _silu(x):
    return torch.nn.functional.silu(x)
def _sigmoid(x):
    return torch.sigmoid(x)
def _layernorm(x, axis=-1, eps=1e-5):
    m = x.mean(dim=axis, keepdim=True)
    v = x.var(dim=axis, keepdim=True, unbiased=False)
    return (x - m) / torch.sqrt(v + eps)
def _scatter_add(tgt, idx, src, axis=0):
    return tgt.clone().index_add_(axis, idx, src)
def _segment_sum(src, seg, n):
    out = torch.zeros((n,) + src.shape[1:], dtype=src.dtype)
    return out.index_add_(0, seg, src)
def _pad(x, pw):
    flat = tuple(v for pair in reversed(pw) for v in pair)
    return torch.nn.functional.pad(x, flat)

kernel_name = 'gated_mix__grouped_kv_mqa__glu_gated_bilinear__prompt'

def setup_inputs():

    _w = (lambda a: (lambda t: t.to(torch.bfloat16) if t.is_floating_point() else t)(torch.as_tensor(a)))
    def _A_setup():
        B, S, D, H = 1, 2048, 448, 16
        Dh = D // H
        return {
            "x": _w((lambda *s: torch.randn(*s, dtype=torch.bfloat16) * 0.05)(B, S, D)),
            "wq": _w((lambda *s: torch.randn(*s, dtype=torch.bfloat16) * 0.8)(D, H * Dh)),
            "wk": _w((lambda *s: torch.randn(*s, dtype=torch.bfloat16) * 0.8)(D, Dh)),
            "wv": _w((lambda *s: torch.randn(*s, dtype=torch.bfloat16) * 0.05)(D, Dh)),
            "wo": _w((lambda *s: torch.randn(*s, dtype=torch.bfloat16) * 0.05)(H * Dh, D)),
        }
    _A_in = _A_setup()

    def _B_setup():
        B, S, D, F = 1, 2048, 448, 1792
        return {
            "x": _w((lambda *s: torch.randn(*s, dtype=torch.bfloat16) * 0.05)(B, S, D)),
            "w_gate": _w((lambda *s: torch.randn(*s, dtype=torch.bfloat16) * 0.8)(D, F) * (D ** -0.5)),
            "w_up": _w((lambda *s: torch.randn(*s, dtype=torch.bfloat16) * 0.8)(D, F) * (D ** -0.5)),
            "w_down": _w((lambda *s: torch.randn(*s, dtype=torch.bfloat16) * 0.8)(F, D) * (F ** -0.5)),
        }
    _B_in = _B_setup()

    return {
        "A_x": _A_in["x"],
        "A_wq": _A_in["wq"],
        "A_wk": _A_in["wk"],
        "A_wv": _A_in["wv"],
        "A_wo": _A_in["wo"],
        "B_x": _B_in["x"],
        "B_w_gate": _B_in["w_gate"],
        "B_w_up": _B_in["w_up"],
        "B_w_down": _B_in["w_down"],
        "gate_w": _w((lambda *s: torch.randn(*s, dtype=torch.bfloat16) * 0.05)(448) * 16.0),
    }

def reference(A_x, A_wq, A_wk, A_wv, A_wo, B_x, B_w_gate, B_w_up, B_w_down, gate_w):
    def _A_ref(x, wq, wk, wv, wo):
        B, S, D = x.shape
        H = 16
        Dh = D // H
        q = (lambda x, *d: x.permute(*d))((x @ wq).reshape(B, S, H, Dh), 0, 2, 1, 3)
        k = x @ wk
        v = x @ wv
        scores = torch.einsum("bhqd,bkd->bhqk", q, k) * (Dh ** -0.5)
        p = _softmax(scores, axis=-1)
        o = torch.einsum("bhqk,bkd->bhqd", p, v)
        return (lambda x, *d: x.permute(*d))(o, 0, 2, 1, 3).reshape(B, S, H * Dh) @ wo

    def _B_ref(x, w_gate, w_up, w_down):
        g = torch.einsum("bsd,df->bsf", x, w_gate)
        u = torch.einsum("bsd,df->bsf", x, w_up)
        h = g * u
        return torch.einsum("bsf,fd->bsd", h, w_down)

    x = A_x
    g = _sigmoid((x * gate_w).sum(-1, keepdims=True))
    a = _A_ref(x, A_wq, A_wk, A_wv, A_wo)
    b = _B_ref(x, B_w_gate, B_w_up, B_w_down)
    return g * a + (1 - g) * b
```

```python
import re

def regs_of(tok):
    t = tok.strip()
    t = t.lstrip('-')
    if t.startswith('|') and t.endswith('|'): t = t[1:-1]
    m = re.fullmatch(r'abs\((.*)\)', t)
    if m: t = m.group(1)
    m = re.fullmatch(r'([vsa])(\d+)', t)
    if m: return {(m.group(1), int(m.group(2)))}
    m = re.fullmatch(r'([vsa])\[(\d+):(\d+)\]', t)
    if m: return {(m.group(1), i) for i in range(int(m.group(2)), int(m.group(3)) + 1)}
    if t in ('vcc', 'm0', 'exec'): return {(t, 0)}
    return set()

TRANS = ('v_exp_f32', 'v_log_f32', 'v_rcp_f32', 'v_rsq_f32', 'v_sqrt_f32', 'v_sin_f32', 'v_cos_f32')

class I:
    pass

def parse(line):
    s = line.split(';')[0].strip()
    if not s or s.endswith(':') or s.startswith('.'): return None
    parts = s.split(None, 1)
    op = parts[0]
    rest = parts[1] if len(parts) > 1 else ''
    ops = [o.strip() for o in rest.split(',')] if rest else []
    if ops:
        ops[-1] = ops[-1].split()[0] if ops[-1].split() else ops[-1]
    x = I(); x.op = op; x.text = s; x.dst = set(); x.src = set(); x.kind = 'other'; x.ws = 1
    x.srcA = x.srcB = x.srcC = set()
    R = [regs_of(o) for o in ops]
    if op == 's_nop':
        x.ws = int(ops[0], 0) + 1; x.kind = 'salu'
    elif op.startswith('v_mfma'):
        x.kind = 'mfma'; x.dst = R[0]; x.srcA = R[1]; x.srcB = R[2]; x.srcC = R[3]; x.src = R[1] | R[2] | R[3]
        x.passes = 8 if '32x32' in op else 4
    elif op.startswith('v_'):
        x.kind = 'valu'
        if op.startswith('v_cmp'):
            x.dst = R[0]; x.src = set().union(*R[1:])
        elif op.startswith('v_permlane'):
            x.dst = R[0] | R[1]; x.src = R[0] | R[1]
        elif op in ('v_add_co_u32', 'v_sub_co_u32', 'v_addc_co_u32'):
            x.dst = R[0] | R[1]; x.src = set().union(*R[2:])
        else:
            x.dst = R[0]; x.src = set().union(*R[1:]) if len(R) > 1 else set()
            if op.startswith('v_fmac'): x.src |= R[0]
    elif op.startswith('ds_'):
        x.kind = 'ds'
        if op.startswith('ds_read') or '_rtn' in op:
            x.dst = R[0]; x.src = set().union(*R[1:])
        else:
            x.src = set().union(*R)
    elif op.startswith('buffer_') or op.startswith('global_'):
        x.kind = 'vmem'
        x.lds = ' lds' in s
        if 'load' in op and not x.lds:
            x.dst = R[0]; x.src = set().union(*R[1:])
        else:
            x.src = set().union(*R)
            if x.lds: x.src |= {('m0', 0)}
        x.wide_store = ('store' in op and ('x4' in op or 'x3' in op))
        x.data = R[0] if 'store' in op else set()
    elif op.startswith('s_'):
        x.kind = 'salu'
        if op.startswith('s_cmp') or op.startswith('s_bitcmp') or op.startswith('s_cbranch') or op in ('s_branch', 's_barrier', 's_waitcnt', 's_setprio', 's_sleep', 's_endpgm'):
            x.src = set().union(*R) if R else set()
        else:
            x.dst = R[0] if R else set(); x.src = set().union(*R[1:]) if len(R) > 1 else set()
            if 'saveexec' in op: x.dst |= {('exec', 0)}
    return x

def check(lines, name=''):
    ins = [p for p in (parse(l) for l in lines) if p is not None]
    errs = []
    for k, c in enumerate(ins):
        dist = 0
        for p in reversed(ins[max(0, k - 24):k]):
            need = 0
            vd = {r for r in p.dst if r[0] in 'va'}
            sd = {r for r in p.dst if r[0] in ('s', 'vcc')}
            if p.kind == 'valu':
                if c.kind == 'mfma' and vd & c.src: need = max(need, 2)
                if p.op in TRANS and c.kind in ('valu', 'mfma') and c.op not in TRANS and vd & c.src: need = max(need, 1)
                if c.op.startswith('v_permlane') and vd & c.src: need = max(need, 2)
                if c.op in ('v_readfirstlane_b32', 'v_readlane_b32') and vd & c.src: need = max(need, 1)
                if c.kind == 'valu' and sd & c.src: need = max(need, 2)
                if c.kind == 'vmem' and sd & c.src: need = max(need, 5)
                if c.kind == 'salu' and sd & c.src and not (c.op.startswith('s_and_saveexec') or c.op.startswith('s_cbranch')): need = max(need, 1)
            if p.kind == 'mfma':
                n = 12 if p.passes == 8 else 8
                if c.kind == 'mfma':
                    if p.dst & (c.srcA | c.srcB): need = max(need, n)
                    if p.dst & c.srcC and p.dst != c.srcC: need = max(need, n - 2)
                    if p.dst & c.dst and p.dst != c.srcC and False: pass
                elif c.kind in ('valu', 'ds', 'vmem'):
                    if p.dst & (c.src | c.dst): need = max(need, n)
                    if c.kind == 'valu' and p.srcC & c.dst: need = max(need, 7 if p.passes == 8 else 3)
            if p.kind == 'salu' and ('m0', 0) in p.dst and c.kind == 'vmem' and c.lds: need = max(need, 1)
            if p.kind == 'vmem' and p.wide_store and c.kind in ('valu',) and p.data & c.dst: need = max(need, 2)
            if p.kind == 'vmem' and p.wide_store and c.kind in ('ds', 'vmem', 'mfma') and p.data & c.dst: need = max(need, 1)
            if need > dist:
                errs.append(f"{name}: need {need} have {dist}: [{p.text}] -> [{c.text}]")
            dist += p.ws
    return errs
```

```python
import sys, math, struct
import hazard

NAME = "gated_mix__grouped_kv_mqa__glu_gated_bilinear__prompt_kernel"
STAMPS = "--stamps" in sys.argv

WS_KV = 0x000000
WS_G = 0x040000
WS_HF = 0x048000
WS_O = 0x080000
WS_H = 0x300000
WS_END = 0xA00000
WS_ST = 0xA00000
LDS_SIZE = 163840
F_STAGE = 53248; F_NST = 3; F_G = 16384; F_U = 32768; F_Q = 49152
K_STAGE = 24576; K_NST = 6; K_W = 16384; K_Q = 20480; K_GW = 147456
L_CNT = 163840 - 64
L_REG = 28672
L_RED = 114688
SPIN = 1 << 17

def f32bits(x): return struct.unpack("<I", struct.pack("<f", x))[0]
QSCALE = f32bits(28 ** -0.5 * math.log2(math.e))
LOG2E = f32bits(math.log2(math.e))

out = []
def E(s): out.append("    " + s)
def L(s): out.append(s + ":")
def C(s): out.append("    ; " + s)
def v(a, n=1): return f"v{a}" if n == 1 else f"v[{a}:{a+n-1}]"
def mfma(d, a, b, c=None):
    E(f"v_mfma_f32_32x32x16_bf16 {v(d,16)}, {v(a,4)}, {v(b,4)}, " + ("0" if c is None else v(c,16)))
def nop(n):
    while n > 0:
        k = min(n, 16); E(f"s_nop {k-1}"); n -= k
nst = [0]
def stamp(n):
    if STAMPS:
        E(f"s_memtime s[{72+2*n}:{73+2*n}]"); E("s_waitcnt lgkmcnt(0)")
def stamp_flush(tag):
    if STAMPS:
        E("s_memrealtime s[92:93]"); E("s_waitcnt lgkmcnt(0)")
        E("s_lshl_b32 s90, s2, 3"); E("s_add_u32 s90, s90, s44"); E("s_lshl_b32 s90, s90, 6"); E(f"s_add_u32 s90, s90, {WS_ST}")
        for q in range(2):
            for e in range(4): E(f"v_mov_b32 v{4+e}, s{72+2*(4*q+e)}")
            E(f"buffer_store_dwordx4 v[4:7], off, s[28:31], s90 offset:{16*q}"); nop(2)
        E("v_mov_b32 v4, s92"); E("v_mov_b32 v5, s88"); E("v_mov_b32 v6, s89"); E("v_mov_b32 v7, s94")
        E("buffer_store_dwordx4 v[4:7], off, s[28:31], s90 offset:32")
        E("s_waitcnt vmcnt(0)")

X, WQ, WG, WU, WD, WO, WS, OUT, DBG, KVW = "s[4:7]", "s[8:11]", "s[12:15]", "s[16:19]", "s[20:23]", "s[24:27]", "s[28:31]", "s[32:35]", "s[36:39]", "s[40:43]"

def entry():
    E("s_cmp_ge_u32 s2, 256"); E("s_cbranch_scc1 L_end")
    E("s_load_dwordx16 s[52:67], s[0:1], 0")
    E("s_load_dwordx8 s[80:87], s[0:1], 64")
    E("s_load_dwordx2 s[28:29], s[0:1], 96")
    if STAMPS:
        E("s_memrealtime s[88:89]"); E("s_getreg_b32 s94, hwreg(HW_REG_HW_ID)")
    E("v_lshrrev_b32 v1, 6, v0"); E("v_and_b32 v0, 63, v0")
    E("v_readfirstlane_b32 s44, v1")
    E("s_and_b32 s68, s2, 7"); E("s_lshr_b32 s69, s2, 3")
    E("s_and_b32 s46, s68, 1"); E("s_lshl_b32 s46, s46, 3"); E("s_and_b32 s70, s69, 7"); E("s_add_u32 s46, s46, s70")
    E("s_lshr_b32 s47, s68, 1"); E("s_lshl_b32 s47, s47, 2"); E("s_lshr_b32 s70, s69, 3"); E("s_add_u32 s47, s47, s70")
    E("s_lshl_b32 s48, s68, 2"); E("s_and_b32 s70, s69, 3"); E("s_add_u32 s48, s48, s70")
    E("s_lshr_b32 s49, s69, 2")
    E("s_mov_b32 s50, s47")
    E("s_and_b32 s45, s44, 3")
    for base, size in ((4, 1835008), (8, 401408), (20, 1605632), (24, 401408), (28, WS_END + (0x20000 if STAMPS else 0)), (32, 1835008), (36, 256), (40, 65536)):
        E(f"s_mov_b32 s{base+2}, {size}"); E(f"s_mov_b32 s{base+3}, 0x20000")
    E("s_mov_b32 s15, 0x20000"); E("s_mov_b32 s19, 0x20000")
    E("v_lshlrev_b32 v29, 4, v0")
    E("v_lshrrev_b32 v31, 5, v0")
    E("v_and_b32 v1, 31, v0")
    E("v_bfe_u32 v2, v0, 1, 3")
    E("v_xor_b32 v2, v2, v31"); E("v_lshlrev_b32 v2, 4, v2")
    E("v_lshl_add_u32 v30, v1, 7, v2")
    E("v_bfe_u32 v28, v0, 2, 2")
    E("v_bfe_u32 v1, v0, 4, 1"); E("v_and_b32 v2, 3, v0"); E("v_lshlrev_b32 v2, 3, v2"); E("v_lshl_add_u32 v27, v1, 5, v2")
    E("s_waitcnt lgkmcnt(0)")
    for base, src in ((4, 52), (8, 54), (24, 60), (20, 80), (32, 84), (36, 86)):
        E(f"s_mov_b32 s{base}, s{src}"); E(f"s_mov_b32 s{base+1}, s{src+1}")
    E("s_lshl_b32 s70, s45, 16"); E("s_add_u32 s40, s28, s70"); E("s_addc_u32 s41, s29, 0")
    E("s_cmp_ge_u32 s47, 14"); E("s_cbranch_scc1 L_kvsetup")
    E("s_mov_b32 s12, s64"); E("s_mov_b32 s13, s65"); E("s_mov_b32 s14, 1605632")
    E("s_mov_b32 s16, s66"); E("s_mov_b32 s17, s67"); E("s_mov_b32 s18, 1605632")
    stamp(0)
    E("s_cmp_ge_u32 s44, 4"); E("s_cbranch_scc1 L_gf"); E("s_branch L_af")
    L("L_kvsetup")
    E("s_cmp_eq_u32 s47, 14")
    E("s_cselect_b32 s12, s56, s58"); E("s_cselect_b32 s13, s57, s59"); E("s_mov_b32 s14, 25088")
    E("s_mov_b32 s16, s82"); E("s_mov_b32 s17, s83"); E("s_mov_b32 s18, 896")
    stamp(0)
    E("s_cmp_ge_u32 s44, 4"); E("s_cbranch_scc1 L_gk"); E("s_branch L_ak")

ASET = (14, 19, 88)
QACC, XF, WF = 32, 48, 64
PREG = 80
QS = 96; OA = 128; KB = 192; VB = 224
S0, S1 = 48, 64
VG = 93
def a_addr(idx, off):
    return ASET[off >> 16] + idx, off & 0xffff

def a_setup(kind):
    E("v_lshrrev_b32 v24, 4, v0")
    E("v_and_b32 v25, 7, v0"); E("v_xor_b32 v25, v25, v24"); E("v_lshlrev_b32 v25, 4, v25")
    E("v_lshrrev_b32 v26, 3, v0"); E("v_mul_u32_u24 v26, 896, v26")
    E("v_add_u32 v1, v26, v25")
    E("v_xor_b32 v25, 64, v25"); E("v_add_u32 v2, v26, v25"); E("v_add_u32 v2, 6144, v2")
    E("v_add_u32 v3, 12288, v1"); E("v_add_u32 v4, 12288, v2")
    if kind == "F":
        E("v_and_b32 v25, 15, v0"); E("v_lshlrev_b32 v26, 1, v24"); E("v_xor_b32 v25, v25, v26"); E("v_lshlrev_b32 v25, 4, v25")
        E("v_mul_u32_u24 v26, 3584, v24"); E("v_add_u32 v5, v26, v25"); E("v_xor_b32 v9, 128, v5")
        for n in range(1, 4):
            E(f"v_add_u32 v{5+n}, {13312*n}, v5"); E(f"v_add_u32 v{9+n}, {13312*n}, v9")
    E("v_lshrrev_b32 v25, 2, v0"); E("v_mul_u32_u24 v25, 896, v25"); E("v_and_b32 v26, 3, v0"); E("v_lshl_add_u32 v13, v26, 4, v25")
    E("s_lshl_b32 s52, s46, 2"); E("s_add_u32 s52, s52, s45"); E("s_mul_i32 s52, s52, 28672")
    if kind == "F":
        E("s_mul_i32 s53, s45, 57344"); E("s_lshl_b32 s70, s47, 8"); E("s_add_u32 s53, s53, s70")
    else:
        E("s_lshl_b32 s53, s45, 10")
    E("s_mul_i32 s57, s50, 56"); E("s_and_b32 s54, s57, 0xfffffff0"); E("s_mul_i32 s70, s45, 14336"); E("s_add_u32 s54, s54, s70")
    E("s_and_b32 s57, s57, 8")
    E("s_lshl_b32 s55, s45, 12"); E("s_lshl_b32 s56, s45, 10")

def a_setup2():
    E("v_add_u32 v14, s55, v30")
    for s in range(1, 4): E(f"v_xor_b32 v{14+s}, {32*s}, v14")
    E("v_lshl_add_u32 v25, v31, 3, v28"); E("v_lshl_add_u32 v18, v25, 6, v27"); E("v_add_u32 v18, s57, v18")
    for k in range(5):
        E(f"v_add_u32 v{19+k}, 0x10000, v{14+k}"); E(f"v_add_u32 v{88+k}, 0x20000, v{14+k}")

def a_dma_groups(kind, kb):
    st = (kb % F_NST) * F_STAGE if kind == "F" else (kb % K_NST) * K_STAGE
    gs = []
    g = [f"s_add_u32 m0, s55, {st}", "s_nop 0"] + [f"buffer_load_dwordx4 v{1+n}, {X}, s52 offen offset:{1024*n} lds" for n in range(4)]
    gs.append(g)
    if kind == "F":
        g = [f"s_add_u32 m0, s55, {st+F_G}", "s_add_u32 s52, s52, 128"] + [f"buffer_load_dwordx4 v{5+n}, {WG}, s53 offen offset:{1024*n} lds" for n in range(4)]
        gs.append(g)
        g = [f"s_add_u32 m0, s55, {st+F_U}", "s_nop 0"] + [f"buffer_load_dwordx4 v{9+n}, {WU}, s53 offen offset:{1024*n} lds" for n in range(4)]
        gs.append(g)
        g = [f"s_add_u32 m0, s56, {st+F_Q}", "s_add_u32 s53, s53, 229376", f"buffer_load_dwordx4 v13, {WQ}, s54 offen lds", "s_add_u32 s54, s54, 57344"]
        gs.append(g)
    else:
        g = [f"s_add_u32 m0, s56, {st+K_W}", "s_add_u32 s52, s52, 128", f"buffer_load_dwordx4 v29, {WG}, s53 offen lds"]
        gs.append(g)
        g = [f"s_add_u32 m0, s56, {st+K_Q}", "s_add_u32 s53, s53, 3584", f"buffer_load_dwordx4 v13, {WQ}, s54 offen lds", "s_add_u32 s54, s54, 57344"]
        gs.append(g)
    return gs

def kv_prologue_loads():
    E("s_lshl_b32 s70, s46, 2"); E("s_add_u32 s70, s70, s45"); E("s_lshl_b32 s70, s70, 7"); E(f"s_add_u32 s70, s70, {WS_G}")
    E(f"buffer_load_dword v{VG}, v94, {WS}, s70 offen sc1")
    E("s_mov_b32 s60, 0")
    for t in range(3):
        tile_loads(t)

def tile_loads(u):
    E(f"buffer_load_dwordx4 {v(KB+8*u,4)}, v29, {KVW}, s60 offen sc1")
    E(f"buffer_load_dwordx4 {v(KB+8*u+4,4)}, v29, {KVW}, s60 offen offset:1024 sc1")
    E(f"buffer_load_dwordx4 {v(VB+8*u,4)}, v29, {KVW}, s60 offen offset:2048 sc1")
    E(f"buffer_load_dwordx4 {v(VB+8*u+4,4)}, v29, {KVW}, s60 offen offset:3072 sc1")
    E("s_add_u32 s60, s60, 4096")

def a_phaseB(kind):
    k = kind.lower()
    NST = F_NST if kind == "F" else K_NST
    per = 13 if kind == "F" else 6
    stage = F_STAGE if kind == "F" else K_STAGE
    qoff = F_Q if kind == "F" else K_Q
    L(f"L_a{k}")
    a_setup(kind)
    issued = 0
    if kind == "K":
        E(f"s_mov_b32 m0, {K_GW}"); E("s_nop 0"); E(f"buffer_load_dwordx4 v29, {WU}, 0 offen lds")
    for kb in range(NST):
        for g in a_dma_groups(kind, kb):
            for l in g: E(l)
    issued = NST
    a_setup2()
    E(f"v_mov_b32 v24, {L_CNT}")
    E("v_mov_b32 v94, 0"); E("v_mov_b32 v95, 0"); E("ds_write_b64 v24, v[94:95]")
    for r in range(QACC, QACC+16): E(f"v_mov_b32 v{r}, 0")
    for r in range(OA, OA+64): E(f"v_mov_b32 v{r}, 0")
    for r in range(PREG, PREG+8): E(f"v_mov_b32 v{r}, 0")
    for r in range(VB+24, VB+32): E(f"v_mov_b32 v{r}, 0")
    E("v_and_b32 v94, 31, v0"); E("v_lshlrev_b32 v94, 2, v94")
    E(f"s_waitcnt vmcnt({(issued-1)*per}) lgkmcnt(0)")
    E("s_barrier")
    stamp(1)
    for kb in range(7):
        st = (kb % NST) * stage
        C(f"--- A block {kb}")
        if kb == 6:
            E("s_cmp_eq_u32 s61, 1"); E(f"s_cbranch_scc1 L_a{k}_rdy")
            E(f"s_mov_b32 s62, {SPIN}")
            L(f"L_a{k}_poll")
            E(f"buffer_load_dword v24, off, {DBG}, 0 sc1"); E("s_waitcnt vmcnt(0)")
            E("v_readfirstlane_b32 s63, v24"); E("s_sub_u32 s62, s62, 1"); E("s_cmp_eq_u32 s62, 0"); E(f"s_cbranch_scc1 L_a{k}_go")
            E("s_cmp_ge_u32 s63, 32"); E(f"s_cbranch_scc1 L_a{k}_go"); E("s_sleep 4"); E(f"s_branch L_a{k}_poll")
            L(f"L_a{k}_go")
            kv_prologue_loads()
            L(f"L_a{k}_rdy")
        for s in range(4):
            r, o = a_addr(s, st); E(f"ds_read_b128 {v(XF+4*s,4)}, v{r} offset:{o}")
            for q in range(2):
                r, o = a_addr(4, st + qoff + s*1024 + q*256); E(f"ds_read_b64_tr_b16 {v(WF+4*s+2*q,2)}, v{r} offset:{o}")
        groups = a_dma_groups(kind, kb - 1 + NST) if (kb >= 1 and kb - 1 + NST <= 6) else []
        if groups: issued += 1
        for s in range(4):
            if s < len(groups):
                for l in groups[s]: E(l)
            E(f"s_waitcnt lgkmcnt({9-3*s})")
            mfma(QACC, WF+4*s, XF+4*s, QACC)
        if kb == 5:
            E(f"buffer_load_dword v24, off, {DBG}, 0 sc1"); E("s_waitcnt vmcnt(0)")
            E("v_readfirstlane_b32 s63, v24"); E("s_mov_b32 s61, 0"); E("s_cmp_lt_u32 s63, 32"); E(f"s_cbranch_scc1 L_a{k}_notyet")
            kv_prologue_loads(); E("s_mov_b32 s61, 1")
            L(f"L_a{k}_notyet")
            E("s_barrier")
        elif kb < 5:
            E(f"s_waitcnt vmcnt({(issued-(kb+2))*per})")
            E("s_barrier")
    if kind == "F": E("s_branch L_attn")

def lds_spin(label, off, target, areg, treg):
    E(f"s_mov_b32 s62, {SPIN}")
    L(label)
    E(f"ds_read_b32 v{treg}, v{areg} offset:{off}"); E("s_waitcnt lgkmcnt(0)")
    E(f"v_readfirstlane_b32 s63, v{treg}"); E("s_sub_u32 s62, s62, 1"); E("s_cmp_eq_u32 s62, 0"); E(f"s_cbranch_scc1 {label}_x")
    E(f"s_cmp_lt_u32 s63, {target}"); E(f"s_cbranch_scc1 {label}")
    L(label + "_x")

def period(u, s, first_wait=True):
    tau = 4*u + s
    Sc = (S0, S1)[tau & 1]; Sn = (S0, S1)[(tau+1) & 1]
    un, sn = ((tau+1)//4) % 4, (tau+1) % 4
    up, sp = ((tau-1)//4) % 4, (tau-1) % 4
    if s == 3: E("s_waitcnt vmcnt(8)")
    ex = [f"v_exp_f32 v{Sc+r}, v{Sc+r}" for r in range(16)]
    cv = [f"v_cvt_pk_bf16_f32 v{PREG+r}, v{Sc+2*r}, v{Sc+2*r+1}" for r in range(8)]
    mfma(Sn, KB+8*un, QS+8*sn)
    for l in ex[0:3]: E(l)
    mfma(Sn, KB+8*un+4, QS+8*sn+4, Sn)
    for l in ex[3:6]: E(l)
    mfma(OA+16*sp, VB+8*up, PREG, OA+16*sp)
    for l in ex[6:9]: E(l)
    mfma(OA+16*sp, VB+8*up+4, PREG+4, OA+16*sp)
    for l in ex[9:16]: E(l)
    if s == 1: tile_loads((u+3) % 4)
    for l in cv: E(l)

def attention():
    L("L_attn")
    stamp(2)
    E("s_setprio 2")
    C("Q epilogue -> slot 3")
    Q3 = QS + 24
    E(f"s_mov_b32 s64, {QSCALE}")
    E("v_cmp_eq_u32 vcc, 0, v31")
    nop(9)
    for r in range(16): E(f"v_mul_f32 v{QACC+r}, s64, v{QACC+r}")
    for r in range(8): E(f"v_cvt_pk_bf16_f32 v{Q3+r}, v{QACC+2*r}, v{QACC+2*r+1}")
    E(f"v_cndmask_b32 v{Q3+6}, 0, v{Q3+6}, vcc"); E(f"v_cndmask_b32 v{Q3+7}, 0, v{Q3+7}, vcc")
    E("s_lshl_b32 s65, s45, 11"); E(f"s_add_u32 s65, s65, {L_RED}"); E("v_add_u32 v24, s65, v29")
    E(f"ds_write_b128 v24, {v(Q3,4)}")
    E("s_waitcnt vmcnt(10)")
    mfma(S0, KB, Q3); mfma(S0, KB+4, Q3+4, S0)
    for s in range(3):
        E(f"s_add_u32 s65, s45, {1+s}"); E("s_and_b32 s65, s65, 3"); E("s_lshl_b32 s65, s65, 11"); E(f"s_add_u32 s65, s65, {L_RED}")
        E(f"v_add_u32 v{1+s}, s65, v29")
    E(f"v_mov_b32 v25, {L_CNT}"); E("v_mov_b32 v26, 1")
    E(f"v_max3_f32 v4, v{S0}, v{S0+1}, v{S0+2}")
    for r in range(3, 15, 2): E(f"v_max3_f32 v4, v4, v{S0+r}, v{S0+r+1}")
    E(f"v_max_f32 v4, v4, v{S0+15}")
    E("v_mov_b32 v5, v4"); nop(2)
    E("v_permlane32_swap_b32 v4, v5"); nop(1)
    E("v_max_f32 v4, v4, v5")
    E("v_cvt_pk_bf16_f32 v4, -v4, 0")
    E(f"v_cndmask_b32 v{Q3+6}, v4, v{Q3+6}, vcc")
    E(f"ds_write_b128 v24, {v(Q3+4,4)} offset:1024")
    E("s_waitcnt lgkmcnt(0)")
    E("s_mov_b64 s[66:67], exec"); E("s_mov_b64 exec, 1"); E("ds_add_u32 v25, v26"); E("s_mov_b64 exec, s[66:67]")
    lds_spin("L_qspin", 0, 4, 25, 5)
    for s in range(3):
        E(f"ds_read_b128 {v(QS+8*s,4)}, v{1+s}"); E(f"ds_read_b128 {v(QS+8*s+4,4)}, v{1+s} offset:1024")
    E("s_waitcnt lgkmcnt(4)")
    mfma(S0, KB, QS); mfma(S0, KB+4, QS+4, S0)
    E("s_waitcnt vmcnt(8) lgkmcnt(0)")
    E("s_mov_b32 s59, 4")
    nop(10)
    stamp(3)
    out.append(".p2align 6")
    L("L_aloop")
    b0 = len(out)
    for u in range(4):
        for s in range(4): period(u, s)
    E("s_sub_u32 s59, s59, 1"); E("s_cmp_lg_u32 s59, 0"); E("s_cbranch_scc1 L_aloop")
    loops.append(out[b0:])
    stamp(4)
    O3 = OA + 48
    mfma(O3, VB+24, PREG, O3); mfma(O3, VB+28, PREG+4, O3)
    for s in range(3):
        E(f"s_add_u32 s65, s45, {1+s}"); E("s_and_b32 s65, s65, 3"); E("s_mul_i32 s65, s65, 12288"); E(f"s_add_u32 s65, s65, {L_RED+4096*s}")
        E(f"v_add_u32 v{1+s}, s65, v29")
        for q in range(4): E(f"ds_write_b128 v{1+s}, {v(OA+16*s+4*q,4)} offset:{1024*q}")
    E("s_mul_i32 s65, s45, 12288"); E(f"s_add_u32 s65, s65, {L_RED}"); E("v_add_u32 v4, s65, v29")
    E("s_waitcnt vmcnt(0) lgkmcnt(0)")
    E("s_barrier")
    stamp(5)
    for q in range(12): E(f"ds_read_b128 {v(KB+4*q,4)}, v4 offset:{1024*q}")
    E("s_lshl_b32 s65, s46, 2"); E("s_add_u32 s65, s65, s45"); E("s_lshl_b32 s65, s65, 4"); E("s_add_u32 s65, s65, s50"); E("s_lshl_b32 s65, s65, 11"); E(f"s_add_u32 s65, s65, {WS_O}")
    for s in range(3):
        E(f"s_waitcnt lgkmcnt({8-4*s})")
        for r in range(16): E(f"v_add_f32 v{O3+r}, v{O3+r}, v{KB+16*s+r}")
    E(f"v_mov_b32 v4, v{O3+12}"); E(f"v_mov_b32 v5, v{O3+12}")
    E(f"s_mov_b32 s64, {f32bits(2.0**-20)}")
    E(f"v_mul_f32 v6, s64, v{O3+12}")
    E("v_permlane32_swap_b32 v4, v5")
    for r in range(16):
        E(f"v_fma_f32 v6, |v{O3+r}|, s64, v6")
    E(f"v_mov_b32 v7, {f32bits(2.0**100)}"); E(f"v_mov_b32 v8, {f32bits(2.0**-60)}"); E("v_mov_b32 v9, 0x7f800000")
    E("v_cmp_ge_f32 s[66:67], v7, v5"); E("v_cmp_le_f32 s[68:69], v8, v5"); E("v_cmp_gt_f32 vcc, v9, v6")
    nop(1)
    E("s_and_b64 s[66:67], s[66:67], s[68:69]"); E("s_and_b64 s[66:67], s[66:67], vcc")
    E("s_cmp_eq_u64 s[66:67], -1"); E("s_cbranch_scc0 L_fb")
    L("L_norm")
    E("v_rcp_f32 v5, v5"); E("v_cmp_eq_u32 vcc, 0, v31")
    E(f"v_mul_f32 v5, v{VG}, v5")
    for r in range(16): E(f"v_mul_f32 v{O3+r}, v5, v{O3+r}")
    for r in range(8): E(f"v_cvt_pk_bf16_f32 v{PREG+r}, v{O3+2*r}, v{O3+2*r+1}")
    E(f"v_cndmask_b32 v{PREG+6}, 0, v{PREG+6}, vcc"); E(f"v_cndmask_b32 v{PREG+7}, 0, v{PREG+7}, vcc")
    for r in range(8): E(f"v_min_u32 v{PREG+r}, -2, v{PREG+r}")
    E(f"buffer_store_dwordx4 {v(PREG,4)}, v29, {WS}, s65 offen sc1")
    E(f"buffer_store_dwordx4 {v(PREG+4,4)}, v29, {WS}, s65 offen offset:1024 sc1")
    stamp(6)
    stamp_flush("a")
    E("s_endpgm")
    L("L_fb")
    E("v_cmp_eq_u32 vcc, 0, v31"); E("v_mov_b32 v4, 0xff800000"); E("s_mov_b32 s60, 0")
    E(f"v_cndmask_b32 v{Q3+6}, 0, v{Q3+6}, vcc")
    L("L_fb1")
    E(f"buffer_load_dwordx4 {v(KB,4)}, v29, {WS}, s60 offen sc1"); E(f"buffer_load_dwordx4 {v(KB+4,4)}, v29, {WS}, s60 offen offset:1024 sc1")
    E("s_waitcnt vmcnt(0)")
    mfma(S0, KB, Q3); mfma(S0, KB+4, Q3+4, S0); nop(12)
    for r in range(0, 16, 2): E(f"v_max3_f32 v4, v4, v{S0+r}, v{S0+r+1}")
    E("s_add_u32 s60, s60, 4096"); E("s_cmp_lt_u32 s60, 0x40000"); E("s_cbranch_scc1 L_fb1")
    E("v_mov_b32 v5, v4"); nop(2); E("v_permlane32_swap_b32 v4, v5"); nop(1); E("v_max_f32 v4, v4, v5")
    for r in range(16): E(f"v_mov_b32 v{O3+r}, 0")
    E("s_mov_b32 s60, 0")
    L("L_fb2")
    E(f"buffer_load_dwordx4 {v(KB,4)}, v29, {WS}, s60 offen sc1"); E(f"buffer_load_dwordx4 {v(KB+4,4)}, v29, {WS}, s60 offen offset:1024 sc1")
    E(f"buffer_load_dwordx4 {v(VB,4)}, v29, {WS}, s60 offen offset:2048 sc1"); E(f"buffer_load_dwordx4 {v(VB+4,4)}, v29, {WS}, s60 offen offset:3072 sc1")
    E("s_waitcnt vmcnt(0)")
    mfma(S0, KB, Q3); mfma(S0, KB+4, Q3+4, S0); nop(12)
    for r in range(16): E(f"v_sub_f32 v{S0+r}, v{S0+r}, v4")
    for r in range(16): E(f"v_exp_f32 v{S0+r}, v{S0+r}")
    nop(1)
    for r in range(8): E(f"v_cvt_pk_bf16_f32 v{PREG+r}, v{S0+2*r}, v{S0+2*r+1}")
    nop(2)
    mfma(O3, VB, PREG, O3); mfma(O3, VB+4, PREG+4, O3)
    E("s_add_u32 s60, s60, 4096"); E("s_cmp_lt_u32 s60, 0x40000"); E("s_cbranch_scc1 L_fb2")
    nop(12)
    E(f"v_mov_b32 v4, v{O3+12}"); E(f"v_mov_b32 v5, v{O3+12}"); nop(2)
    E("v_permlane32_swap_b32 v4, v5"); nop(1)
    E("s_branch L_norm")

def g_ffn():
    L("L_gf")
    ACC = 128; GX = 64; GW_ = 80
    E("s_and_b32 s52, s45, 1"); E("s_lshr_b32 s53, s45, 1")
    E("s_lshl_b32 s70, s52, 13"); E("v_add_u32 v1, s70, v30")
    for s in range(1, 4): E(f"v_xor_b32 v{1+s}, {32*s}, v1")
    E("v_bfe_u32 v17, v0, 4, 1")
    E("v_lshl_add_u32 v18, v17, 2, v28")
    E("s_lshl_b32 s70, s53, 2"); E("v_xor_b32 v18, s70, v18"); E("v_lshlrev_b32 v18, 5, v18")
    E("v_and_b32 v19, 3, v0"); E("v_lshl_add_u32 v18, v19, 3, v18")
    E("v_lshl_add_u32 v19, v31, 3, v28"); E("v_lshl_add_u32 v18, v19, 8, v18")
    E("v_lshl_add_u32 v18, v17, 14, v18"); E(f"v_add_u32 v5, {F_G}, v18")
    for t in range(1, 4): E(f"v_xor_b32 v{5+t}, {32*t}, v5")
    for k in range(8): E(f"v_mov_b32 v{9+k}, v{1+k}")
    for r in range(ACC, ACC+128): E(f"v_mov_b32 v{r}, 0")
    E("s_mov_b32 s54, 0"); E("s_mov_b32 s55, 0")
    E("s_barrier")
    stamp(1)
    def reads(s):
        st = s & 1
        R = []
        R.append(f"ds_read_b128 {v(GX+8*st,4)}, v{9+s}")
        for q in range(2): R.append(f"ds_read_b64_tr_b16 {v(GW_+16*st+2*q,2)}, v13 offset:{4096*s+1024*q}")
        R.append(f"ds_read_b128 {v(GX+8*st+4,4)}, v{9+s} offset:4096")
        for t in range(1, 4):
            for q in range(2): R.append(f"ds_read_b64_tr_b16 {v(GW_+16*st+4*t+2*q,2)}, v{13+t} offset:{4096*s+1024*q}")
        return R
    for l in reads(0): E(l)
    out.append(".p2align 6")
    L("L_gfloop")
    b0 = len(out)
    for s in range(4):
        st = s & 1
        E("s_waitcnt lgkmcnt(0)")
        R = reads((s+1) % 4)
        n = 0
        for t in range(4):
            for a in range(2):
                d = ACC + 64*a + 16*t
                mfma(d, GW_+16*st+4*t, GX+8*st+4*a, d)
                if s == 3 and n == 0:
                    E("s_cmp_eq_u32 s54, 6"); E("s_cbranch_scc1 L_gf_nobar"); E("s_barrier"); L("L_gf_nobar")
                for l in R[:2]: E(l)
                R = R[2:]
                if s == 2 and n == 5:
                    E(f"s_add_u32 s55, s55, {F_STAGE}"); E(f"s_cmp_eq_u32 s55, {3*F_STAGE}"); E("s_cselect_b32 s55, 0, s55")
                if s == 2 and n >= 6:
                    for k in range(4*(n-6), 4*(n-6)+4): E(f"v_add_u32 v{9+k}, s55, v{1+k}")
                n += 1
    E("s_add_u32 s54, s54, 1"); E("s_cmp_lt_u32 s54, 7"); E("s_cbranch_scc1 L_gfloop")
    loops.append(out[b0:])
    stamp(2)
    E("s_lshl_b32 s56, s46, 2"); E("s_lshl_b32 s70, s52, 1"); E("s_add_u32 s56, s56, s70"); E("s_mul_i32 s56, s56, 114688")
    E("s_lshl_b32 s70, s47, 13"); E("s_add_u32 s56, s56, s70"); E("s_lshl_b32 s70, s53, 12"); E("s_add_u32 s56, s56, s70"); E(f"s_add_u32 s56, s56, {WS_H}")
    E("s_add_u32 s57, s56, 114688")
    E("s_waitcnt lgkmcnt(0)")
    for t in range(4):
        for a in range(2):
            d = ACC + 64*a + 16*t
            for r in range(8): E(f"v_mul_f32 v{d+r}, v{d+r}, v{d+8+r}")
            for r in range(4): E(f"v_cvt_pk_bf16_f32 v{d+8+r}, v{d+2*r}, v{d+2*r+1}")
            E(f"buffer_store_dwordx4 {v(d+8,4)}, v29, {WS}, s{56+a} offen offset:{1024*t} sc1")
    E(f"s_mov_b32 s62, {SPIN}")
    L("L_gf_poll")
    E(f"buffer_load_dword v24, off, {DBG}, 0 sc1"); E("s_waitcnt vmcnt(0)")
    E("v_readfirstlane_b32 s63, v24"); E("s_sub_u32 s62, s62, 1"); E("s_cmp_eq_u32 s62, 0"); E("s_cbranch_scc1 L_gf_go")
    E("s_cmp_ge_u32 s63, 32"); E("s_cbranch_scc1 L_gf_go"); E("s_sleep 4"); E("s_branch L_gf_poll")
    L("L_gf_go")
    E(f"v_mov_b32 v25, {L_CNT}"); E("v_mov_b32 v26, 1")
    E("s_mov_b64 exec, 1")
    E("ds_add_rtn_u32 v24, v25, v26 offset:4"); E("s_waitcnt lgkmcnt(0)")
    E("v_readfirstlane_b32 s63, v24")
    E("s_lshl_b32 s70, s46, 4"); E("s_add_u32 s70, s70, s47"); E("s_lshl_b32 s70, s70, 7"); E(f"s_add_u32 s70, s70, {WS_HF}")
    E("s_cmp_lg_u32 s63, 3"); E("s_cbranch_scc1 L_gf_nosig")
    E(f"buffer_store_dword v26, off, {WS}, s70 sc1")
    L("L_gf_nosig")
    E("s_mov_b64 exec, -1")
    E("s_branch L_gd")

def g_kv():
    L("L_gk")
    D1, D2, D3 = 128, 144, 160
    GX = 64; GWf = 80; GG = 96
    E("s_lshl_b32 s56, s46, 17"); E("s_sub_u32 s70, s47, 14"); E("s_lshl_b32 s70, s70, 16"); E("s_add_u32 s56, s56, s70")
    E("s_lshl_b32 s70, s45, 14"); E("s_add_u32 s56, s56, s70"); E(f"s_add_u32 s56, s56, {WS_O}")
    for r in range(4): E(f"v_mov_b32 v{32+r}, -1")
    for g in range(4):
        for n in range(4): E(f"buffer_store_dwordx4 v[32:35], v29, {WS}, s56 offen offset:{1024*n} sc1")
        E("s_add_u32 s56, s56, 4096")
    E("s_lshl_b32 s70, s47, 2"); E("s_add_u32 s70, s70, s45"); E("s_cmp_lg_u32 s70, 56"); E("s_cbranch_scc1 L_gk_nz")
    E("v_lshlrev_b32 v36, 7, v0"); E("v_mov_b32 v37, 0"); E("s_lshl_b32 s70, s46, 11"); E(f"s_add_u32 s70, s70, {WS_HF}")
    E("s_mov_b32 exec_lo, 0xffff"); E("s_mov_b32 exec_hi, 0")
    E(f"buffer_store_dword v37, v36, {WS}, s70 offen sc1")
    E("s_mov_b64 exec, -1")
    L("L_gk_nz")
    E("s_lshl_b32 s70, s45, 12"); E("v_add_u32 v1, s70, v30")
    for s in range(1, 4): E(f"v_xor_b32 v{1+s}, {32*s}, v1")
    E("v_lshl_add_u32 v17, v31, 3, v28"); E("v_mul_u32_u24 v17, 56, v17"); E("v_add_u32 v5, v17, v27"); E(f"v_add_u32 v5, {K_W}, v5")
    E("v_lshlrev_b32 v6, 4, v31"); E(f"v_add_u32 v6, {K_GW}, v6")
    for k in range(5): E(f"v_mov_b32 v{9+k}, v{1+k}")
    for r in range(D1, D1+48): E(f"v_mov_b32 v{r}, 0")
    E("s_mov_b32 s54, 0"); E("s_mov_b32 s55, 0")
    E("s_barrier")
    stamp(1)
    L("L_gkloop")
    b0 = len(out)
    for hf in range(2):
        for s in (2*hf, 2*hf+1):
            E(f"ds_read_b128 {v(GX+4*s,4)}, v{9+s}")
            for q in range(2): E(f"ds_read_b64_tr_b16 {v(GWf+4*s+2*q,2)}, v13 offset:{896*s+224*q}")
            E(f"ds_read_b128 {v(GG+4*s,4)}, v6 offset:{32*s}")
        if hf == 0:
            continue
    for s in range(4):
        E(f"s_waitcnt lgkmcnt({12-4*s})")
        if s == 3:
            E("s_cmp_eq_u32 s54, 6"); E("s_cbranch_scc1 L_gk_nobar"); E("s_barrier"); L("L_gk_nobar")
        mfma(D1, GWf+4*s, GX+4*s, D1)
        mfma(D2, GX+4*s, GWf+4*s, D2)
        mfma(D3, GG+4*s, GX+4*s, D3)
    E(f"s_add_u32 s55, s55, {K_STAGE}"); E(f"s_cmp_eq_u32 s55, {K_NST*K_STAGE}"); E("s_cselect_b32 s55, 0, s55")
    for k in range(5): E(f"v_add_u32 v{9+k}, s55, v{1+k}")
    E("v_add_u32 v6, 128, v6")
    E("s_add_u32 s54, s54, 1"); E("s_cmp_lt_u32 s54, 7"); E("s_cbranch_scc1 L_gkloop")
    loops.append(out[b0:])
    stamp(2)
    E("s_lshl_b32 s56, s46, 2"); E("s_add_u32 s56, s56, s45"); E("s_lshl_b32 s57, s56, 7"); E("s_lshl_b32 s56, s56, 12"); E(f"s_add_u32 s57, s57, {WS_G}")
    E("v_and_b32 v17, 31, v0")
    nop(6)
    E("s_cmp_eq_u32 s47, 15"); E("s_cbranch_scc1 L_gk_v")
    E("v_cmp_eq_u32 vcc, 0, v31")
    for r in range(8): E(f"v_cvt_pk_bf16_f32 v{32+r}, v{D1+2*r}, v{D1+2*r+1}")
    E("v_mov_b32 v18, 0x3f80")
    E("v_cndmask_b32 v38, v18, v38, vcc"); E("v_cndmask_b32 v39, 0, v39, vcc")
    E(f"buffer_store_dwordx4 v[32:35], v29, {WS}, s56 offen sc1")
    E(f"buffer_store_dwordx4 v[36:39], v29, {WS}, s56 offen offset:1024 sc1")
    E(f"v_mul_f32 v18, {f32bits(-math.log2(math.e)):#x}, v{D3}")
    E("v_exp_f32 v18, v18"); E("v_lshlrev_b32 v17, 2, v17")
    E("v_add_f32 v18, 1.0, v18"); E("v_rcp_f32 v18, v18")
    E("s_mov_b32 exec_hi, 0")
    E(f"buffer_store_dword v18, v17, {WS}, s57 offen sc1")
    E("s_mov_b64 exec, -1")
    E("s_branch L_gk_pub")
    L("L_gk_v")
    E("v_cmp_gt_u32 vcc, 28, v17"); E("v_cmp_eq_u32 s[66:67], 28, v17")
    E("v_mov_b32 v18, 0x3f803f80"); E("v_mov_b32 v19, 0")
    E("v_cndmask_b32 v18, v19, v18, s[66:67]")
    for r in range(8): E(f"v_cvt_pk_bf16_f32 v{32+r}, v{D2+2*r}, v{D2+2*r+1}")
    for r in range(8): E(f"v_cndmask_b32 v{32+r}, v18, v{32+r}, vcc")
    E(f"buffer_store_dwordx4 v[32:35], v29, {WS}, s56 offen offset:2048 sc1")
    E(f"buffer_store_dwordx4 v[36:39], v29, {WS}, s56 offen offset:3072 sc1")
    L("L_gk_pub")
    E("s_waitcnt vmcnt(0)")
    E(f"v_mov_b32 v25, {L_CNT}"); E("v_mov_b32 v26, 1")
    E("s_mov_b64 exec, 1")
    E("ds_add_rtn_u32 v24, v25, v26 offset:4"); E("s_waitcnt lgkmcnt(0)")
    E("v_readfirstlane_b32 s63, v24"); nop(1)
    E("s_cmp_lg_u32 s63, 3"); E("s_cbranch_scc1 L_gk_nosig")
    E(f"buffer_atomic_add v26, off, {DBG}, 0 sc1")
    L("L_gk_nosig")
    E("s_mov_b64 exec, -1")
    stamp(7)
    E(f"s_mov_b32 s62, {SPIN}")
    L("L_gk_poll")
    E("s_sleep 16")
    E(f"buffer_load_dword v24, off, {DBG}, 0 sc1"); E("s_waitcnt vmcnt(0)")
    E("v_readfirstlane_b32 s63, v24"); E("s_sub_u32 s62, s62, 1"); E("s_cmp_eq_u32 s62, 0"); E("s_cbranch_scc1 L_gd")
    E("s_cmp_lt_u32 s63, 32"); E("s_cbranch_scc1 L_gk_poll")

def g_down():
    L("L_gd")
    stamp(3)
    E("s_cmp_eq_u32 s49, 7"); E("s_cbranch_scc1 L_gend")
    HB = 64; WFR = 176; ACC = 192
    E("s_and_b32 s52, s45, 1"); E("s_lshr_b32 s53, s45, 1")
    E("v_lshrrev_b32 v17, 3, v0"); E("v_mul_u32_u24 v17, 896, v17")
    E("v_bfe_u32 v18, v0, 4, 1"); E("v_lshlrev_b32 v18, 2, v18"); E("v_and_b32 v19, 7, v0"); E("v_xor_b32 v18, v18, v19")
    E("v_lshl_add_u32 v1, v18, 4, v17"); E("v_add_u32 v2, 6144, v1")
    E("s_mul_i32 s54, s45, 28672")
    E("v_lshl_add_u32 v17, v31, 2, v28"); E("v_lshl_add_u32 v17, v17, 7, v27")
    E("v_lshrrev_b32 v18, 1, v28"); E("v_xor_b32 v18, s53, v18"); E("v_lshl_add_u32 v17, v18, 6, v17")
    E("v_add_u32 v3, s54, v17"); E("v_xor_b32 v4, 64, v3")
    E("s_mul_i32 s70, s53, 57344"); E("v_add_u32 v5, s70, v17"); E("v_xor_b32 v6, 64, v5")
    E("s_lshl_b32 s55, s48, 1"); E("s_add_u32 s56, s55, s52")
    E("s_xor_b32 s57, s56, 1")
    E(f"s_add_u32 s70, s54, {WS_H}")
    E("s_mul_i32 s71, s56, 114688"); E("s_add_u32 s71, s71, s70"); E("v_add_u32 v7, s71, v29")
    E("s_mul_i32 s71, s57, 114688"); E("s_add_u32 s71, s71, s70"); E("v_add_u32 v8, s71, v29")
    E("s_mul_i32 s58, s45, 401408"); E("s_lshl_b32 s70, s49, 7"); E("s_add_u32 s58, s58, s70")
    for r in range(ACC, ACC+64): E(f"v_mov_b32 v{r}, 0")
    E(f"v_mov_b32 v25, {L_CNT}")
    lds_spin("L_gd_s1", 0, 4, 25, 24)
    lds_spin("L_gd_s2", 4, 4, 25, 24)
    for s in range(14):
        E(f"s_add_u32 m0, s54, {2048*s}"); E("s_nop 0")
        E(f"buffer_load_dwordx4 v1, {WD}, s58 offen lds"); E(f"buffer_load_dwordx4 v2, {WD}, s58 offen offset:1024 lds")
        E("s_add_u32 s58, s58, 14336")
    E("v_and_b32 v17, 31, v0"); E("v_lshlrev_b32 v17, 2, v17"); E("s_lshl_b32 s70, s56, 7"); E(f"s_add_u32 s70, s70, {WS_G}")
    E(f"buffer_load_dword v9, v17, {WS}, s70 offen sc1")
    E("v_min_u32 v17, 13, v0"); E("v_lshlrev_b32 v17, 7, v17"); E("s_lshr_b32 s70, s48, 1"); E("s_lshl_b32 s70, s70, 11"); E(f"s_add_u32 s70, s70, {WS_HF}")
    E(f"s_mov_b32 s62, {SPIN}")
    L("L_gd_poll")
    E("s_sleep 8")
    E(f"buffer_load_dword v18, v17, {WS}, s70 offen sc1"); E("s_waitcnt vmcnt(0)")
    E("v_cmp_ne_u32 vcc, 1, v18"); E("s_sub_u32 s62, s62, 1"); E("s_cmp_eq_u32 s62, 0"); E("s_cbranch_scc1 L_gd_go")
    E("s_cbranch_vccnz L_gd_poll")
    L("L_gd_go")
    stamp(4)
    E("s_mov_b32 s59, 0")
    for s in range(14):
        E(f"buffer_load_dwordx4 {v(HB+8*s,4)}, v7, {WS}, s59 offen sc1"); E(f"buffer_load_dwordx4 {v(HB+8*s+4,4)}, v8, {WS}, s59 offen sc1")
        E("s_add_u32 s59, s59, 1024")
    def wreads(s):
        st = s & 1
        return [f"ds_read_b64_tr_b16 {v(WFR+8*st+4*ct+2*q,2)}, v{3+ct} offset:{2048*s+1024*q}" for ct in range(2) for q in range(2)]
    for l in wreads(0): E(l)
    E("s_mov_b32 s60, 0")
    E("s_waitcnt vmcnt(26)")
    L("L_gdloop")
    b0 = len(out)
    for s in range(14):
        st = s & 1
        E(f"s_waitcnt vmcnt({24+2*s if s < 13 else 48}) lgkmcnt(0)")
        R = wreads((s+1) % 14)
        for a in range(2):
            for ct in range(2):
                d = ACC + 32*a + 16*ct
                mfma(d, WFR+8*st+4*ct, HB+8*s+4*a, d)
                E(R.pop(0))
        E(f"s_add_u32 m0, s54, {2048*s}")
        E(f"buffer_load_dwordx4 {v(HB+8*s,4)}, v7, {WS}, s59 offen sc1"); E(f"buffer_load_dwordx4 {v(HB+8*s+4,4)}, v8, {WS}, s59 offen sc1")
        E(f"buffer_load_dwordx4 v1, {WD}, s58 offen lds"); E(f"buffer_load_dwordx4 v2, {WD}, s58 offen offset:1024 lds")
        E("s_add_u32 s58, s58, 14336"); E("s_add_u32 s59, s59, 1024")
    E("s_mov_b32 s20, s24"); E("s_mov_b32 s21, s25")
    E("s_mul_i32 s58, s45, 100352"); E("s_add_u32 s22, s58, 107520"); E("s_min_u32 s22, s22, 401408")
    E("s_lshl_b32 s70, s49, 7"); E("s_add_u32 s58, s58, s70")
    E("s_mov_b32 s59, 0x10000000")
    E("s_add_u32 s60, s60, 1"); E("s_cmp_lt_u32 s60, 2"); E("s_cbranch_scc1 L_gdloop")
    loops.append(out[b0:])
    stamp(5)
    E("v_add_u32 v17, s54, v29")
    E("s_xor_b32 s70, s45, 1"); E("s_mul_i32 s70, s70, 28672"); E("v_add_u32 v18, s70, v29")
    E("s_waitcnt vmcnt(0) lgkmcnt(0)")
    for q in range(8): E(f"ds_write_b128 v17, {v(ACC+32+4*q,4)} offset:{16384+1024*q}")
    E("v_sub_f32 v9, 1.0, v9")
    E("s_waitcnt lgkmcnt(0)")
    E("s_barrier")
    for q in range(8): E(f"ds_read_b128 {v(ACC+32+4*q,4)}, v18 offset:{16384+1024*q}")
    E("s_waitcnt lgkmcnt(0)")
    for r in range(32): E(f"v_add_f32 v{ACC+r}, v{ACC+r}, v{ACC+32+r}")
    for r in range(32): E(f"v_mul_f32 v{ACC+r}, v9, v{ACC+r}")
    def wo_reg(e): return 96 + 8*e if e < 12 else 224 + 8*(e-12)
    for e in range(16):
        hh, a = e >> 1, e & 1
        for ct in range(2):
            for q in range(2):
                off = (hh >> 2)*28672 + (28*(hh & 3) + 16*a + 8*q)*128
                E(f"ds_read_b64_tr_b16 {v(wo_reg(e)+4*ct+2*q,2)}, v{5+ct} offset:{off}")
    OF = 32
    E("s_lshl_b32 s70, s56, 4"); E("s_lshl_b32 s71, s53, 3"); E("s_add_u32 s70, s70, s71"); E("s_lshl_b32 s70, s70, 11"); E(f"s_add_u32 s70, s70, {WS_O}")
    E(f"s_mov_b32 s62, {SPIN >> 2}")
    L("L_ge_poll")
    E("s_mov_b32 s71, s70")
    for g in range(4):
        for n in range(4): E(f"buffer_load_dwordx4 {v(OF+16*g+4*n,4)}, v29, {WS}, s71 offen offset:{1024*n} sc1")
        E("s_add_u32 s71, s71, 4096")
    E("v_mov_b32 v17, 0")
    for g in range(4):
        E(f"s_waitcnt vmcnt({12-4*g})")
        for r in range(0, 16, 2): E(f"v_max3_u32 v17, v17, v{OF+16*g+r}, v{OF+16*g+r+1}")
    E("v_cmp_eq_u32 vcc, -1, v17"); E("s_sub_u32 s62, s62, 1"); E("s_cmp_eq_u32 s62, 0"); E("s_cbranch_scc1 L_ge_go")
    E("s_cbranch_vccnz L_ge_poll")
    L("L_ge_go")
    stamp(6)
    E("s_waitcnt lgkmcnt(0)")
    for e in range(16):
        mfma(ACC+16, wo_reg(e)+4, OF+4*e, ACC+16)
        mfma(ACC, wo_reg(e), OF+4*e, ACC)
    E("v_add_u32 v17, s54, v29")
    E("s_xor_b32 s70, s45, 2"); E("s_mul_i32 s70, s70, 28672"); E("v_add_u32 v18, s70, v29")
    E("v_and_b32 v19, 31, v0"); E("v_mul_u32_u24 v19, 896, v19"); E("v_lshl_add_u32 v19, v31, 4, v19")
    E("s_mul_i32 s70, s56, 28672"); E("s_lshl_b32 s71, s49, 7"); E("s_add_u32 s70, s70, s71"); E("s_lshl_b32 s71, s53, 6"); E("s_add_u32 s70, s70, s71")
    for q in range(4): E(f"ds_write_b128 v17, {v(ACC+16+4*q,4)} offset:{24576+1024*q}")
    E("s_waitcnt lgkmcnt(0)")
    E("s_barrier")
    for q in range(4): E(f"ds_read_b128 {v(ACC+16+4*q,4)}, v18 offset:{24576+1024*q}")
    E("s_waitcnt lgkmcnt(0)")
    for r in range(16): E(f"v_add_f32 v{ACC+r}, v{ACC+r}, v{ACC+16+r}")
    for r in range(8): E(f"v_cvt_pk_bf16_f32 v{32+r}, v{ACC+2*r}, v{ACC+2*r+1}")
    nop(2)
    for p in range(2):
        E(f"v_permlane32_swap_b32 v{32+4*p}, v{34+4*p}"); E(f"v_permlane32_swap_b32 v{33+4*p}, v{35+4*p}")
    for p in range(2):
        E(f"buffer_store_dwordx4 {v(32+4*p,4)}, v19, {OUT}, s70 offen offset:{32*p}")
    stamp(7)
    L("L_gend")
    stamp_flush("g")
    L("L_end")
    E("s_endpgm")

loops = []
entry()
a_phaseB("F")
a_phaseB("K")
attention()
g_ffn()
g_kv()
g_down()

errs = hazard.check(out, "main")
for k, b in enumerate(loops): errs += hazard.check(b + b, f"loop{k}")
for e in sorted(set(errs)): print("HAZARD", e, file=sys.stderr)

hdr = open("gated_mix__grouped_kv_mqa__glu_gated_bilinear__prompt.s.ref").read().split("; Override")[0]
print(hdr, end="")
print(f"; @launch grid=(256,1,1) block=(512,1,1) lds={LDS_SIZE}")
print('.amdgcn_target "amdgcn-amd-amdhsa--gfx950"')
print(".text"); print(f".globl {NAME}"); print(".p2align 8"); print(f".type {NAME},@function"); print(f"{NAME}:")
print("\n".join(l for l in out if l is not None))
print('.section .rodata,"a"'); print(".p2align 6"); print(f".amdhsa_kernel {NAME}")
print("  .amdhsa_next_free_vgpr 256\n  .amdhsa_next_free_sgpr 96\n  .amdhsa_accum_offset 256\n  .amdhsa_group_segment_fixed_size 0\n  .amdhsa_kernarg_size 104")
print("  .amdhsa_user_sgpr_count 2\n  .amdhsa_user_sgpr_kernarg_segment_ptr 1\n  .amdhsa_system_sgpr_workgroup_id_x 1\n.end_amdhsa_kernel")
```

```python
import sys, math, struct
import hazard

NAME = "gated_mix__grouped_kv_mqa__glu_gated_bilinear__prompt_kernel"
STAMPS = "--stamps" in sys.argv

WS_KV = 0x000000
WS_G = 0x040000
WS_HF = 0x048000
WS_O = 0x080000
WS_H = 0x300000
WS_END = 0xA00000
WS_ST = 0xA00000
LDS_SIZE = 163840
F_STAGE = 53248; F_NST = 3; F_G = 16384; F_U = 32768; F_Q = 49152
K_W = 122880; K_GW = 151552
L_CNT = 163840 - 64
L_REG = 28672
L_RED = 114688
SPIN = 1 << 17

def f32bits(x): return struct.unpack("<I", struct.pack("<f", x))[0]
QSCALE = f32bits(28 ** -0.5 * math.log2(math.e))
LOG2E = f32bits(math.log2(math.e))

out = []
def E(s): out.append("    " + s)
def L(s): out.append(s + ":")
def C(s): out.append("    ; " + s)
def v(a, n=1): return f"v{a}" if n == 1 else f"v[{a}:{a+n-1}]"
def mfma(d, a, b, c=None):
    E(f"v_mfma_f32_32x32x16_bf16 {v(d,16)}, {v(a,4)}, {v(b,4)}, " + ("0" if c is None else v(c,16)))
def nop(n):
    while n > 0:
        k = min(n, 16); E(f"s_nop {k-1}"); n -= k
nst = [0]
def stamp(n):
    if STAMPS:
        E(f"s_memtime s[{72+2*n}:{73+2*n}]"); E("s_waitcnt lgkmcnt(0)")
def stamp_flush(tag):
    if STAMPS:
        E("s_memrealtime s[92:93]"); E("s_waitcnt lgkmcnt(0)")
        E("s_lshl_b32 s90, s2, 3"); E("s_add_u32 s90, s90, s44"); E("s_lshl_b32 s90, s90, 6"); E(f"s_add_u32 s90, s90, {WS_ST}")
        for q in range(2):
            for e in range(4): E(f"v_mov_b32 v{4+e}, s{72+2*(4*q+e)}")
            E(f"buffer_store_dwordx4 v[4:7], off, s[28:31], s90 offset:{16*q}"); nop(2)
        E("v_mov_b32 v4, s92"); E("v_mov_b32 v5, s88"); E("v_mov_b32 v6, s89"); E("v_mov_b32 v7, s94")
        E("buffer_store_dwordx4 v[4:7], off, s[28:31], s90 offset:32")
        E("s_waitcnt vmcnt(0)")

X, WQ, WG, WU, WD, WO, WS, OUT, DBG, KVW = "s[4:7]", "s[8:11]", "s[12:15]", "s[16:19]", "s[20:23]", "s[24:27]", "s[28:31]", "s[32:35]", "s[36:39]", "s[40:43]"

def srd(base, size):
    E(f"s_mov_b32 s{base+2}, {size}"); E(f"s_mov_b32 s{base+3}, 0x20000")
WS_SIZE = WS_END + (0x20000 if STAMPS else 0)

def entry():
    E("s_cmp_ge_u32 s2, 256"); E("s_cbranch_scc1 L_end")
    E("s_load_dwordx2 s[4:5], s[0:1], 0")
    E("s_load_dwordx2 s[28:29], s[0:1], 96")
    E("s_load_dwordx2 s[36:37], s[0:1], 88")
    if STAMPS:
        E("s_memrealtime s[88:89]"); E("s_getreg_b32 s94, hwreg(HW_REG_HW_ID)"); E("s_memtime s[72:73]")
    E("v_lshrrev_b32 v1, 6, v0"); E("v_and_b32 v0, 63, v0")
    E("v_readfirstlane_b32 s44, v1")
    E("s_and_b32 s68, s2, 7"); E("s_lshr_b32 s69, s2, 3")
    E("s_and_b32 s46, s68, 1"); E("s_lshl_b32 s46, s46, 3"); E("s_and_b32 s70, s69, 7"); E("s_add_u32 s46, s46, s70")
    E("s_lshr_b32 s47, s68, 1"); E("s_lshl_b32 s47, s47, 2"); E("s_lshr_b32 s70, s69, 3"); E("s_add_u32 s47, s47, s70")
    E("s_xor_b32 s47, s47, 15")
    E("s_mov_b32 s50, s47")
    E("s_and_b32 s45, s44, 3")
    srd(4, 1835008); srd(28, WS_SIZE); srd(36, 256)
    E("v_lshlrev_b32 v29, 4, v0")
    E("v_lshrrev_b32 v31, 5, v0")
    E("s_cmp_ge_u32 s44, 4"); E("s_cbranch_scc1 L_g")
    E("s_load_dwordx2 s[8:9], s[0:1], 8")
    srd(8, 401408); srd(40, 65536)
    E("s_mov_b32 s15, 0x20000"); E("s_mov_b32 s19, 0x20000")
    E("s_cmp_ge_u32 s47, 14"); E("s_cbranch_scc1 L_ak")

def lane_pieces():
    E("v_and_b32 v24, 31, v0")
    E("v_bfe_u32 v25, v0, 1, 3")
    E("v_xor_b32 v25, v25, v31"); E("v_lshlrev_b32 v25, 4, v25")
    E("v_lshl_add_u32 v30, v24, 7, v25")
    E("v_bfe_u32 v28, v0, 2, 2")
    E("v_bfe_u32 v24, v0, 4, 1"); E("v_and_b32 v25, 3, v0"); E("v_lshlrev_b32 v25, 3, v25"); E("v_lshl_add_u32 v27, v24, 5, v25")

def g_entry():
    L("L_g")
    E("s_load_dwordx2 s[20:21], s[0:1], 64")
    E("s_load_dwordx2 s[24:25], s[0:1], 32")
    E("s_load_dwordx2 s[32:33], s[0:1], 80")
    srd(20, 1605632); srd(24, 401408); srd(32, 1835008)
    E("s_lshl_b32 s48, s68, 2"); E("s_and_b32 s70, s69, 3"); E("s_add_u32 s48, s48, s70")
    E("s_lshr_b32 s49, s69, 2"); E("s_xor_b32 s49, s49, 7")
    E("s_cmp_ge_u32 s47, 14"); E("s_cbranch_scc1 L_gk")

def x_dma_addrs():
    E("v_lshrrev_b32 v24, 4, v0")
    E("v_and_b32 v25, 7, v0"); E("v_xor_b32 v25, v25, v24"); E("v_lshlrev_b32 v25, 4, v25")
    E("v_lshrrev_b32 v26, 3, v0"); E("v_mul_u32_u24 v26, 896, v26")
    E("v_add_u32 v1, v26, v25")
    E("v_xor_b32 v25, 64, v25"); E("v_add_u32 v2, v26, v25"); E("v_add_u32 v2, 6144, v2")
    E("v_add_u32 v3, 12288, v1"); E("v_add_u32 v4, 12288, v2")
    E("s_lshl_b32 s52, s46, 2"); E("s_add_u32 s52, s52, s45"); E("s_mul_i32 s52, s52, 28672")
    E("s_lshl_b32 s55, s45, 12")

def prefill():
    E("s_lshl_b32 s65, s46, 2"); E("s_add_u32 s65, s65, s45"); E("s_lshl_b32 s65, s65, 4"); E("s_add_u32 s65, s65, s50"); E("s_lshl_b32 s65, s65, 11"); E(f"s_add_u32 s65, s65, {WS_O}")
    for r in range(4): E(f"v_mov_b32 v{32+r}, -1")
    for n in range(2): E(f"buffer_store_dwordx4 v[32:35], v29, {WS}, s65 offen offset:{1024*n} sc1")

def go_poll(label, sleep):
    E(f"s_mov_b32 s62, {SPIN}")
    L(label)
    E(f"buffer_load_dword v24, off, {DBG}, 0 offset:128 sc1"); E("s_waitcnt vmcnt(0)")
    E("v_readfirstlane_b32 s63, v24"); E("s_sub_u32 s62, s62, 1"); E("s_cmp_eq_u32 s62, 0"); E(f"s_cbranch_scc1 {label}_x")
    E("s_cmp_lg_u32 s63, 0"); E(f"s_cbranch_scc1 {label}_x"); E(f"s_sleep {sleep}"); E(f"s_branch {label}")
    L(label + "_x")

ASET = (14, 19, 88)
QACC, XF, WF = 32, 48, 64
PREG = 80
QS = 96; OA = 128; KB = 192; VB = 224
S0, S1 = 48, 64
VG = 93
def a_addr(idx, off):
    return ASET[off >> 16] + idx, off & 0xffff

def q_setup():
    E("v_lshrrev_b32 v25, 2, v0"); E("v_mul_u32_u24 v25, 896, v25"); E("v_and_b32 v26, 3, v0"); E("v_lshl_add_u32 v13, v26, 4, v25")
    E("s_mul_i32 s57, s50, 56"); E("s_and_b32 s54, s57, 0xfffffff0"); E("s_mul_i32 s70, s45, 14336"); E("s_add_u32 s54, s54, s70")
    E("s_and_b32 s57, s57, 8")
    E("s_lshl_b32 s56, s45, 10")

def a_setup2(sets):
    lane_pieces()
    E("v_add_u32 v14, s55, v30")
    for s in range(1, 4): E(f"v_xor_b32 v{14+s}, {32*s}, v14")
    E("v_lshl_add_u32 v25, v31, 3, v28"); E("v_lshl_add_u32 v18, v25, 6, v27"); E("v_add_u32 v18, s57, v18")
    if sets:
        for k in range(5):
            E(f"v_add_u32 v{19+k}, 0x10000, v{14+k}"); E(f"v_add_u32 v{88+k}, 0x20000, v{14+k}")
    E(f"v_mov_b32 v24, {L_CNT}")
    E("v_mov_b32 v94, 0"); E("v_mov_b32 v95, 0"); E("ds_write_b64 v24, v[94:95]"); E("ds_write_b64 v24, v[94:95] offset:8")
    E("s_lshl_b32 s70, s45, 16"); E("s_add_u32 s40, s28, s70"); E("s_addc_u32 s41, s29, 0")

def a_inits():
    R = [f"v_mov_b32 v{r}, 0" for r in list(range(OA, OA+64)) + list(range(PREG, PREG+8)) + list(range(VB+24, VB+32))]
    R += ["v_and_b32 v94, 31, v0", "v_lshlrev_b32 v94, 2, v94"]
    return R

def a_dma_groups(kb):
    st = (kb % F_NST) * F_STAGE
    gs = []
    gs.append([f"s_add_u32 m0, s55, {st}", "s_nop 0"] + [f"buffer_load_dwordx4 v{1+n}, {X}, s52 offen offset:{1024*n} lds" for n in range(4)])
    gs.append([f"s_add_u32 m0, s55, {st+F_G}", "s_add_u32 s52, s52, 128"] + [f"buffer_load_dwordx4 v{5+n}, {WG}, s53 offen offset:{1024*n} lds" for n in range(4)])
    gs.append([f"s_add_u32 m0, s55, {st+F_U}", "s_nop 0"] + [f"buffer_load_dwordx4 v{9+n}, {WU}, s53 offen offset:{1024*n} lds" for n in range(4)])
    gs.append([f"s_add_u32 m0, s56, {st+F_Q}", "s_add_u32 s53, s53, 229376", f"buffer_load_dwordx4 v13, {WQ}, s54 offen lds", "s_add_u32 s54, s54, 57344"])
    return gs

def kv_prologue_loads():
    E("s_lshl_b32 s70, s46, 2"); E("s_add_u32 s70, s70, s45"); E("s_lshl_b32 s70, s70, 7"); E(f"s_add_u32 s70, s70, {WS_G}")
    E(f"buffer_load_dword v{VG}, v94, {WS}, s70 offen sc1")
    E("s_mov_b32 s60, 0")
    for t in range(3):
        tile_loads(t)

def tile_loads(u):
    E(f"buffer_load_dwordx4 {v(KB+8*u,4)}, v29, {KVW}, s60 offen sc1")
    E(f"buffer_load_dwordx4 {v(KB+8*u+4,4)}, v29, {KVW}, s60 offen offset:1024 sc1")
    E(f"buffer_load_dwordx4 {v(VB+8*u,4)}, v29, {KVW}, s60 offen offset:2048 sc1")
    E(f"buffer_load_dwordx4 {v(VB+8*u+4,4)}, v29, {KVW}, s60 offen offset:3072 sc1")
    E("s_add_u32 s60, s60, 4096")

def a_ffn():
    per = 13
    L("L_af")
    E("s_load_dwordx2 s[12:13], s[0:1], 48"); E("s_load_dwordx2 s[16:17], s[0:1], 56")
    E("s_mov_b32 s14, 1605632"); E("s_mov_b32 s18, 1605632")
    x_dma_addrs()
    E("v_and_b32 v25, 15, v0"); E("v_lshlrev_b32 v26, 1, v24"); E("v_xor_b32 v25, v25, v26"); E("v_lshlrev_b32 v25, 4, v25")
    E("v_mul_u32_u24 v26, 3584, v24"); E("v_add_u32 v5, v26, v25"); E("v_xor_b32 v9, 128, v5")
    for n in range(1, 4):
        E(f"v_add_u32 v{5+n}, {13312*n}, v5"); E(f"v_add_u32 v{9+n}, {13312*n}, v9")
    E("s_mul_i32 s53, s45, 57344"); E("s_lshl_b32 s70, s47, 8"); E("s_add_u32 s53, s53, s70")
    q_setup()
    E("s_waitcnt lgkmcnt(0)")
    stamp(7)
    for g in a_dma_groups(0):
        for l in g: E(l)
    a_setup2(True)
    for g in a_dma_groups(1):
        for l in g: E(l)
    issued = 2
    E(f"s_waitcnt vmcnt({per}) lgkmcnt(0)")
    E("s_barrier")
    stamp(1)
    inits = a_inits()
    for kb in range(7):
        st = (kb % F_NST) * F_STAGE
        C(f"--- A block {kb}")
        if kb == 6:
            E("s_cmp_eq_u32 s61, 1"); E("s_cbranch_scc1 L_af_rdy")
            go_poll("L_af_poll", 4)
            kv_prologue_loads()
            L("L_af_rdy")
        for s in range(4):
            r, o = a_addr(s, st); E(f"ds_read_b128 {v(XF+4*s,4)}, v{r} offset:{o}")
            for q in range(2):
                r, o = a_addr(4, st + F_Q + s*1024 + q*256); E(f"ds_read_b64_tr_b16 {v(WF+4*s+2*q,2)}, v{r} offset:{o}")
        groups = a_dma_groups(kb + 2) if kb + 2 <= 6 else []
        if groups: issued += 1
        for s in range(4):
            if s < len(groups):
                for l in groups[s]: E(l)
            E(f"s_waitcnt lgkmcnt({9-3*s})")
            mfma(QACC, WF+4*s, XF+4*s, None if (kb == 0 and s == 0) else QACC)
        if 1 <= kb <= 4:
            n = (len(inits) + 3) // 4 if kb < 4 else len(inits)
            n = min(21, len(inits)) if kb < 4 else len(inits)
            for l in inits[:n]: E(l)
            inits = inits[n:]
        if kb == 5:
            E(f"buffer_load_dword v24, off, {DBG}, 0 offset:128 sc1"); E("s_waitcnt vmcnt(0)")
            E("v_readfirstlane_b32 s63, v24"); E("s_mov_b32 s61, 0"); E("s_cmp_eq_u32 s63, 0"); E("s_cbranch_scc1 L_af_notyet")
            kv_prologue_loads(); E("s_mov_b32 s61, 1")
            L("L_af_notyet")
            E("s_barrier")
        elif kb < 5:
            E(f"s_waitcnt vmcnt({(issued-(kb+2))*per})")
            E("s_barrier")
    E("s_branch L_attn")

def a_kv():
    L("L_ak")
    E("s_load_dwordx2 s[16:17], s[0:1], 72")
    E("s_cmp_eq_u32 s47, 14"); E("s_cbranch_scc1 L_ak_k")
    E("s_load_dwordx2 s[12:13], s[0:1], 24"); E("s_branch L_ak_j")
    L("L_ak_k")
    E("s_load_dwordx2 s[12:13], s[0:1], 16")
    L("L_ak_j")
    E("s_mov_b32 s14, 25088"); E("s_mov_b32 s18, 896")
    E("s_lshl_b32 s55, s45, 12")
    q_setup()
    E("s_waitcnt lgkmcnt(0)")
    stamp(7)
    E(f"s_add_u32 s53, s56, {K_W}"); E("s_mov_b32 s70, s56")
    for n in range(7):
        E("s_mov_b32 m0, s53"); E("s_add_u32 s53, s53, 4096")
        E(f"buffer_load_dwordx4 v29, {WG}, s70 offen lds"); E("s_add_u32 s70, s70, 4096")
    E(f"s_mov_b32 m0, {K_GW}"); E("s_nop 0"); E(f"buffer_load_dwordx4 v29, {WU}, 0 offen lds")
    a_setup2(False)
    E(f"v_add_u32 v18, {K_W}, v18")
    E("s_waitcnt vmcnt(0) lgkmcnt(0)")
    E("s_barrier")
    stamp(1)
    for l in a_inits(): E(l)
    for r in range(QACC, QACC+16): E(f"v_mov_b32 v{r}, 0")
    E("s_barrier")
    E(f"s_add_u32 s53, s56, {K_W}")
    for n in range(7):
        E("s_mov_b32 m0, s53"); E("s_add_u32 s53, s53, 4096")
        E(f"buffer_load_dwordx4 v13, {WQ}, s54 offen lds"); E("s_add_u32 s54, s54, 57344")
    E("s_waitcnt vmcnt(0)")
    E("s_barrier")
    E("s_mov_b32 s59, 7")
    L("L_akloop")
    b0 = len(out)
    for s in range(4):
        E(f"ds_read_b128 {v(XF+4*s,4)}, v{14+s}")
        for q in range(2): E(f"ds_read_b64_tr_b16 {v(WF+4*s+2*q,2)}, v18 offset:{s*1024+q*256}")
    for s in range(4):
        E(f"s_waitcnt lgkmcnt({9-3*s})")
        mfma(QACC, WF+4*s, XF+4*s, QACC)
        E(f"v_add_u32 v{14+s}, 16384, v{14+s}")
    E("v_add_u32 v18, 4096, v18")
    E("s_sub_u32 s59, s59, 1"); E("s_cmp_lg_u32 s59, 0"); E("s_cbranch_scc1 L_akloop")
    loops.append(out[b0:])
    go_poll("L_ak_poll", 8)
    kv_prologue_loads()

def lds_spin(label, off, target, areg, treg):
    E(f"s_mov_b32 s62, {SPIN}")
    L(label)
    E(f"ds_read_b32 v{treg}, v{areg} offset:{off}"); E("s_waitcnt lgkmcnt(0)")
    E(f"v_readfirstlane_b32 s63, v{treg}"); E("s_sub_u32 s62, s62, 1"); E("s_cmp_eq_u32 s62, 0"); E(f"s_cbranch_scc1 {label}_x")
    E(f"s_cmp_lt_u32 s63, {target}"); E(f"s_cbranch_scc1 {label}")
    L(label + "_x")

def period(u, s, first_wait=True):
    tau = 4*u + s
    Sc = (S0, S1)[tau & 1]; Sn = (S0, S1)[(tau+1) & 1]
    un, sn = ((tau+1)//4) % 4, (tau+1) % 4
    up, sp = ((tau-1)//4) % 4, (tau-1) % 4
    if s == 3: E("s_waitcnt vmcnt(8)")
    ex = [f"v_exp_f32 v{Sc+r}, v{Sc+r}" for r in range(16)]
    cv = [f"v_cvt_pk_bf16_f32 v{PREG+r}, v{Sc+2*r}, v{Sc+2*r+1}" for r in range(8)]
    mfma(Sn, KB+8*un, QS+8*sn)
    for l in ex[0:3]: E(l)
    mfma(Sn, KB+8*un+4, QS+8*sn+4, Sn)
    for l in ex[3:6]: E(l)
    mfma(OA+16*sp, VB+8*up, PREG, OA+16*sp)
    for l in ex[6:9]: E(l)
    mfma(OA+16*sp, VB+8*up+4, PREG+4, OA+16*sp)
    for l in ex[9:16]: E(l)
    if s == 1: tile_loads((u+3) % 4)
    for l in cv: E(l)

def attention():
    L("L_attn")
    stamp(2)
    C("Q epilogue -> slot 3")
    Q3 = QS + 24
    E(f"s_mov_b32 s64, {QSCALE}")
    E("v_cmp_eq_u32 vcc, 0, v31")
    nop(10)
    for r in range(16): E(f"v_mul_f32 v{QACC+r}, s64, v{QACC+r}")
    for r in range(8): E(f"v_cvt_pk_bf16_f32 v{Q3+r}, v{QACC+2*r}, v{QACC+2*r+1}")
    E(f"v_cndmask_b32 v{Q3+6}, 0, v{Q3+6}, vcc"); E(f"v_cndmask_b32 v{Q3+7}, 0, v{Q3+7}, vcc")
    E("s_lshl_b32 s65, s45, 11"); E(f"s_add_u32 s65, s65, {L_RED}"); E("v_add_u32 v24, s65, v29")
    E(f"ds_write_b128 v24, {v(Q3,4)}")
    E("s_waitcnt vmcnt(10)")
    mfma(S0, KB, Q3); mfma(S0, KB+4, Q3+4, S0)
    for s in range(3):
        E(f"s_add_u32 s65, s45, {1+s}"); E("s_and_b32 s65, s65, 3"); E("s_lshl_b32 s65, s65, 11"); E(f"s_add_u32 s65, s65, {L_RED}")
        E(f"v_add_u32 v{1+s}, s65, v29")
    E(f"v_mov_b32 v25, {L_CNT}"); E("v_mov_b32 v26, 1")
    E(f"v_max3_f32 v4, v{S0}, v{S0+1}, v{S0+2}")
    for r in range(3, 15, 2): E(f"v_max3_f32 v4, v4, v{S0+r}, v{S0+r+1}")
    E(f"v_max_f32 v4, v4, v{S0+15}")
    E("v_mov_b32 v5, v4"); nop(2)
    E("v_permlane32_swap_b32 v4, v5"); nop(1)
    E("v_max_f32 v4, v4, v5")
    E("v_cvt_pk_bf16_f32 v4, -v4, 0")
    E(f"v_cndmask_b32 v{Q3+6}, v4, v{Q3+6}, vcc")
    E(f"ds_write_b128 v24, {v(Q3+4,4)} offset:1024")
    E("s_waitcnt lgkmcnt(0)")
    E("s_mov_b64 s[66:67], exec"); E("s_mov_b64 exec, 1"); E("ds_add_u32 v25, v26"); E("s_mov_b64 exec, s[66:67]")
    lds_spin("L_qspin", 0, 4, 25, 5)
    for s in range(3):
        E(f"ds_read_b128 {v(QS+8*s,4)}, v{1+s}"); E(f"ds_read_b128 {v(QS+8*s+4,4)}, v{1+s} offset:1024")
    E("s_waitcnt lgkmcnt(4)")
    mfma(S0, KB, QS); mfma(S0, KB+4, QS+4, S0)
    E("s_waitcnt vmcnt(8) lgkmcnt(0)")
    E("s_mov_b32 s59, 4")
    nop(10)
    stamp(3)
    out.append(".p2align 6")
    L("L_aloop")
    b0 = len(out)
    for u in range(4):
        for s in range(4): period(u, s)
    E("s_sub_u32 s59, s59, 1"); E("s_cmp_lg_u32 s59, 0"); E("s_cbranch_scc1 L_aloop")
    loops.append(out[b0:])
    stamp(4)
    O3 = OA + 48
    mfma(O3, VB+24, PREG, O3); mfma(O3, VB+28, PREG+4, O3)
    for s in range(3):
        E(f"s_add_u32 s65, s45, {1+s}"); E("s_and_b32 s65, s65, 3"); E("s_mul_i32 s65, s65, 12288"); E(f"s_add_u32 s65, s65, {L_RED+4096*s}")
        E(f"v_add_u32 v{1+s}, s65, v29")
        for q in range(4): E(f"ds_write_b128 v{1+s}, {v(OA+16*s+4*q,4)} offset:{1024*q}")
    E("s_mul_i32 s65, s45, 12288"); E(f"s_add_u32 s65, s65, {L_RED}"); E("v_add_u32 v4, s65, v29")
    E("s_waitcnt vmcnt(0) lgkmcnt(0)")
    E("s_barrier")
    stamp(5)
    for q in range(12): E(f"ds_read_b128 {v(KB+4*q,4)}, v4 offset:{1024*q}")
    E("s_lshl_b32 s65, s46, 2"); E("s_add_u32 s65, s65, s45"); E("s_lshl_b32 s65, s65, 4"); E("s_add_u32 s65, s65, s50"); E("s_lshl_b32 s65, s65, 11"); E(f"s_add_u32 s65, s65, {WS_O}")
    for s in range(3):
        E(f"s_waitcnt lgkmcnt({8-4*s})")
        for r in range(16): E(f"v_add_f32 v{O3+r}, v{O3+r}, v{KB+16*s+r}")
    E(f"v_mov_b32 v4, v{O3+12}"); E(f"v_mov_b32 v5, v{O3+12}")
    E(f"s_mov_b32 s64, {f32bits(2.0**-20)}")
    E(f"v_mul_f32 v6, s64, v{O3+12}")
    E("v_permlane32_swap_b32 v4, v5")
    for r in range(16):
        E(f"v_fma_f32 v6, |v{O3+r}|, s64, v6")
    E(f"v_mov_b32 v7, {f32bits(2.0**100)}"); E(f"v_mov_b32 v8, {f32bits(2.0**-60)}"); E("v_mov_b32 v9, 0x7f800000")
    E("v_cmp_ge_f32 s[66:67], v7, v5"); E("v_cmp_le_f32 s[68:69], v8, v5"); E("v_cmp_gt_f32 vcc, v9, v6")
    nop(1)
    E("s_and_b64 s[66:67], s[66:67], s[68:69]"); E("s_and_b64 s[66:67], s[66:67], vcc")
    E("s_cmp_eq_u64 s[66:67], -1"); E("s_cbranch_scc0 L_fb")
    L("L_norm")
    E("v_rcp_f32 v5, v5"); E("v_cmp_eq_u32 vcc, 0, v31")
    E(f"v_mul_f32 v5, v{VG}, v5")
    for r in range(16): E(f"v_mul_f32 v{O3+r}, v5, v{O3+r}")
    for r in range(8): E(f"v_cvt_pk_bf16_f32 v{PREG+r}, v{O3+2*r}, v{O3+2*r+1}")
    E(f"v_cndmask_b32 v{PREG+6}, 0, v{PREG+6}, vcc"); E(f"v_cndmask_b32 v{PREG+7}, 0, v{PREG+7}, vcc")
    for r in range(8): E(f"v_min_u32 v{PREG+r}, -2, v{PREG+r}")
    E(f"buffer_store_dwordx4 {v(PREG,4)}, v29, {WS}, s65 offen sc1")
    E(f"buffer_store_dwordx4 {v(PREG+4,4)}, v29, {WS}, s65 offen offset:1024 sc1")
    stamp(6)
    stamp_flush("a")
    E("s_endpgm")
    L("L_fb")
    E("v_cmp_eq_u32 vcc, 0, v31"); E("v_mov_b32 v4, 0xff800000"); E("s_mov_b32 s60, 0")
    E(f"v_cndmask_b32 v{Q3+6}, 0, v{Q3+6}, vcc")
    L("L_fb1")
    E(f"buffer_load_dwordx4 {v(KB,4)}, v29, {WS}, s60 offen sc1"); E(f"buffer_load_dwordx4 {v(KB+4,4)}, v29, {WS}, s60 offen offset:1024 sc1")
    E("s_waitcnt vmcnt(0)")
    mfma(S0, KB, Q3); mfma(S0, KB+4, Q3+4, S0); nop(12)
    for r in range(0, 16, 2): E(f"v_max3_f32 v4, v4, v{S0+r}, v{S0+r+1}")
    E("s_add_u32 s60, s60, 4096"); E("s_cmp_lt_u32 s60, 0x40000"); E("s_cbranch_scc1 L_fb1")
    E("v_mov_b32 v5, v4"); nop(2); E("v_permlane32_swap_b32 v4, v5"); nop(1); E("v_max_f32 v4, v4, v5")
    for r in range(16): E(f"v_mov_b32 v{O3+r}, 0")
    E("s_mov_b32 s60, 0")
    L("L_fb2")
    E(f"buffer_load_dwordx4 {v(KB,4)}, v29, {WS}, s60 offen sc1"); E(f"buffer_load_dwordx4 {v(KB+4,4)}, v29, {WS}, s60 offen offset:1024 sc1")
    E(f"buffer_load_dwordx4 {v(VB,4)}, v29, {WS}, s60 offen offset:2048 sc1"); E(f"buffer_load_dwordx4 {v(VB+4,4)}, v29, {WS}, s60 offen offset:3072 sc1")
    E("s_waitcnt vmcnt(0)")
    mfma(S0, KB, Q3); mfma(S0, KB+4, Q3+4, S0); nop(12)
    for r in range(16): E(f"v_sub_f32 v{S0+r}, v{S0+r}, v4")
    for r in range(16): E(f"v_exp_f32 v{S0+r}, v{S0+r}")
    nop(1)
    for r in range(8): E(f"v_cvt_pk_bf16_f32 v{PREG+r}, v{S0+2*r}, v{S0+2*r+1}")
    nop(2)
    mfma(O3, VB, PREG, O3); mfma(O3, VB+4, PREG+4, O3)
    E("s_add_u32 s60, s60, 4096"); E("s_cmp_lt_u32 s60, 0x40000"); E("s_cbranch_scc1 L_fb2")
    nop(12)
    E(f"v_mov_b32 v4, v{O3+12}"); E(f"v_mov_b32 v5, v{O3+12}"); nop(2)
    E("v_permlane32_swap_b32 v4, v5"); nop(1)
    E("s_branch L_norm")

def g_ffn():
    L("L_gf")
    ACC = 128; GX = 64; GW_ = 80
    lane_pieces()
    E("s_and_b32 s52, s45, 1"); E("s_lshr_b32 s53, s45, 1")
    E("s_lshl_b32 s70, s52, 13"); E("v_add_u32 v1, s70, v30")
    for s in range(1, 4): E(f"v_xor_b32 v{1+s}, {32*s}, v1")
    E("v_bfe_u32 v17, v0, 4, 1")
    E("v_lshl_add_u32 v18, v17, 2, v28")
    E("s_lshl_b32 s70, s53, 2"); E("v_xor_b32 v18, s70, v18"); E("v_lshlrev_b32 v18, 5, v18")
    E("v_and_b32 v19, 3, v0"); E("v_lshl_add_u32 v18, v19, 3, v18")
    E("v_lshl_add_u32 v19, v31, 3, v28"); E("v_lshl_add_u32 v18, v19, 8, v18")
    E("v_lshl_add_u32 v18, v17, 14, v18"); E(f"v_add_u32 v5, {F_G}, v18")
    for t in range(1, 4): E(f"v_xor_b32 v{5+t}, {32*t}, v5")
    for k in range(8): E(f"v_mov_b32 v{9+k}, v{1+k}")
    for r in range(ACC, ACC+128): E(f"v_mov_b32 v{r}, 0")
    E("s_mov_b32 s54, 0"); E("s_mov_b32 s55, 0")
    E("s_waitcnt lgkmcnt(0)")
    prefill()
    E("s_barrier")
    stamp(1)
    def reads(s):
        st = s & 1
        R = []
        R.append(f"ds_read_b128 {v(GX+8*st,4)}, v{9+s}")
        for q in range(2): R.append(f"ds_read_b64_tr_b16 {v(GW_+16*st+2*q,2)}, v13 offset:{4096*s+1024*q}")
        R.append(f"ds_read_b128 {v(GX+8*st+4,4)}, v{9+s} offset:4096")
        for t in range(1, 4):
            for q in range(2): R.append(f"ds_read_b64_tr_b16 {v(GW_+16*st+4*t+2*q,2)}, v{13+t} offset:{4096*s+1024*q}")
        return R
    for l in reads(0): E(l)
    out.append(".p2align 6")
    L("L_gfloop")
    b0 = len(out)
    for s in range(4):
        st = s & 1
        E("s_waitcnt lgkmcnt(0)")
        R = reads((s+1) % 4)
        n = 0
        for t in range(4):
            for a in range(2):
                d = ACC + 64*a + 16*t
                mfma(d, GW_+16*st+4*t, GX+8*st+4*a, d)
                if s == 3 and n == 0:
                    E("s_cmp_eq_u32 s54, 6"); E("s_cbranch_scc1 L_gf_nobar"); E("s_barrier"); L("L_gf_nobar")
                for l in R[:2]: E(l)
                R = R[2:]
                if s == 2 and n == 5:
                    E(f"s_add_u32 s55, s55, {F_STAGE}"); E(f"s_cmp_eq_u32 s55, {3*F_STAGE}"); E("s_cselect_b32 s55, 0, s55")
                if s == 2 and n >= 6:
                    for k in range(4*(n-6), 4*(n-6)+4): E(f"v_add_u32 v{9+k}, s55, v{1+k}")
                n += 1
    E("s_add_u32 s54, s54, 1"); E("s_cmp_lt_u32 s54, 7"); E("s_cbranch_scc1 L_gfloop")
    loops.append(out[b0:])
    stamp(2)
    E("s_setprio 3")
    E("s_lshl_b32 s56, s46, 2"); E("s_lshl_b32 s70, s52, 1"); E("s_add_u32 s56, s56, s70"); E("s_mul_i32 s56, s56, 114688")
    E("s_lshl_b32 s70, s47, 13"); E("s_add_u32 s56, s56, s70"); E("s_lshl_b32 s70, s53, 12"); E("s_add_u32 s56, s56, s70"); E(f"s_add_u32 s56, s56, {WS_H}")
    E("s_add_u32 s57, s56, 114688")
    E("s_waitcnt lgkmcnt(0)")
    for t in range(4):
        for a in range(2):
            d = ACC + 64*a + 16*t
            for r in range(8): E(f"v_mul_f32 v{d+r}, v{d+r}, v{d+8+r}")
            for r in range(4): E(f"v_cvt_pk_bf16_f32 v{d+8+r}, v{d+2*r}, v{d+2*r+1}")
            E(f"buffer_store_dwordx4 {v(d+8,4)}, v29, {WS}, s{56+a} offen offset:{1024*t} sc1")
    E("s_branch L_gpub")

def g_kv():
    L("L_gk")
    D1, D2, D3 = 128, 144, 160
    GX = 64; GWf = 80; GG = 96
    x_dma_addrs()
    E("s_waitcnt lgkmcnt(0)")
    for kb in range(7):
        E(f"s_add_u32 m0, s55, {16384*kb}"); E("s_nop 0")
        for n in range(4): E(f"buffer_load_dwordx4 v{1+n}, {X}, s52 offen offset:{1024*n} lds")
        E("s_add_u32 s52, s52, 128")
    lane_pieces()
    E("v_add_u32 v9, s55, v30")
    for s in range(1, 4): E(f"v_xor_b32 v{9+s}, {32*s}, v9")
    E("v_lshl_add_u32 v17, v31, 3, v28"); E("v_mul_u32_u24 v17, 56, v17"); E("v_add_u32 v13, v17, v27"); E(f"v_add_u32 v13, {K_W}, v13")
    E("v_lshlrev_b32 v6, 4, v31"); E(f"v_add_u32 v6, {K_GW}, v6")
    for r in range(D1, D1+48): E(f"v_mov_b32 v{r}, 0")
    E("s_mov_b32 s54, 0"); E("s_mov_b32 s59, 0x10000000")
    E("s_barrier")
    stamp(1)
    L("L_gkloop")
    b0 = len(out)
    E("s_waitcnt vmcnt(24)")
    for s in range(4):
        E(f"ds_read_b128 {v(GX+4*s,4)}, v{9+s}")
        for q in range(2): E(f"ds_read_b64_tr_b16 {v(GWf+4*s+2*q,2)}, v13 offset:{896*s+224*q}")
        E(f"ds_read_b128 {v(GG+4*s,4)}, v6 offset:{32*s}")
    for n in range(4): E(f"buffer_load_dword v40, off, {X}, s59")
    for s in range(4):
        E(f"s_waitcnt lgkmcnt({12-4*s})")
        mfma(D1, GWf+4*s, GX+4*s, D1)
        mfma(D2, GX+4*s, GWf+4*s, D2)
        mfma(D3, GG+4*s, GX+4*s, D3)
        E(f"v_add_u32 v{9+s}, 16384, v{9+s}")
    E("v_add_u32 v13, 3584, v13"); E("v_add_u32 v6, 128, v6")
    E("s_add_u32 s54, s54, 1"); E("s_cmp_lt_u32 s54, 7"); E("s_cbranch_scc1 L_gkloop")
    loops.append(out[b0:])
    E("s_barrier")
    stamp(2)
    E("s_lshl_b32 s56, s46, 2"); E("s_add_u32 s56, s56, s45"); E("s_lshl_b32 s57, s56, 7"); E("s_lshl_b32 s56, s56, 12"); E(f"s_add_u32 s57, s57, {WS_G}")
    E("v_and_b32 v17, 31, v0")
    nop(6)
    E("s_cmp_eq_u32 s47, 15"); E("s_cbranch_scc1 L_gk_v")
    E("v_cmp_eq_u32 vcc, 0, v31")
    for r in range(8): E(f"v_cvt_pk_bf16_f32 v{32+r}, v{D1+2*r}, v{D1+2*r+1}")
    E("v_mov_b32 v18, 0x3f80")
    E("v_cndmask_b32 v38, v18, v38, vcc"); E("v_cndmask_b32 v39, 0, v39, vcc")
    E(f"buffer_store_dwordx4 v[32:35], v29, {WS}, s56 offen sc1")
    E(f"buffer_store_dwordx4 v[36:39], v29, {WS}, s56 offen offset:1024 sc1")
    E(f"v_mul_f32 v18, {f32bits(-math.log2(math.e)):#x}, v{D3}")
    E("v_exp_f32 v18, v18"); E("v_lshlrev_b32 v17, 2, v17")
    E("v_add_f32 v18, 1.0, v18"); E("v_rcp_f32 v18, v18")
    E("s_mov_b32 exec_hi, 0")
    E(f"buffer_store_dword v18, v17, {WS}, s57 offen sc1")
    E("s_mov_b64 exec, -1")
    E("s_branch L_gk_pub")
    L("L_gk_v")
    E("v_cmp_gt_u32 vcc, 28, v17"); E("v_cmp_eq_u32 s[66:67], 28, v17")
    E("v_mov_b32 v18, 0x3f803f80"); E("v_mov_b32 v19, 0")
    E("v_cndmask_b32 v18, v19, v18, s[66:67]")
    for r in range(8): E(f"v_cvt_pk_bf16_f32 v{32+r}, v{D2+2*r}, v{D2+2*r+1}")
    for r in range(8): E(f"v_cndmask_b32 v{32+r}, v18, v{32+r}, vcc")
    E(f"buffer_store_dwordx4 v[32:35], v29, {WS}, s56 offen offset:2048 sc1")
    E(f"buffer_store_dwordx4 v[36:39], v29, {WS}, s56 offen offset:3072 sc1")
    L("L_gk_pub")
    E("s_lshl_b32 s70, s47, 2"); E("s_add_u32 s70, s70, s45"); E("s_cmp_lg_u32 s70, 56"); E("s_cbranch_scc1 L_gk_nz")
    E("v_lshlrev_b32 v41, 7, v0"); E("v_mov_b32 v42, 0"); E("s_lshl_b32 s70, s46, 11"); E(f"s_add_u32 s70, s70, {WS_HF}")
    E("s_mov_b32 exec_lo, 0xffff"); E("s_mov_b32 exec_hi, 0")
    E(f"buffer_store_dword v42, v41, {WS}, s70 offen sc1")
    E("s_mov_b64 exec, -1")
    L("L_gk_nz")
    E(f"v_mov_b32 v25, {L_CNT}"); E("v_mov_b32 v26, 1")
    E("s_waitcnt vmcnt(0)")
    E("s_mov_b64 exec, 1")
    E("ds_add_rtn_u32 v24, v25, v26 offset:8"); E("s_waitcnt lgkmcnt(0)")
    E("v_readfirstlane_b32 s63, v24"); nop(1)
    E("s_cmp_lg_u32 s63, 3"); E("s_cbranch_scc1 L_gk_nosig")
    E("v_mov_b32 v24, 1")
    E(f"buffer_atomic_add v24, off, {DBG}, 0 sc0 sc1"); E("s_waitcnt vmcnt(0)")
    E("v_readfirstlane_b32 s63, v24"); nop(1)
    E("s_cmp_lg_u32 s63, 31"); E("s_cbranch_scc1 L_gk_nosig")
    E(f"buffer_store_dword v26, off, {DBG}, 0 offset:128 sc1")
    L("L_gk_nosig")
    E("s_mov_b64 exec, -1")
    stamp(5)
    prefill()
    E("s_barrier")
    L("L_gpub")
    go_poll("L_g_poll", 8)
    E(f"v_mov_b32 v25, {L_CNT}"); E("v_mov_b32 v26, 1")
    E("s_mov_b64 exec, 1")
    E("ds_add_rtn_u32 v24, v25, v26 offset:4"); E("s_waitcnt lgkmcnt(0)")
    E("v_readfirstlane_b32 s63, v24")
    E("s_lshl_b32 s70, s46, 4"); E("s_add_u32 s70, s70, s47"); E("s_lshl_b32 s70, s70, 7"); E(f"s_add_u32 s70, s70, {WS_HF}")
    E("s_cmp_lg_u32 s63, 3"); E("s_cbranch_scc1 L_g_nosig")
    E(f"buffer_store_dword v26, off, {WS}, s70 sc1")
    L("L_g_nosig")
    E("s_mov_b64 exec, -1")
    E("s_setprio 3")

def g_down():
    L("L_gd")
    stamp(3)
    E("s_cmp_eq_u32 s49, 7"); E("s_cbranch_scc1 L_gend")
    HB = 64; WFR = 176; ACC = 192
    E("s_and_b32 s52, s45, 1"); E("s_lshr_b32 s53, s45, 1")
    E("v_lshrrev_b32 v17, 3, v0"); E("v_mul_u32_u24 v17, 896, v17")
    E("v_bfe_u32 v18, v0, 4, 1"); E("v_lshlrev_b32 v18, 2, v18"); E("v_and_b32 v19, 7, v0"); E("v_xor_b32 v18, v18, v19")
    E("v_lshl_add_u32 v1, v18, 4, v17"); E("v_add_u32 v2, 6144, v1")
    E("s_mul_i32 s54, s45, 28672")
    E("v_lshl_add_u32 v17, v31, 2, v28"); E("v_lshl_add_u32 v17, v17, 7, v27")
    E("v_lshrrev_b32 v18, 1, v28"); E("v_xor_b32 v18, s53, v18"); E("v_lshl_add_u32 v17, v18, 6, v17")
    E("v_add_u32 v3, s54, v17"); E("v_xor_b32 v4, 64, v3")
    E("s_mul_i32 s70, s53, 57344"); E("v_add_u32 v5, s70, v17"); E("v_xor_b32 v6, 64, v5")
    E("s_lshl_b32 s55, s48, 1"); E("s_add_u32 s56, s55, s52")
    E("s_xor_b32 s57, s56, 1")
    E(f"s_add_u32 s70, s54, {WS_H}")
    E("s_mul_i32 s71, s56, 114688"); E("s_add_u32 s71, s71, s70"); E("v_add_u32 v7, s71, v29")
    E("s_mul_i32 s71, s57, 114688"); E("s_add_u32 s71, s71, s70"); E("v_add_u32 v8, s71, v29")
    E("s_mul_i32 s58, s45, 401408"); E("s_lshl_b32 s70, s49, 7"); E("s_add_u32 s58, s58, s70")
    for r in range(ACC, ACC+64): E(f"v_mov_b32 v{r}, 0")
    E(f"v_mov_b32 v25, {L_CNT}")
    lds_spin("L_gd_s1", 0, 4, 25, 24)
    lds_spin("L_gd_s2", 4, 4, 25, 24)
    for s in range(14):
        E(f"s_add_u32 m0, s54, {2048*s}"); E("s_nop 0")
        E(f"buffer_load_dwordx4 v1, {WD}, s58 offen lds"); E(f"buffer_load_dwordx4 v2, {WD}, s58 offen offset:1024 lds")
        E("s_add_u32 s58, s58, 14336")
    E("v_and_b32 v17, 31, v0"); E("v_lshlrev_b32 v17, 2, v17"); E("s_lshl_b32 s70, s56, 7"); E(f"s_add_u32 s70, s70, {WS_G}")
    E(f"buffer_load_dword v9, v17, {WS}, s70 offen sc1")
    E("v_min_u32 v17, 15, v0"); E("v_lshlrev_b32 v17, 7, v17"); E("s_lshr_b32 s70, s48, 1"); E("s_lshl_b32 s70, s70, 11"); E(f"s_add_u32 s70, s70, {WS_HF}")
    E(f"s_mov_b32 s62, {SPIN}")
    L("L_gd_poll")
    E("s_sleep 8")
    E(f"buffer_load_dword v18, v17, {WS}, s70 offen sc1"); E("s_waitcnt vmcnt(0)")
    E("v_cmp_ne_u32 vcc, 1, v18"); E("s_sub_u32 s62, s62, 1"); E("s_cmp_eq_u32 s62, 0"); E("s_cbranch_scc1 L_gd_go")
    E("s_cbranch_vccnz L_gd_poll")
    L("L_gd_go")
    stamp(4)
    E("s_mov_b32 s59, 0")
    for s in range(14):
        E(f"buffer_load_dwordx4 {v(HB+8*s,4)}, v7, {WS}, s59 offen sc1"); E(f"buffer_load_dwordx4 {v(HB+8*s+4,4)}, v8, {WS}, s59 offen sc1")
        E("s_add_u32 s59, s59, 1024")
    def wreads(s):
        st = s & 1
        return [f"ds_read_b64_tr_b16 {v(WFR+8*st+4*ct+2*q,2)}, v{3+ct} offset:{2048*s+1024*q}" for ct in range(2) for q in range(2)]
    for l in wreads(0): E(l)
    E("s_mov_b32 s60, 0")
    E("s_waitcnt vmcnt(26)")
    L("L_gdloop")
    b0 = len(out)
    for s in range(14):
        st = s & 1
        E(f"s_waitcnt vmcnt({24+2*s if s < 13 else 48}) lgkmcnt(0)")
        R = wreads((s+1) % 14)
        for a in range(2):
            for ct in range(2):
                d = ACC + 32*a + 16*ct
                mfma(d, WFR+8*st+4*ct, HB+8*s+4*a, d)
                E(R.pop(0))
        E(f"s_add_u32 m0, s54, {2048*s}")
        E(f"buffer_load_dwordx4 {v(HB+8*s,4)}, v7, {WS}, s59 offen sc1"); E(f"buffer_load_dwordx4 {v(HB+8*s+4,4)}, v8, {WS}, s59 offen sc1")
        E(f"buffer_load_dwordx4 v1, {WD}, s58 offen lds"); E(f"buffer_load_dwordx4 v2, {WD}, s58 offen offset:1024 lds")
        E("s_add_u32 s58, s58, 14336"); E("s_add_u32 s59, s59, 1024")
    E("s_mov_b32 s20, s24"); E("s_mov_b32 s21, s25")
    E("s_mul_i32 s58, s45, 100352"); E("s_add_u32 s22, s58, 107520"); E("s_min_u32 s22, s22, 401408")
    E("s_lshl_b32 s70, s49, 7"); E("s_add_u32 s58, s58, s70")
    E("s_mov_b32 s59, 0x10000000")
    E("s_add_u32 s60, s60, 1"); E("s_cmp_lt_u32 s60, 2"); E("s_cbranch_scc1 L_gdloop")
    loops.append(out[b0:])
    stamp(5)
    E("v_add_u32 v17, s54, v29")
    E("s_xor_b32 s70, s45, 1"); E("s_mul_i32 s70, s70, 28672"); E("v_add_u32 v18, s70, v29")
    E("s_waitcnt vmcnt(0) lgkmcnt(0)")
    for q in range(8): E(f"ds_write_b128 v17, {v(ACC+32+4*q,4)} offset:{16384+1024*q}")
    E("v_sub_f32 v9, 1.0, v9")
    E("s_waitcnt lgkmcnt(0)")
    E("s_barrier")
    for q in range(8): E(f"ds_read_b128 {v(ACC+32+4*q,4)}, v18 offset:{16384+1024*q}")
    E("s_waitcnt lgkmcnt(0)")
    for r in range(32): E(f"v_add_f32 v{ACC+r}, v{ACC+r}, v{ACC+32+r}")
    for r in range(32): E(f"v_mul_f32 v{ACC+r}, v9, v{ACC+r}")
    def wo_reg(e): return 96 + 8*e if e < 12 else 224 + 8*(e-12)
    for e in range(16):
        hh, a = e >> 1, e & 1
        for ct in range(2):
            for q in range(2):
                off = (hh >> 2)*28672 + (28*(hh & 3) + 16*a + 8*q)*128
                E(f"ds_read_b64_tr_b16 {v(wo_reg(e)+4*ct+2*q,2)}, v{5+ct} offset:{off}")
    OF = 32
    E("s_lshl_b32 s70, s56, 4"); E("s_lshl_b32 s71, s53, 3"); E("s_add_u32 s70, s70, s71"); E("s_lshl_b32 s70, s70, 11"); E(f"s_add_u32 s70, s70, {WS_O}")
    E(f"s_mov_b32 s62, {SPIN >> 2}")
    L("L_ge_poll")
    E("s_mov_b32 s71, s70")
    for g in range(4):
        for n in range(4): E(f"buffer_load_dwordx4 {v(OF+16*g+4*n,4)}, v29, {WS}, s71 offen offset:{1024*n} sc1")
        E("s_add_u32 s71, s71, 4096")
    E("v_mov_b32 v17, 0")
    for g in range(4):
        E(f"s_waitcnt vmcnt({12-4*g})")
        for r in range(0, 16, 2): E(f"v_max3_u32 v17, v17, v{OF+16*g+r}, v{OF+16*g+r+1}")
    E("v_cmp_eq_u32 vcc, -1, v17"); E("s_sub_u32 s62, s62, 1"); E("s_cmp_eq_u32 s62, 0"); E("s_cbranch_scc1 L_ge_go")
    E("s_cbranch_vccnz L_ge_poll")
    L("L_ge_go")
    stamp(6)
    E("s_waitcnt lgkmcnt(0)")
    for e in range(16):
        mfma(ACC+16, wo_reg(e)+4, OF+4*e, ACC+16)
        mfma(ACC, wo_reg(e), OF+4*e, ACC)
    E("v_add_u32 v17, s54, v29")
    E("s_xor_b32 s70, s45, 2"); E("s_mul_i32 s70, s70, 28672"); E("v_add_u32 v18, s70, v29")
    E("v_and_b32 v19, 31, v0"); E("v_mul_u32_u24 v19, 896, v19"); E("v_lshl_add_u32 v19, v31, 4, v19")
    E("s_mul_i32 s70, s56, 28672"); E("s_lshl_b32 s71, s49, 7"); E("s_add_u32 s70, s70, s71"); E("s_lshl_b32 s71, s53, 6"); E("s_add_u32 s70, s70, s71")
    for q in range(4): E(f"ds_write_b128 v17, {v(ACC+16+4*q,4)} offset:{24576+1024*q}")
    E("s_waitcnt lgkmcnt(0)")
    E("s_barrier")
    for q in range(4): E(f"ds_read_b128 {v(ACC+16+4*q,4)}, v18 offset:{24576+1024*q}")
    E("s_waitcnt lgkmcnt(0)")
    for r in range(16): E(f"v_add_f32 v{ACC+r}, v{ACC+r}, v{ACC+16+r}")
    for r in range(8): E(f"v_cvt_pk_bf16_f32 v{32+r}, v{ACC+2*r}, v{ACC+2*r+1}")
    nop(2)
    for p in range(2):
        E(f"v_permlane32_swap_b32 v{32+4*p}, v{34+4*p}"); E(f"v_permlane32_swap_b32 v{33+4*p}, v{35+4*p}")
    for p in range(2):
        E(f"buffer_store_dwordx4 {v(32+4*p,4)}, v19, {OUT}, s70 offen offset:{32*p}")
    stamp(7)
    L("L_gend")
    stamp_flush("g")
    L("L_end")
    E("s_endpgm")

loops = []
entry()
a_ffn()
a_kv()
attention()
g_entry()
g_ffn()
g_kv()
g_down()

errs = hazard.check(out, "main")
for k, b in enumerate(loops): errs += hazard.check(b + b, f"loop{k}")
for e in sorted(set(errs)): print("HAZARD", e, file=sys.stderr)

hdr = open("gated_mix__grouped_kv_mqa__glu_gated_bilinear__prompt.s.ref").read().split("; Override")[0]
print(hdr, end="")
print(f"; @launch grid=(256,1,1) block=(512,1,1) lds={LDS_SIZE}")
print('.amdgcn_target "amdgcn-amd-amdhsa--gfx950"')
print(".text"); print(f".globl {NAME}"); print(".p2align 8"); print(f".type {NAME},@function"); print(f"{NAME}:")
print("\n".join(l for l in out if l is not None))
print('.section .rodata,"a"'); print(".p2align 6"); print(f".amdhsa_kernel {NAME}")
print("  .amdhsa_next_free_vgpr 256\n  .amdhsa_next_free_sgpr 96\n  .amdhsa_accum_offset 256\n  .amdhsa_group_segment_fixed_size 0\n  .amdhsa_kernarg_size 104")
print("  .amdhsa_user_sgpr_count 2\n  .amdhsa_user_sgpr_kernarg_segment_ptr 1\n  .amdhsa_system_sgpr_workgroup_id_x 1\n.end_amdhsa_kernel")
```

```python
import sys, math, struct
import hazard

NAME = "gated_mix__grouped_kv_mqa__glu_gated_bilinear__prompt_kernel"
STAMPS = "--stamps" in sys.argv
CLK = "s_memrealtime" if "--rt" in sys.argv else "s_memtime"

WS_KV = 0x000000
WS_G = 0x040000
WS_HF = 0x048000
WS_O = 0x080000
WS_H = 0x300000
WS_END = 0xA00000
WS_ST = 0xA00000
LDS_SIZE = 163840
F_STAGE = 53248; F_NST = 3; F_G = 16384; F_U = 32768; F_Q = 49152
K_W = 122880; K_GW = 151552
L_CNT = 163840 - 32
QC, GC, KC, RC = 4, 8, 12, 20
L_REG = 28672
L_RED = 114688
SPIN = 1 << 17

def f32bits(x): return struct.unpack("<I", struct.pack("<f", x))[0]
QSCALE = f32bits(28 ** -0.5 * math.log2(math.e))
LOG2E = f32bits(math.log2(math.e))

out = []
def E(s): out.append("    " + s)
def L(s): out.append(s + ":")
def C(s): out.append("    ; " + s)
def v(a, n=1): return f"v{a}" if n == 1 else f"v[{a}:{a+n-1}]"
def mfma(d, a, b, c=None):
    E(f"v_mfma_f32_32x32x16_bf16 {v(d,16)}, {v(a,4)}, {v(b,4)}, " + ("0" if c is None else v(c,16)))
def nop(n):
    while n > 0:
        k = min(n, 16); E(f"s_nop {k-1}"); n -= k
nst = [0]
def stamp(n):
    if STAMPS:
        E(f"{CLK} s[{72+2*n}:{73+2*n}]"); E("s_waitcnt lgkmcnt(0)")
def stamp_flush(tag):
    if STAMPS:
        E("s_memrealtime s[92:93]"); E("s_waitcnt lgkmcnt(0)")
        E("s_lshl_b32 s90, s2, 3"); E("s_add_u32 s90, s90, s44"); E("s_lshl_b32 s90, s90, 6"); E(f"s_add_u32 s90, s90, {WS_ST}")
        for q in range(2):
            for e in range(4): E(f"v_mov_b32 v{4+e}, s{72+2*(4*q+e)}")
            E(f"buffer_store_dwordx4 v[4:7], off, s[28:31], s90 offset:{16*q}"); nop(2)
        E("v_mov_b32 v4, s92"); E("v_mov_b32 v5, s88"); E("v_mov_b32 v6, s89"); E("v_mov_b32 v7, s94")
        E("buffer_store_dwordx4 v[4:7], off, s[28:31], s90 offset:32")
        E("s_waitcnt vmcnt(0)")

X, WQ, WG, WU, WD, WO, WS, OUT, DBG, KVW = "s[4:7]", "s[8:11]", "s[12:15]", "s[16:19]", "s[20:23]", "s[24:27]", "s[28:31]", "s[32:35]", "s[36:39]", "s[40:43]"

def srd(base, size):
    E(f"s_mov_b32 s{base+2}, {size}"); E(f"s_mov_b32 s{base+3}, 0x20000")
WS_SIZE = WS_END + (0x20000 if STAMPS else 0)

def entry():
    E("s_cmp_ge_u32 s2, 256"); E("s_cbranch_scc1 L_end")
    E("s_load_dwordx2 s[4:5], s[0:1], 0")
    E("s_load_dwordx2 s[28:29], s[0:1], 96")
    E("s_load_dwordx2 s[36:37], s[0:1], 88")
    if STAMPS:
        E("s_memrealtime s[88:89]"); E("s_getreg_b32 s94, hwreg(HW_REG_HW_ID)"); E(f"{CLK} s[72:73]")
    E("v_lshrrev_b32 v1, 6, v0"); E("v_and_b32 v0, 63, v0")
    E("v_readfirstlane_b32 s44, v1")
    E("s_and_b32 s68, s2, 7"); E("s_lshr_b32 s69, s2, 3")
    E("s_and_b32 s46, s68, 1"); E("s_lshl_b32 s46, s46, 3"); E("s_and_b32 s70, s69, 7"); E("s_add_u32 s46, s46, s70")
    E("s_lshr_b32 s47, s68, 1"); E("s_lshl_b32 s47, s47, 2"); E("s_lshr_b32 s70, s69, 3"); E("s_add_u32 s47, s47, s70")
    E("s_xor_b32 s47, s47, 15")
    E("s_mov_b32 s50, s47")
    E("s_and_b32 s45, s44, 3")
    srd(4, 1835008); srd(28, WS_SIZE); srd(36, 256)
    E("v_lshlrev_b32 v29, 4, v0")
    E("v_lshrrev_b32 v31, 5, v0")
    E("s_cmp_ge_u32 s44, 4"); E("s_cbranch_scc1 L_g")
    E("s_load_dwordx2 s[8:9], s[0:1], 8")
    srd(8, 401408); srd(40, 65536)
    E("s_mov_b32 s15, 0x20000"); E("s_mov_b32 s19, 0x20000")
    E("s_cmp_ge_u32 s47, 14"); E("s_cbranch_scc1 L_ak")

def lane_pieces():
    E("v_and_b32 v24, 31, v0")
    E("v_bfe_u32 v25, v0, 1, 3")
    E("v_xor_b32 v25, v25, v31"); E("v_lshlrev_b32 v25, 4, v25")
    E("v_lshl_add_u32 v30, v24, 7, v25")
    E("v_bfe_u32 v28, v0, 2, 2")
    E("v_bfe_u32 v24, v0, 4, 1"); E("v_and_b32 v25, 3, v0"); E("v_lshlrev_b32 v25, 3, v25"); E("v_lshl_add_u32 v27, v24, 5, v25")

def g_entry():
    L("L_g")
    E("s_load_dwordx2 s[20:21], s[0:1], 64")
    E("s_load_dwordx2 s[24:25], s[0:1], 32")
    E("s_load_dwordx2 s[32:33], s[0:1], 80")
    srd(20, 1605632); srd(24, 401408); srd(32, 1835008)
    E("s_lshl_b32 s48, s68, 2"); E("s_and_b32 s70, s69, 3"); E("s_add_u32 s48, s48, s70")
    E("s_lshr_b32 s49, s69, 2"); E("s_xor_b32 s49, s49, 7")
    E("s_cmp_ge_u32 s47, 14"); E("s_cbranch_scc1 L_gk")

def x_dma_addrs(rg="s45"):
    E("v_lshrrev_b32 v24, 4, v0")
    E("v_and_b32 v25, 7, v0"); E("v_xor_b32 v25, v25, v24"); E("v_lshlrev_b32 v25, 4, v25")
    E("v_lshrrev_b32 v26, 3, v0"); E("v_mul_u32_u24 v26, 896, v26")
    E("v_add_u32 v1, v26, v25")
    E("v_xor_b32 v25, 64, v25"); E("v_add_u32 v2, v26, v25"); E("v_add_u32 v2, 6144, v2")
    E("v_add_u32 v3, 12288, v1"); E("v_add_u32 v4, 12288, v2")
    E("s_lshl_b32 s52, s46, 2"); E(f"s_add_u32 s52, s52, {rg}"); E("s_mul_i32 s52, s52, 28672")
    E("s_lshl_b32 s55, s45, 12")

def prefill():
    E("s_lshl_b32 s65, s46, 2"); E("s_add_u32 s65, s65, s45"); E("s_lshl_b32 s65, s65, 4"); E("s_add_u32 s65, s65, s50"); E("s_lshl_b32 s65, s65, 11"); E(f"s_add_u32 s65, s65, {WS_O}")
    for r in range(4): E(f"v_mov_b32 v{32+r}, -1")
    for n in range(2): E(f"buffer_store_dwordx4 v[32:35], v29, {WS}, s65 offen offset:{1024*n} sc1")

def go_poll(label, sleep):
    E(f"s_mov_b32 s62, {SPIN}")
    L(label)
    E(f"buffer_load_dword v24, off, {DBG}, 0 offset:128 sc1"); E("s_waitcnt vmcnt(0)")
    E("v_readfirstlane_b32 s63, v24"); E("s_sub_u32 s62, s62, 1"); E("s_cmp_eq_u32 s62, 0"); E(f"s_cbranch_scc1 {label}_x")
    E("s_cmp_lg_u32 s63, 0"); E(f"s_cbranch_scc1 {label}_x"); E(f"s_sleep {sleep}"); E(f"s_branch {label}")
    L(label + "_x")

ASET = (14, 19, 88)
QACC, XF, WF = 32, 48, 64
PREG = 80
QS = 96; OA = 128; KB = 192; VB = 224
S0, S1 = 48, 64
VG = 93
def a_addr(idx, off):
    return ASET[off >> 16] + idx, off & 0xffff

def q_setup(rg="s45"):
    E("v_lshrrev_b32 v25, 2, v0"); E("v_mul_u32_u24 v25, 896, v25"); E("v_and_b32 v26, 3, v0"); E("v_lshl_add_u32 v13, v26, 4, v25")
    E("s_mul_i32 s57, s50, 56"); E("s_and_b32 s54, s57, 0xfffffff0"); E(f"s_mul_i32 s70, {rg}, 14336"); E("s_add_u32 s54, s54, s70")
    E("s_and_b32 s57, s57, 8")
    E(f"s_lshl_b32 s56, {rg}, 10")

def a_setup2(sets):
    lane_pieces()
    E("v_add_u32 v14, s55, v30")
    for s in range(1, 4): E(f"v_xor_b32 v{14+s}, {32*s}, v14")
    E("v_lshl_add_u32 v25, v31, 3, v28"); E("v_lshl_add_u32 v18, v25, 6, v27"); E("v_add_u32 v18, s57, v18")
    if sets:
        for k in range(5):
            E(f"v_add_u32 v{19+k}, 0x10000, v{14+k}"); E(f"v_add_u32 v{88+k}, 0x20000, v{14+k}")
    E(f"v_mov_b32 v24, {L_CNT}")
    E("v_mov_b32 v94, 0"); E("v_mov_b32 v95, 0")
    for o in (0, 8, 16): E(f"ds_write_b64 v24, v[94:95] offset:{o}")
    E("s_lshl_b32 s70, s45, 16"); E("s_add_u32 s40, s28, s70"); E("s_addc_u32 s41, s29, 0")

def a_inits():
    R = [f"v_mov_b32 v{r}, 0" for r in list(range(OA, OA+64)) + list(range(PREG, PREG+8)) + list(range(VB+24, VB+32))]
    R += ["v_and_b32 v94, 31, v0", "v_lshlrev_b32 v94, 2, v94"]
    return R

def a_dma_groups(pos):
    st = (pos % F_NST) * F_STAGE
    kb = [f"s_xor_b32 s64, s58, {pos}"] if pos < 6 else ["s_mov_b32 s64, 6"]
    gs = []
    gs.append(kb + [f"s_add_u32 m0, s59, {st}", "s_lshl_b32 s65, s64, 7", "s_add_u32 s65, s65, s52"] + [f"buffer_load_dwordx4 v{1+n}, {X}, s65 offen offset:{1024*n} lds" for n in range(4)])
    gs.append([f"s_add_u32 m0, s51, {st+F_G}", "s_mul_i32 s65, s64, 229376", "s_add_u32 s65, s65, s53"] + [f"buffer_load_dwordx4 v{5+n}, {WG}, s65 offen offset:{1024*n} lds" for n in range(4)])
    gs.append([f"s_add_u32 m0, s51, {st+F_U}", "s_mul_i32 s66, s64, 57344"] + [f"buffer_load_dwordx4 v{9+n}, {WU}, s65 offen offset:{1024*n} lds" for n in range(4)])
    gs.append([f"s_add_u32 m0, s56, {st+F_Q}", "s_add_u32 s66, s66, s54", f"buffer_load_dwordx4 v13, {WQ}, s66 offen lds"])
    return gs

def kv_prologue_loads():
    E("s_lshl_b32 s70, s69, 2"); E("s_add_u32 s70, s70, s45"); E("s_lshl_b32 s70, s70, 11"); E("v_lshlrev_b32 v24, 7, v0")
    E("s_mov_b32 exec_lo, 0xffff"); E("s_mov_b32 exec_hi, 0")
    E(f"buffer_load_dword v95, v24, {WS}, s70 offen sc1")
    E("s_mov_b64 exec, -1")
    E("s_lshl_b32 s70, s46, 2"); E("s_add_u32 s70, s70, s45"); E("s_lshl_b32 s70, s70, 7"); E(f"s_add_u32 s70, s70, {WS_G}")
    E(f"buffer_load_dword v{VG}, v94, {WS}, s70 offen sc1")
    E("s_mov_b32 s60, 0")
    for t in range(3):
        tile_loads(t)

def tile_loads(u):
    E(f"buffer_load_dwordx4 {v(KB+8*u,4)}, v29, {KVW}, s60 offen sc1")
    E(f"buffer_load_dwordx4 {v(KB+8*u+4,4)}, v29, {KVW}, s60 offen offset:1024 sc1")
    E(f"buffer_load_dwordx4 {v(VB+8*u,4)}, v29, {KVW}, s60 offen offset:2048 sc1")
    E(f"buffer_load_dwordx4 {v(VB+8*u+4,4)}, v29, {KVW}, s60 offen offset:3072 sc1")
    E("s_add_u32 s60, s60, 4096")

def a_ffn():
    per = 13
    L("L_af")
    E("s_load_dwordx2 s[12:13], s[0:1], 48"); E("s_load_dwordx2 s[16:17], s[0:1], 56")
    E("s_mov_b32 s14, 1605632"); E("s_mov_b32 s18, 1605632")
    E("s_lshr_b32 s58, s69, 2"); E("s_lshr_b32 s70, s69, 3"); E("s_xor_b32 s58, s58, s70"); E("s_and_b32 s58, s58, 1")
    E("s_add_u32 s60, s45, s69"); E("s_and_b32 s60, s60, 3")
    E("s_and_b32 s70, s70, 2"); E("s_add_u32 s61, s45, s70"); E("s_and_b32 s61, s61, 3")
    E("s_lshl_b32 s59, s61, 12"); E("s_lshl_b32 s51, s60, 12")
    x_dma_addrs("s61")
    E("v_and_b32 v25, 15, v0"); E("v_lshlrev_b32 v26, 1, v24"); E("v_xor_b32 v25, v25, v26"); E("v_lshlrev_b32 v25, 4, v25")
    E("v_mul_u32_u24 v26, 3584, v24"); E("v_add_u32 v5, v26, v25"); E("v_xor_b32 v9, 128, v5")
    for n in range(1, 4):
        E(f"v_add_u32 v{5+n}, {13312*n}, v5"); E(f"v_add_u32 v{9+n}, {13312*n}, v9")
    E("s_mul_i32 s53, s60, 57344"); E("s_lshl_b32 s70, s47, 8"); E("s_add_u32 s53, s53, s70")
    q_setup("s60")
    E("s_waitcnt lgkmcnt(0)")
    stamp(7)
    for g in a_dma_groups(0):
        for l in g: E(l)
    E("s_barrier")
    for g in a_dma_groups(1):
        for l in g: E(l)
    a_setup2(True)
    issued = 2
    E(f"s_waitcnt vmcnt({per}) lgkmcnt(0)")
    E("s_barrier")
    stamp(1)
    inits = a_inits()
    for kb in range(7):
        st = (kb % F_NST) * F_STAGE
        C(f"--- A block {kb}")
        if kb == 6:
            E("s_cmp_eq_u32 s61, 1"); E("s_cbranch_scc1 L_af_rdy")
            go_poll("L_af_poll", 4)
            kv_prologue_loads()
            L("L_af_rdy")
        for s in range(4):
            r, o = a_addr(s, st); E(f"ds_read_b128 {v(XF+4*s,4)}, v{r} offset:{o}")
            for q in range(2):
                r, o = a_addr(4, st + F_Q + s*1024 + q*256); E(f"ds_read_b64_tr_b16 {v(WF+4*s+2*q,2)}, v{r} offset:{o}")
        groups = a_dma_groups(kb + 2) if kb + 2 <= 6 else []
        if groups: issued += 1
        for s in range(4):
            if s < len(groups):
                for l in groups[s]: E(l)
            E(f"s_waitcnt lgkmcnt({9-3*s})")
            mfma(QACC, WF+4*s, XF+4*s, None if (kb == 0 and s == 0) else QACC)
        if 1 <= kb <= 4:
            n = (len(inits) + 3) // 4 if kb < 4 else len(inits)
            n = min(21, len(inits)) if kb < 4 else len(inits)
            for l in inits[:n]: E(l)
            inits = inits[n:]
        if kb == 5:
            E(f"buffer_load_dword v24, off, {DBG}, 0 sc1"); E("s_waitcnt vmcnt(0)")
            E("v_readfirstlane_b32 s63, v24"); E("s_mov_b32 s61, 0"); E("s_cmp_lt_u32 s63, 32"); E("s_cbranch_scc1 L_af_notyet")
            kv_prologue_loads(); E("s_mov_b32 s61, 1")
            L("L_af_notyet")
            E("s_barrier")
        elif kb < 5:
            E(f"s_waitcnt vmcnt({(issued-(kb+2))*per})")
            E("s_barrier")
    E("s_branch L_attn")

def a_kv():
    L("L_ak")
    E("s_load_dwordx2 s[16:17], s[0:1], 72")
    E("s_cmp_eq_u32 s47, 14"); E("s_cbranch_scc1 L_ak_k")
    E("s_load_dwordx2 s[12:13], s[0:1], 24"); E("s_branch L_ak_j")
    L("L_ak_k")
    E("s_load_dwordx2 s[12:13], s[0:1], 16")
    L("L_ak_j")
    E("s_mov_b32 s14, 25088"); E("s_mov_b32 s18, 896")
    E("s_lshl_b32 s55, s45, 12")
    q_setup()
    E("s_waitcnt lgkmcnt(0)")
    stamp(7)
    E(f"s_add_u32 s53, s56, {K_W}"); E("s_mov_b32 s70, s56")
    for n in range(7):
        E("s_mov_b32 m0, s53"); E("s_add_u32 s53, s53, 4096")
        E(f"buffer_load_dwordx4 v29, {WG}, s70 offen lds"); E("s_add_u32 s70, s70, 4096")
    E(f"s_mov_b32 m0, {K_GW}"); E("s_nop 0"); E(f"buffer_load_dwordx4 v29, {WU}, 0 offen lds")
    a_setup2(False)
    E(f"v_add_u32 v18, {K_W}, v18")
    E("s_waitcnt vmcnt(0) lgkmcnt(0)")
    E("s_barrier")
    stamp(1)
    for l in a_inits(): E(l)
    for r in range(QACC, QACC+16): E(f"v_mov_b32 v{r}, 0")
    E("s_barrier")
    E(f"s_add_u32 s53, s56, {K_W}")
    for n in range(7):
        E("s_mov_b32 m0, s53"); E("s_add_u32 s53, s53, 4096")
        E(f"buffer_load_dwordx4 v13, {WQ}, s54 offen lds"); E("s_add_u32 s54, s54, 57344")
    E("s_waitcnt vmcnt(0)")
    E("s_barrier")
    E("s_mov_b32 s59, 7")
    L("L_akloop")
    b0 = len(out)
    for s in range(4):
        E(f"ds_read_b128 {v(XF+4*s,4)}, v{14+s}")
        for q in range(2): E(f"ds_read_b64_tr_b16 {v(WF+4*s+2*q,2)}, v18 offset:{s*1024+q*256}")
    for s in range(4):
        E(f"s_waitcnt lgkmcnt({9-3*s})")
        mfma(QACC, WF+4*s, XF+4*s, QACC)
        E(f"v_add_u32 v{14+s}, 16384, v{14+s}")
    E("v_add_u32 v18, 4096, v18")
    E("s_sub_u32 s59, s59, 1"); E("s_cmp_lg_u32 s59, 0"); E("s_cbranch_scc1 L_akloop")
    loops.append(out[b0:])
    go_poll("L_ak_poll", 8)
    kv_prologue_loads()

def lds_spin(label, off, target, areg, treg, sleep=0):
    E(f"s_mov_b32 s62, {SPIN*8}")
    L(label)
    E(f"ds_read_b32 v{treg}, v{areg} offset:{off}"); E("s_waitcnt lgkmcnt(0)")
    E(f"v_readfirstlane_b32 s63, v{treg}"); E("s_sub_u32 s62, s62, 1"); E("s_cmp_eq_u32 s62, 0"); E(f"s_cbranch_scc1 {label}_x")
    if sleep:
        E(f"s_cmp_ge_u32 s63, {target}"); E(f"s_cbranch_scc1 {label}_x"); E(f"s_sleep {sleep}"); E(f"s_branch {label}")
    else:
        E(f"s_cmp_lt_u32 s63, {target}"); E(f"s_cbranch_scc1 {label}")
    L(label + "_x")

def period(u, s, first_wait=True):
    tau = 4*u + s
    Sc = (S0, S1)[tau & 1]; Sn = (S0, S1)[(tau+1) & 1]
    un, sn = ((tau+1)//4) % 4, (tau+1) % 4
    up, sp = ((tau-1)//4) % 4, (tau-1) % 4
    if s == 3: E("s_waitcnt vmcnt(8)")
    ex = [f"v_exp_f32 v{Sc+r}, v{Sc+r}" for r in range(16)]
    cv = [f"v_cvt_pk_bf16_f32 v{PREG+r}, v{Sc+2*r}, v{Sc+2*r+1}" for r in range(8)]
    mfma(Sn, KB+8*un, QS+8*sn)
    for l in ex[0:3]: E(l)
    mfma(Sn, KB+8*un+4, QS+8*sn+4, Sn)
    for l in ex[3:6]: E(l)
    mfma(OA+16*sp, VB+8*up, PREG, OA+16*sp)
    for l in ex[6:9]: E(l)
    mfma(OA+16*sp, VB+8*up+4, PREG+4, OA+16*sp)
    for l in ex[9:16]: E(l)
    if s == 1: tile_loads((u+3) % 4)
    for l in cv: E(l)

def attention():
    L("L_attn")
    stamp(2)
    E("s_setprio 1")
    C("Q epilogue -> slot 3")
    Q3 = QS + 24
    E(f"s_mov_b32 s64, {QSCALE}")
    E("v_cmp_eq_u32 vcc, 0, v31")
    nop(10)
    for r in range(16): E(f"v_mul_f32 v{QACC+r}, s64, v{QACC+r}")
    for r in range(8): E(f"v_cvt_pk_bf16_f32 v{Q3+r}, v{QACC+2*r}, v{QACC+2*r+1}")
    E(f"v_cndmask_b32 v{Q3+6}, 0, v{Q3+6}, vcc"); E(f"v_cndmask_b32 v{Q3+7}, 0, v{Q3+7}, vcc")
    E("s_lshl_b32 s65, s45, 11"); E(f"s_add_u32 s65, s65, {L_RED}"); E("v_add_u32 v24, s65, v29")
    E(f"ds_write_b128 v24, {v(Q3,4)}")
    E("s_waitcnt vmcnt(10)")
    mfma(S0, KB, Q3); mfma(S0, KB+4, Q3+4, S0)
    for s in range(3):
        E(f"s_add_u32 s65, s45, {1+s}"); E("s_and_b32 s65, s65, 3"); E("s_lshl_b32 s65, s65, 11"); E(f"s_add_u32 s65, s65, {L_RED}")
        E(f"v_add_u32 v{1+s}, s65, v29")
    E(f"v_mov_b32 v25, {L_CNT}"); E("v_mov_b32 v26, 1")
    E(f"v_max3_f32 v4, v{S0}, v{S0+1}, v{S0+2}")
    for r in range(3, 15, 2): E(f"v_max3_f32 v4, v4, v{S0+r}, v{S0+r+1}")
    E(f"v_max_f32 v4, v4, v{S0+15}")
    E("v_mov_b32 v5, v4"); nop(2)
    E("v_permlane32_swap_b32 v4, v5"); nop(1)
    E("v_max_f32 v4, v4, v5")
    E("v_cvt_pk_bf16_f32 v4, -v4, 0")
    E(f"v_cndmask_b32 v{Q3+6}, v4, v{Q3+6}, vcc")
    E(f"ds_write_b128 v24, {v(Q3+4,4)} offset:1024")
    E("s_waitcnt lgkmcnt(0)")
    E("s_mov_b64 s[66:67], exec"); E("s_mov_b64 exec, 1"); E(f"ds_add_u32 v25, v26 offset:{QC}"); E("s_mov_b64 exec, s[66:67]")
    lds_spin("L_qspin", QC, 4, 25, 5)
    for s in range(3):
        E(f"ds_read_b128 {v(QS+8*s,4)}, v{1+s}"); E(f"ds_read_b128 {v(QS+8*s+4,4)}, v{1+s} offset:1024")
    E("s_waitcnt lgkmcnt(4)")
    mfma(S0, KB, QS); mfma(S0, KB+4, QS+4, S0)
    E("s_waitcnt vmcnt(8) lgkmcnt(0)")
    E("s_mov_b32 s59, 4")
    nop(10)
    stamp(3)
    out.append(".p2align 6")
    L("L_aloop")
    b0 = len(out)
    for u in range(4):
        for s in range(4): period(u, s)
    E("s_sub_u32 s59, s59, 1"); E("s_cmp_lg_u32 s59, 0"); E("s_cbranch_scc1 L_aloop")
    loops.append(out[b0:])
    stamp(4)
    O3 = OA + 48
    mfma(O3, VB+24, PREG, O3); mfma(O3, VB+28, PREG+4, O3)
    for s in range(3):
        E(f"s_add_u32 s65, s45, {1+s}"); E("s_and_b32 s65, s65, 3"); E("s_mul_i32 s65, s65, 12288"); E(f"s_add_u32 s65, s65, {L_RED+4096*s}")
        E(f"v_add_u32 v{1+s}, s65, v29")
        for q in range(4):
            if s == 2 and q == 3:
                E(f"ds_write_b32 v{1+s}, v{OA+16*s+12} offset:3072")
                E("s_mov_b32 exec_hi, 0")
            E(f"ds_write_b128 v{1+s}, {v(OA+16*s+4*q,4)} offset:{1024*q}")
    E("s_mul_i32 s65, s45, 12288"); E(f"s_add_u32 s65, s65, {L_RED}")
    E("s_mov_b32 exec_lo, 1")
    E("s_waitcnt vmcnt(0) lgkmcnt(0)")
    E(f"ds_add_u32 v25, v26 offset:{RC}"); E("s_mov_b64 exec, -1")
    E("v_add_u32 v4, s65, v29")
    lds_spin("L_rspin", RC, 4, 25, 5)
    stamp(5)
    for q in range(12): E(f"ds_read_b128 {v(KB+4*q,4)}, v4 offset:{1024*q}")
    E("s_lshl_b32 s65, s46, 2"); E("s_add_u32 s65, s65, s45"); E("s_lshl_b32 s65, s65, 4"); E("s_add_u32 s65, s65, s50"); E("s_lshl_b32 s65, s65, 11"); E(f"s_add_u32 s65, s65, {WS_O}")
    for s in range(3):
        E(f"s_waitcnt lgkmcnt({8-4*s})")
        for r in range(16): E(f"v_add_f32 v{O3+r}, v{O3+r}, v{KB+16*s+r}")
    E("v_cmp_eq_u32 vcc, 0, v31")
    E(f"v_mov_b32 v4, v{O3+12}"); E(f"v_mov_b32 v5, v{O3+12}")
    for r in (13, 14, 15): E(f"v_cndmask_b32 v{O3+r}, 0, v{O3+r}, vcc")
    E(f"s_mov_b32 s64, {f32bits(2.0**-20)}")
    E(f"v_mul_f32 v6, s64, v{O3+12}")
    E("v_permlane32_swap_b32 v4, v5")
    for r in range(16):
        E(f"v_fma_f32 v6, |v{O3+r}|, s64, v6")
    E(f"v_mov_b32 v7, {f32bits(2.0**100)}"); E(f"v_mov_b32 v8, {f32bits(2.0**-60)}"); E("v_mov_b32 v9, 0x7f800000")
    E("v_cmp_ge_f32 s[66:67], v7, v5"); E("v_cmp_le_f32 s[68:69], v8, v5"); E("v_cmp_gt_f32 vcc, v9, v6")
    nop(1)
    E("s_and_b64 s[66:67], s[66:67], s[68:69]"); E("s_and_b64 s[66:67], s[66:67], vcc")
    E("s_cmp_eq_u64 s[66:67], -1"); E("s_cbranch_scc0 L_fb")
    L("L_norm")
    E("v_rcp_f32 v5, v5"); E("v_cmp_eq_u32 vcc, 0, v31")
    E(f"v_mul_f32 v5, v{VG}, v5")
    for r in range(16): E(f"v_mul_f32 v{O3+r}, v5, v{O3+r}")
    for r in range(8): E(f"v_cvt_pk_bf16_f32 v{PREG+r}, v{O3+2*r}, v{O3+2*r+1}")
    E(f"v_cndmask_b32 v{PREG+6}, 0, v{PREG+6}, vcc"); E(f"v_cndmask_b32 v{PREG+7}, 0, v{PREG+7}, vcc")
    for r in range(8): E(f"v_min_u32 v{PREG+r}, -2, v{PREG+r}")
    E(f"buffer_store_dwordx4 {v(PREG,4)}, v29, {WS}, s65 offen sc1")
    E(f"buffer_store_dwordx4 {v(PREG+4,4)}, v29, {WS}, s65 offen offset:1024 sc1")
    stamp(6)
    stamp_flush("a")
    E("s_endpgm")
    L("L_fb")
    E("v_cmp_eq_u32 vcc, 0, v31"); E("v_mov_b32 v4, 0xff800000"); E("s_mov_b32 s60, 0")
    E(f"v_cndmask_b32 v{Q3+6}, 0, v{Q3+6}, vcc")
    L("L_fb1")
    E(f"buffer_load_dwordx4 {v(KB,4)}, v29, {WS}, s60 offen sc1"); E(f"buffer_load_dwordx4 {v(KB+4,4)}, v29, {WS}, s60 offen offset:1024 sc1")
    E("s_waitcnt vmcnt(0)")
    mfma(S0, KB, Q3); mfma(S0, KB+4, Q3+4, S0); nop(12)
    for r in range(0, 16, 2): E(f"v_max3_f32 v4, v4, v{S0+r}, v{S0+r+1}")
    E("s_add_u32 s60, s60, 4096"); E("s_cmp_lt_u32 s60, 0x40000"); E("s_cbranch_scc1 L_fb1")
    E("v_mov_b32 v5, v4"); nop(2); E("v_permlane32_swap_b32 v4, v5"); nop(1); E("v_max_f32 v4, v4, v5")
    for r in range(16): E(f"v_mov_b32 v{O3+r}, 0")
    E("s_mov_b32 s60, 0")
    L("L_fb2")
    E(f"buffer_load_dwordx4 {v(KB,4)}, v29, {WS}, s60 offen sc1"); E(f"buffer_load_dwordx4 {v(KB+4,4)}, v29, {WS}, s60 offen offset:1024 sc1")
    E(f"buffer_load_dwordx4 {v(VB,4)}, v29, {WS}, s60 offen offset:2048 sc1"); E(f"buffer_load_dwordx4 {v(VB+4,4)}, v29, {WS}, s60 offen offset:3072 sc1")
    E("s_waitcnt vmcnt(0)")
    mfma(S0, KB, Q3); mfma(S0, KB+4, Q3+4, S0); nop(12)
    for r in range(16): E(f"v_sub_f32 v{S0+r}, v{S0+r}, v4")
    for r in range(16): E(f"v_exp_f32 v{S0+r}, v{S0+r}")
    nop(1)
    for r in range(8): E(f"v_cvt_pk_bf16_f32 v{PREG+r}, v{S0+2*r}, v{S0+2*r+1}")
    nop(2)
    mfma(O3, VB, PREG, O3); mfma(O3, VB+4, PREG+4, O3)
    E("s_add_u32 s60, s60, 4096"); E("s_cmp_lt_u32 s60, 0x40000"); E("s_cbranch_scc1 L_fb2")
    nop(12)
    E(f"v_mov_b32 v4, v{O3+12}"); E(f"v_mov_b32 v5, v{O3+12}"); nop(2)
    E("v_permlane32_swap_b32 v4, v5"); nop(1)
    E("s_branch L_norm")

def g_ffn():
    L("L_gf")
    ACC = 128; GX = 64; GW_ = 80
    E("s_barrier")
    lane_pieces()
    E("s_and_b32 s52, s45, 1"); E("s_lshr_b32 s53, s45, 1")
    E("s_lshl_b32 s70, s52, 13"); E("v_add_u32 v1, s70, v30")
    for s in range(1, 4): E(f"v_xor_b32 v{1+s}, {32*s}, v1")
    E("v_bfe_u32 v17, v0, 4, 1")
    E("v_lshl_add_u32 v18, v17, 2, v28")
    E("s_lshl_b32 s70, s53, 2"); E("v_xor_b32 v18, s70, v18"); E("v_lshlrev_b32 v18, 5, v18")
    E("v_and_b32 v19, 3, v0"); E("v_lshl_add_u32 v18, v19, 3, v18")
    E("v_lshl_add_u32 v19, v31, 3, v28"); E("v_lshl_add_u32 v18, v19, 8, v18")
    E("v_lshl_add_u32 v18, v17, 14, v18"); E(f"v_add_u32 v5, {F_G}, v18")
    for t in range(1, 4): E(f"v_xor_b32 v{5+t}, {32*t}, v5")
    for k in range(8): E(f"v_mov_b32 v{9+k}, v{1+k}")
    for r in range(ACC, ACC+128): E(f"v_mov_b32 v{r}, 0")
    E("s_mov_b32 s54, 0"); E("s_mov_b32 s55, 0")
    E("s_waitcnt lgkmcnt(0)")
    prefill()
    E("s_barrier")
    stamp(1)
    def reads(s):
        st = s & 1
        R = []
        R.append(f"ds_read_b128 {v(GX+8*st,4)}, v{9+s}")
        for q in range(2): R.append(f"ds_read_b64_tr_b16 {v(GW_+16*st+2*q,2)}, v13 offset:{4096*s+1024*q}")
        R.append(f"ds_read_b128 {v(GX+8*st+4,4)}, v{9+s} offset:4096")
        for t in range(1, 4):
            for q in range(2): R.append(f"ds_read_b64_tr_b16 {v(GW_+16*st+4*t+2*q,2)}, v{13+t} offset:{4096*s+1024*q}")
        return R
    for l in reads(0): E(l)
    out.append(".p2align 6")
    L("L_gfloop")
    b0 = len(out)
    for s in range(4):
        st = s & 1
        E("s_waitcnt lgkmcnt(0)")
        R = reads((s+1) % 4)
        n = 0
        for t in range(4):
            for a in range(2):
                d = ACC + 64*a + 16*t
                mfma(d, GW_+16*st+4*t, GX+8*st+4*a, d)
                if s == 3 and n == 0:
                    E("s_cmp_lg_u32 s54, 6"); E("s_cbranch_scc1 L_gf_bar"); E("s_setprio 3"); E("s_branch L_gf_nobar")
                    L("L_gf_bar"); E("s_barrier"); L("L_gf_nobar")
                for l in R[:2]: E(l)
                R = R[2:]
                if s == 2 and n == 5:
                    E(f"s_add_u32 s55, s55, {F_STAGE}"); E(f"s_cmp_eq_u32 s55, {3*F_STAGE}"); E("s_cselect_b32 s55, 0, s55")
                if s == 2 and n >= 6:
                    for k in range(4*(n-6), 4*(n-6)+4): E(f"v_add_u32 v{9+k}, s55, v{1+k}")
                n += 1
    E("s_add_u32 s54, s54, 1"); E("s_cmp_lt_u32 s54, 7"); E("s_cbranch_scc1 L_gfloop")
    loops.append(out[b0:])
    stamp(2)
    E("s_lshl_b32 s56, s46, 2"); E("s_lshl_b32 s70, s52, 1"); E("s_add_u32 s56, s56, s70"); E("s_mul_i32 s56, s56, 114688")
    E("s_lshl_b32 s70, s47, 13"); E("s_add_u32 s56, s56, s70"); E("s_lshl_b32 s70, s53, 12"); E("s_add_u32 s56, s56, s70"); E(f"s_add_u32 s56, s56, {WS_H}")
    E("s_add_u32 s57, s56, 114688")
    E("s_waitcnt lgkmcnt(0)")
    for t in range(4):
        for a in range(2):
            d = ACC + 64*a + 16*t
            for r in range(0, 8, 2): E(f"v_pk_mul_f32 {v(d+r,2)}, {v(d+r,2)}, {v(d+8+r,2)}")
            for r in range(4): E(f"v_cvt_pk_bf16_f32 v{d+8+r}, v{d+2*r}, v{d+2*r+1}")
            E(f"buffer_store_dwordx4 {v(d+8,4)}, v29, {WS}, s{56+a} offen offset:{1024*t} sc1")
    E("s_branch L_gpub")

def g_kv():
    L("L_gk")
    D1, D2, D3 = 128, 128, 160
    GX = 64; GWf = 80; GG = 96
    x_dma_addrs()
    E("s_mov_b32 s53, s55")
    E("s_waitcnt lgkmcnt(0)")
    def xblk():
        E("s_mov_b32 m0, s53"); E("s_add_u32 s53, s53, 16384")
        for n in range(4): E(f"buffer_load_dwordx4 v{1+n}, {X}, s52 offen offset:{1024*n} lds")
        E("s_add_u32 s52, s52, 128")
    for kb in range(3): xblk()
    lane_pieces()
    E("v_add_u32 v9, s55, v30")
    for s in range(1, 4): E(f"v_xor_b32 v{9+s}, {32*s}, v9")
    E("v_lshl_add_u32 v17, v31, 3, v28"); E("v_mul_u32_u24 v17, 56, v17"); E("v_add_u32 v13, v17, v27"); E(f"v_add_u32 v13, {K_W}, v13")
    E("v_lshlrev_b32 v6, 4, v31"); E(f"v_add_u32 v6, {K_GW}, v6")
    for r in range(16): E(f"v_mov_b32 v{D1+r}, 0"); E(f"v_mov_b32 v{D3+r}, 0")
    E("s_mov_b32 s54, 0"); E("s_mov_b32 s59, 0x10000000")
    E("s_barrier")
    stamp(1)
    L("L_gkloop")
    b0 = len(out)
    E("s_cmp_ge_u32 s54, 4"); E("s_cbranch_scc1 L_gk_dum")
    xblk()
    E("s_branch L_gk_rd")
    L("L_gk_dum")
    for n in range(4): E(f"buffer_load_dword v40, off, {X}, s59")
    L("L_gk_rd")
    E("s_waitcnt vmcnt(12)")
    for s in range(4):
        E(f"ds_read_b128 {v(GX+4*s,4)}, v{9+s}")
        for q in range(2): E(f"ds_read_b64_tr_b16 {v(GWf+4*s+2*q,2)}, v13 offset:{896*s+224*q}")
    E("s_cmp_eq_u32 s47, 15"); E("s_cbranch_scc1 L_gk_lv")
    for s in range(4):
        E(f"s_waitcnt lgkmcnt({9-2*s})")
        mfma(D1, GWf+4*s, GX+4*s, D1)
        E(f"ds_read_b128 {v(GG+4*s,4)}, v6 offset:{32*s}")
    for s in range(4):
        E(f"s_waitcnt lgkmcnt({3-s})")
        mfma(D3, GG+4*s, GX+4*s, D3)
    E("s_branch L_gk_le")
    L("L_gk_lv")
    for s in range(4):
        E(f"s_waitcnt lgkmcnt({9-3*s})")
        mfma(D2, GX+4*s, GWf+4*s, D2)
    L("L_gk_le")
    for s in range(4): E(f"v_add_u32 v{9+s}, 16384, v{9+s}")
    E("v_add_u32 v13, 3584, v13"); E("v_add_u32 v6, 128, v6")
    E("s_add_u32 s54, s54, 1"); E("s_cmp_lt_u32 s54, 7"); E("s_cbranch_scc1 L_gkloop")
    loops.append(out[b0:])
    E("s_barrier")
    stamp(2)
    E("s_lshl_b32 s56, s46, 2"); E("s_add_u32 s56, s56, s45"); E("s_lshl_b32 s57, s56, 7"); E("s_lshl_b32 s56, s56, 12"); E(f"s_add_u32 s57, s57, {WS_G}")
    E("v_and_b32 v17, 31, v0")
    nop(6)
    E("s_cmp_eq_u32 s47, 15"); E("s_cbranch_scc1 L_gk_v")
    E("v_cmp_eq_u32 vcc, 0, v31")
    for r in range(8): E(f"v_cvt_pk_bf16_f32 v{32+r}, v{D1+2*r}, v{D1+2*r+1}")
    E("v_mov_b32 v18, 0x3f80")
    E("v_cndmask_b32 v38, v18, v38, vcc"); E("v_cndmask_b32 v39, 0, v39, vcc")
    E(f"buffer_store_dwordx4 v[32:35], v29, {WS}, s56 offen sc1")
    E(f"buffer_store_dwordx4 v[36:39], v29, {WS}, s56 offen offset:1024 sc1")
    E(f"v_mul_f32 v18, {f32bits(-math.log2(math.e)):#x}, v{D3}")
    E("v_exp_f32 v18, v18"); E("v_lshlrev_b32 v17, 2, v17")
    E("v_add_f32 v18, 1.0, v18"); E("v_rcp_f32 v18, v18")
    E("s_mov_b32 exec_hi, 0")
    E(f"buffer_store_dword v18, v17, {WS}, s57 offen sc1")
    E("s_mov_b64 exec, -1")
    E("s_branch L_gk_pub")
    L("L_gk_v")
    E("v_cmp_gt_u32 vcc, 28, v17"); E("v_cmp_eq_u32 s[66:67], 28, v17")
    E("v_mov_b32 v18, 0x3f803f80"); E("v_mov_b32 v19, 0")
    E("v_cndmask_b32 v18, v19, v18, s[66:67]")
    for r in range(8): E(f"v_cvt_pk_bf16_f32 v{32+r}, v{D2+2*r}, v{D2+2*r+1}")
    for r in range(8): E(f"v_cndmask_b32 v{32+r}, v18, v{32+r}, vcc")
    E(f"buffer_store_dwordx4 v[32:35], v29, {WS}, s56 offen offset:2048 sc1")
    E(f"buffer_store_dwordx4 v[36:39], v29, {WS}, s56 offen offset:3072 sc1")
    L("L_gk_pub")
    E("s_lshl_b32 s70, s47, 2"); E("s_add_u32 s70, s70, s45"); E("s_cmp_lg_u32 s70, 56"); E("s_cbranch_scc1 L_gk_nz")
    E("v_lshlrev_b32 v41, 7, v0"); E("v_mov_b32 v42, 0"); E("s_lshl_b32 s70, s46, 11"); E(f"s_add_u32 s70, s70, {WS_HF}")
    E("s_mov_b32 exec_lo, 0xffff"); E("s_mov_b32 exec_hi, 0")
    E(f"buffer_store_dword v42, v41, {WS}, s70 offen sc1")
    E("s_mov_b64 exec, -1")
    L("L_gk_nz")
    E(f"v_mov_b32 v25, {L_CNT}"); E("v_mov_b32 v26, 1")
    E("s_waitcnt vmcnt(0)")
    E("s_mov_b64 exec, 1")
    E(f"ds_add_rtn_u32 v24, v25, v26 offset:{KC}"); E("s_waitcnt lgkmcnt(0)")
    E("v_readfirstlane_b32 s63, v24"); nop(1)
    E("s_cmp_lg_u32 s63, 3"); E("s_cbranch_scc1 L_gk_nosig")
    E("v_mov_b32 v24, 1")
    E(f"buffer_atomic_add v24, off, {DBG}, 0 sc0 sc1"); E("s_waitcnt vmcnt(0)")
    E("v_readfirstlane_b32 s63, v24"); nop(1)
    E("s_cmp_lg_u32 s63, 31"); E("s_cbranch_scc1 L_gk_nosig")
    E(f"buffer_store_dword v26, off, {DBG}, 0 offset:128 sc1")
    L("L_gk_nosig")
    E("s_mov_b64 exec, -1")
    stamp(5)
    prefill()
    E("s_barrier")
    L("L_gpub")
    E("s_setprio 3")
    go_poll("L_g_poll", 8)
    E(f"v_mov_b32 v25, {L_CNT}"); E("v_mov_b32 v26, 1")
    E("s_mov_b64 exec, 1")
    E(f"ds_add_rtn_u32 v24, v25, v26 offset:{GC}"); E("s_waitcnt lgkmcnt(0)")
    E("v_readfirstlane_b32 s63, v24")
    E("s_lshl_b32 s70, s46, 4"); E("s_add_u32 s70, s70, s47"); E("s_lshl_b32 s70, s70, 7"); E(f"s_add_u32 s70, s70, {WS_HF}")
    E("s_cmp_lg_u32 s63, 3"); E("s_cbranch_scc1 L_g_nosig")
    E(f"buffer_store_dword v26, off, {WS}, s70 sc1")
    L("L_g_nosig")
    E("s_mov_b64 exec, -1")

def g_down():
    L("L_gd")
    stamp(3)
    E("s_cmp_eq_u32 s49, 7"); E("s_cbranch_scc1 L_gend")
    HB = 64; WFR = 176; ACC = 192
    E("s_add_u32 s64, s45, s49"); E("s_add_u32 s64, s64, s48"); E("s_and_b32 s64, s64, 3"); E("s_lshl_b32 s64, s64, 1")
    E("s_lshr_b32 s65, s49, 2"); E("s_lshr_b32 s70, s48, 1"); E("s_xor_b32 s65, s65, s70"); E("s_and_b32 s65, s65, 1")
    E("s_add_u32 s64, s64, s65")
    E("s_xor_b32 s65, s64, 1")
    E("s_and_b32 s70, s49, 1"); E("s_lshl_b32 s70, s70, 1"); E("s_xor_b32 s45, s45, s70")
    E("s_and_b32 s52, s45, 1"); E("s_lshr_b32 s53, s45, 1")
    E("v_lshrrev_b32 v17, 3, v0"); E("v_mul_u32_u24 v17, 896, v17")
    E("v_bfe_u32 v18, v0, 4, 1"); E("v_lshlrev_b32 v18, 2, v18"); E("v_and_b32 v19, 7, v0"); E("v_xor_b32 v18, v18, v19")
    E("v_lshl_add_u32 v1, v18, 4, v17"); E("v_add_u32 v2, 6144, v1")
    E("s_mul_i32 s54, s45, 28672")
    E("v_lshl_add_u32 v17, v31, 2, v28"); E("v_lshl_add_u32 v17, v17, 7, v27")
    E("v_lshrrev_b32 v18, 1, v28"); E("v_xor_b32 v18, s53, v18"); E("v_lshl_add_u32 v17, v18, 6, v17")
    E("v_add_u32 v3, s54, v17"); E("v_xor_b32 v4, 64, v3")
    E("s_mul_i32 s70, s53, 57344"); E("v_add_u32 v5, s70, v17"); E("v_xor_b32 v6, 64, v5")
    E("s_lshl_b32 s55, s48, 1"); E("s_add_u32 s56, s55, s52")
    E("s_xor_b32 s57, s56, 1")
    E("s_mul_i32 s71, s56, 114688"); E(f"s_add_u32 s71, s71, {WS_H}"); E("v_add_u32 v7, s71, v29")
    E("s_mul_i32 s71, s57, 114688"); E(f"s_add_u32 s71, s71, {WS_H}"); E("v_add_u32 v8, s71, v29")
    E("s_mul_i32 s58, s64, 200704"); E("s_lshl_b32 s66, s49, 7"); E("s_add_u32 s58, s58, s66")
    for r in range(ACC, ACC+64): E(f"v_mov_b32 v{r}, 0")
    E(f"v_mov_b32 v25, {L_CNT}")
    lds_spin("L_gd_s1", QC, 4, 25, 24, 2)
    lds_spin("L_gd_s2", GC, 4, 25, 24, 2)
    E("v_and_b32 v16, 31, v0"); E("v_lshlrev_b32 v16, 2, v16")
    E("v_min_u32 v17, 15, v0"); E("v_lshlrev_b32 v17, 7, v17")
    E("v_mul_u32_u24 v14, 3584, v0")
    E("s_setprio 0")
    for s in range(14):
        E(f"s_add_u32 m0, s54, {2048*s}"); E("s_nop 0")
        E(f"buffer_load_dwordx4 v1, {WD}, s58 offen lds"); E(f"buffer_load_dwordx4 v2, {WD}, s58 offen offset:1024 lds")
        E("s_add_u32 s58, s58, 14336")
    E("s_mul_i32 s58, s65, 200704"); E("s_add_u32 s58, s58, s66")
    E("s_and_b32 s70, s48, 3"); E("s_mul_i32 s70, s70, 896")
    E("s_mul_i32 s71, s45, 100352"); E("s_add_u32 s70, s70, s71"); E("s_add_u32 s70, s70, s66")
    E("s_mov_b32 exec_lo, 0xfffffff"); E("s_mov_b32 exec_hi, 0")
    E(f"buffer_load_dword v10, v14, {WO}, s70 offen")
    E("s_mov_b64 exec, -1")
    E("s_lshl_b32 s70, s56, 7"); E(f"s_add_u32 s70, s70, {WS_G}")
    E(f"buffer_load_dword v9, v16, {WS}, s70 offen sc1")
    E("s_lshr_b32 s70, s48, 1"); E("s_lshl_b32 s70, s70, 11"); E(f"s_add_u32 s70, s70, {WS_HF}")
    E("s_setprio 3")
    E(f"s_mov_b32 s62, {SPIN}")
    L("L_gd_poll")
    E("s_sleep 8")
    E(f"buffer_load_dword v18, v17, {WS}, s70 offen sc1"); E("s_waitcnt vmcnt(0)")
    E("v_cmp_ne_u32 vcc, 1, v18"); E("s_sub_u32 s62, s62, 1"); E("s_cmp_eq_u32 s62, 0"); E("s_cbranch_scc1 L_gd_go")
    E("s_cbranch_vccnz L_gd_poll")
    L("L_gd_go")
    stamp(4)
    E("s_setprio 0")
    E("s_mul_i32 s59, s64, 14336")
    for s in range(14):
        E(f"buffer_load_dwordx4 {v(HB+8*s,4)}, v7, {WS}, s59 offen sc1"); E(f"buffer_load_dwordx4 {v(HB+8*s+4,4)}, v8, {WS}, s59 offen sc1")
        E("s_add_u32 s59, s59, 1024")
    E("s_mul_i32 s59, s65, 14336")
    def wreads(s):
        st = s & 1
        return [f"ds_read_b64_tr_b16 {v(WFR+8*st+4*ct+2*q,2)}, v{3+ct} offset:{2048*s+1024*q}" for ct in range(2) for q in range(2)]
    for l in wreads(0): E(l)
    E("s_mov_b32 s60, 0")
    E("s_waitcnt vmcnt(26)")
    L("L_gdloop")
    b0 = len(out)
    for s in range(14):
        st = s & 1
        E(f"s_waitcnt vmcnt({24+2*s if s < 13 else 48}) lgkmcnt(0)")
        E("s_setprio 3")
        R = wreads((s+1) % 14)
        for a in range(2):
            for ct in range(2):
                d = ACC + 32*a + 16*ct
                mfma(d, WFR+8*st+4*ct, HB+8*s+4*a, d)
                E(R.pop(0))
        E("s_setprio 0")
        E(f"s_add_u32 m0, s54, {2048*s}")
        E(f"buffer_load_dwordx4 {v(HB+8*s,4)}, v7, {WS}, s59 offen sc1"); E(f"buffer_load_dwordx4 {v(HB+8*s+4,4)}, v8, {WS}, s59 offen sc1")
        E(f"buffer_load_dwordx4 v1, {WD}, s58 offen lds"); E(f"buffer_load_dwordx4 v2, {WD}, s58 offen offset:1024 lds")
        E("s_add_u32 s58, s58, 14336"); E("s_add_u32 s59, s59, 1024")
    E("s_mov_b32 s20, s24"); E("s_mov_b32 s21, s25")
    E("s_mul_i32 s58, s45, 100352"); E("s_add_u32 s22, s58, 107520"); E("s_min_u32 s22, s22, 401408")
    E("s_lshl_b32 s70, s49, 7"); E("s_add_u32 s58, s58, s70")
    E("s_mov_b32 s59, 0x10000000")
    E("s_add_u32 s60, s60, 1"); E("s_cmp_lt_u32 s60, 2"); E("s_cbranch_scc1 L_gdloop")
    loops.append(out[b0:])
    stamp(5)
    E("s_setprio 3")
    E("v_add_u32 v17, s54, v29")
    E("s_xor_b32 s70, s45, 1"); E("s_mul_i32 s70, s70, 28672"); E("v_add_u32 v18, s70, v29")
    E("s_waitcnt vmcnt(0) lgkmcnt(0)")
    for q in range(8): E(f"ds_write_b128 v17, {v(ACC+32+4*q,4)} offset:{16384+1024*q}")
    E("v_sub_f32 v9, 1.0, v9")
    E("s_waitcnt lgkmcnt(0)")
    E("s_barrier")
    for q in range(8): E(f"ds_read_b128 {v(ACC+32+4*q,4)}, v18 offset:{16384+1024*q}")
    E("s_waitcnt lgkmcnt(0)")
    for r in range(32): E(f"v_add_f32 v{ACC+r}, v{ACC+r}, v{ACC+32+r}")
    for r in range(32): E(f"v_mul_f32 v{ACC+r}, v9, v{ACC+r}")
    def wo_reg(e): return 96 + 8*e if e < 12 else 224 + 8*(e-12)
    for e in range(16):
        hh, a = e >> 1, e & 1
        for ct in range(2):
            for q in range(2):
                off = (hh >> 2)*28672 + (28*(hh & 3) + 16*a + 8*q)*128
                E(f"ds_read_b64_tr_b16 {v(wo_reg(e)+4*ct+2*q,2)}, v{5+ct} offset:{off}")
    OF = 32
    E("s_lshl_b32 s70, s56, 4"); E("s_lshl_b32 s71, s53, 3"); E("s_add_u32 s70, s70, s71"); E("s_lshl_b32 s70, s70, 11"); E(f"s_add_u32 s70, s70, {WS_O}")
    E(f"s_mov_b32 s62, {SPIN >> 2}")
    L("L_ge_poll")
    E("s_mov_b32 s71, s70")
    for g in range(4):
        for n in range(4): E(f"buffer_load_dwordx4 {v(OF+16*g+4*n,4)}, v29, {WS}, s71 offen offset:{1024*n} sc1")
        E("s_add_u32 s71, s71, 4096")
    E("v_mov_b32 v17, 0")
    for g in range(4):
        E(f"s_waitcnt vmcnt({12-4*g})")
        for r in range(0, 16, 2): E(f"v_max3_u32 v17, v17, v{OF+16*g+r}, v{OF+16*g+r+1}")
    E("v_cmp_eq_u32 vcc, -1, v17"); E("s_sub_u32 s62, s62, 1"); E("s_cmp_eq_u32 s62, 0"); E("s_cbranch_scc1 L_ge_go")
    E("s_cbranch_vccnz L_ge_poll")
    L("L_ge_go")
    stamp(6)
    E("s_waitcnt lgkmcnt(0)")
    for e in range(16):
        mfma(ACC+16, wo_reg(e)+4, OF+4*e, ACC+16)
        mfma(ACC, wo_reg(e), OF+4*e, ACC)
    E("v_add_u32 v17, s54, v29")
    E("s_xor_b32 s70, s45, 2"); E("s_mul_i32 s70, s70, 28672"); E("v_add_u32 v18, s70, v29")
    E("v_and_b32 v19, 31, v0"); E("v_mul_u32_u24 v19, 896, v19"); E("v_lshl_add_u32 v19, v31, 4, v19")
    E("s_mul_i32 s70, s56, 28672"); E("s_lshl_b32 s71, s49, 7"); E("s_add_u32 s70, s70, s71"); E("s_lshl_b32 s71, s53, 6"); E("s_add_u32 s70, s70, s71")
    for q in range(4): E(f"ds_write_b128 v17, {v(ACC+16+4*q,4)} offset:{24576+1024*q}")
    E("s_waitcnt lgkmcnt(0)")
    E("s_barrier")
    for q in range(4): E(f"ds_read_b128 {v(ACC+16+4*q,4)}, v18 offset:{24576+1024*q}")
    E("s_waitcnt lgkmcnt(0)")
    for r in range(16): E(f"v_add_f32 v{ACC+r}, v{ACC+r}, v{ACC+16+r}")
    for r in range(8): E(f"v_cvt_pk_bf16_f32 v{32+r}, v{ACC+2*r}, v{ACC+2*r+1}")
    nop(2)
    for p in range(2):
        E(f"v_permlane32_swap_b32 v{32+4*p}, v{34+4*p}"); E(f"v_permlane32_swap_b32 v{33+4*p}, v{35+4*p}")
    for p in range(2):
        E(f"buffer_store_dwordx4 {v(32+4*p,4)}, v19, {OUT}, s70 offen offset:{32*p}")
    stamp(7)
    L("L_gend")
    stamp_flush("g")
    L("L_end")
    E("s_endpgm")

loops = []
entry()
a_ffn()
a_kv()
attention()
g_entry()
g_ffn()
g_kv()
g_down()

errs = hazard.check(out, "main")
for k, b in enumerate(loops): errs += hazard.check(b + b, f"loop{k}")
for e in sorted(set(errs)): print("HAZARD", e, file=sys.stderr)

hdr = open("gated_mix__grouped_kv_mqa__glu_gated_bilinear__prompt.s.ref").read().split("; Override")[0]
print(hdr, end="")
print(f"; @launch grid=(256,1,1) block=(512,1,1) lds={LDS_SIZE}")
print('.amdgcn_target "amdgcn-amd-amdhsa--gfx950"')
print(".text"); print(f".globl {NAME}"); print(".p2align 8"); print(f".type {NAME},@function"); print(f"{NAME}:")
print("\n".join(l for l in out if l is not None))
print('.section .rodata,"a"'); print(".p2align 6"); print(f".amdhsa_kernel {NAME}")
print("  .amdhsa_next_free_vgpr 256\n  .amdhsa_next_free_sgpr 96\n  .amdhsa_accum_offset 256\n  .amdhsa_group_segment_fixed_size 0\n  .amdhsa_kernarg_size 104")
print("  .amdhsa_user_sgpr_count 2\n  .amdhsa_user_sgpr_kernarg_segment_ptr 1\n  .amdhsa_system_sgpr_workgroup_id_x 1\n.end_amdhsa_kernel")
```

```python
N = "gated_mix__grouped_kv_mqa__glu_gated_bilinear__prompt_kernel"
s = open('k.s').read()
old = "; @launch grid=(256,1,1) block=(512,1,1) lds=163840"
main = f"; @launch kernel={N} grid=(256,1,1) block=(512,1,1) lds=163840"
KD = """
.section .rodata,"a"
.p2align 6
.amdhsa_kernel touch_kernel
  .amdhsa_next_free_vgpr 64
  .amdhsa_next_free_sgpr 64
  .amdhsa_accum_offset 64
  .amdhsa_group_segment_fixed_size 0
  .amdhsa_kernarg_size 104
  .amdhsa_user_sgpr_count 2
  .amdhsa_user_sgpr_kernarg_segment_ptr 1
  .amdhsa_system_sgpr_workgroup_id_x 1
.end_amdhsa_kernel
"""
bufs = [(0, 1835008), (8, 401408), (16, 25088), (24, 25088), (32, 401408), (48, 1605632), (56, 1605632), (64, 1605632), (72, 896), (80, 1835008), (88, 256), (96, 0xA00000)]
def mk(name, body, block=64, grid=256):
    code = "\n.text\n.globl touch_kernel\n.p2align 8\n.type touch_kernel,@function\ntouch_kernel:\n" + "\n".join("    "+l for l in body) + "\n    s_endpgm\n" + KD
    t = f"; @launch kernel=touch_kernel grid=({grid},1,1) block=({block},1,1) lds=0"
    open(name, 'w').write(s.replace(old, t + "\n" + main) + code)
def srds(which):
    L = []
    for n, (off, size) in enumerate(which):
        L.append(f"s_load_dwordx2 s[{4+4*n}:{5+4*n}], s[0:1], {off}")
        L.append(f"s_mov_b32 s{6+4*n}, {size}"); L.append(f"s_mov_b32 s{7+4*n}, 0x20000")
    L.append("s_waitcnt lgkmcnt(0)")
    return L
b = srds(bufs) + ["v_lshlrev_b32 v1, 16, v0"]
for n, (off, size) in enumerate(bufs):
    for k in range((size + (4<<20) - 1) // (4<<20)):
        b += [f"s_mov_b32 s60, {k*(4<<20)}", f"buffer_load_dword v2, v1, s[{4+4*n}:{7+4*n}], s60 offen"]
b += ["s_waitcnt vmcnt(0)"]
mk("x_tlb64k.s", b)
b = srds(bufs) + ["s_lshr_b32 s61, s2, 3", "s_lshl_b32 s61, s61, 18", "v_lshlrev_b32 v1, 12, v0", "v_add_u32 v1, s61, v1"]
for n, (off, size) in enumerate(bufs):
    for k in range((size + (8<<20) - 1) // (8<<20)):
        b += [f"s_mov_b32 s60, {k*(8<<20)}", f"buffer_load_dword v2, v1, s[{4+4*n}:{7+4*n}], s60 offen"]
b += ["s_waitcnt vmcnt(0)"]
mk("x_tlb4k.s", b)
inb = [x for x in bufs if x[0] < 80]
b = srds(inb) + ["s_lshl_b32 s61, s2, 12", "v_lshlrev_b32 v1, 4, v0", "v_add_u32 v1, s61, v1"]
r = 4
for n, (off, size) in enumerate(inb):
    for k in range((size + (1<<20) - 1) // (1<<20)):
        b += [f"s_mov_b32 s60, {k*(1<<20)}", f"buffer_load_dwordx4 v[{r}:{r+3}], v1, s[{4+4*n}:{7+4*n}], s60 offen"]; r += 4
b += ["s_waitcnt vmcnt(0)"]
mk("x_inputs.s", b, block=256)
b = ["s_getpc_b64 s[4:5]", "L_pc:", f"s_sub_u32 s4, s4, L_pc-{N}", "s_subb_u32 s5, s5, 0", "v_lshlrev_b32 v1, 7, v0",
     "global_load_dword v2, v1, s[4:5]", "v_add_u32 v1, 8192, v1", "global_load_dword v3, v1, s[4:5]", "v_add_u32 v1, 4096, v1", "global_load_dword v4, v1, s[4:5]", "s_waitcnt vmcnt(0)"]
mk("x_code.s", b)
```

```python
import sys
N = "gated_mix__grouped_kv_mqa__glu_gated_bilinear__prompt_kernel"
src = sys.argv[1] if len(sys.argv) > 1 else 'k.s'
s = open(src).read()
old = "; @launch grid=(256,1,1) block=(512,1,1) lds=163840"
main = f"; @launch kernel={N} grid=(256,1,1) block=(512,1,1) lds=163840"
KD = """
.section .rodata,"a"
.p2align 6
.amdhsa_kernel {n}
  .amdhsa_next_free_vgpr 16
  .amdhsa_next_free_sgpr 64
  .amdhsa_accum_offset 16
  .amdhsa_group_segment_fixed_size 0
  .amdhsa_kernarg_size 104
  .amdhsa_user_sgpr_count 2
  .amdhsa_user_sgpr_kernarg_segment_ptr 1
  .amdhsa_system_sgpr_workgroup_id_x 1
.end_amdhsa_kernel
"""
def kern(n, body):
    return f"\n.text\n.globl {n}\n.p2align 8\n.type {n},@function\n{n}:\n" + "\n".join("    "+l for l in body) + "\n    s_endpgm\n" + KD.format(n=n)
pre = ["s_load_dwordx2 s[4:5], s[0:1], 96", "s_mov_b32 s6, 0x2000000", "s_mov_b32 s7, 0x20000", "s_mov_b32 s8, 0x1000000"]
st = pre + ["s_cmp_lg_u32 s2, 0", "s_cbranch_scc1 L_st_end", "s_waitcnt lgkmcnt(0)", "s_memrealtime s[10:11]", "s_waitcnt lgkmcnt(0)", "v_mov_b32 v1, s10", "buffer_store_dword v1, off, s[4:7], s8", "s_waitcnt vmcnt(0)", "L_st_end:"]
amp = ["s_memrealtime s[10:11]"] + pre + ["s_cmp_lg_u32 s2, 0", "s_cbranch_scc1 L_am_end", "s_waitcnt lgkmcnt(0)", "buffer_load_dword v1, off, s[4:7], s8", "s_waitcnt vmcnt(0)", "v_readfirstlane_b32 s12, v1", "s_nop 1",
       "s_sub_u32 s13, s10, s12", "s_min_u32 s13, s13, 20000", "s_mul_i32 s13, s13, 10", "s_add_u32 s13, s13, s10",
       "L_am_spin:", "s_memrealtime s[14:15]", "s_waitcnt lgkmcnt(0)", "s_sub_u32 s16, s14, s13", "s_cmp_lt_i32 s16, 0", "s_cbranch_scc1 L_am_spin", "L_am_end:"]
ls = "; @launch kernel=st_kernel grid=(1,1,1) block=(64,1,1) lds=0"
la = "; @launch kernel=amp_kernel grid=(1,1,1) block=(64,1,1) lds=0"
open("a_" + src, 'w').write(s.replace(old, ls + "\n" + main + "\n" + la) + kern("st_kernel", st) + kern("amp_kernel", amp))
```

```python
import sys, math, struct
import hazard

NAME = "gated_mix__grouped_kv_mqa__glu_gated_bilinear__prompt_kernel"
STAMPS = "--stamps" in sys.argv
def opt(name, default):
    for a in sys.argv:
        if a.startswith(f"--{name}="): return int(a.split("=")[1])
    return default
DD = opt("D", 3); SPREAD = opt("spread", 0); YNOP = opt("ynop", 0)
CLK = "s_memrealtime" if "--rt" in sys.argv else "s_memtime"

WS_KV = 0x000000
WS_G = 0x040000
WS_HF = 0x048000
WS_O = 0x080000
WS_H = 0x300000
WS_END = 0xA00000
WS_ST = 0xA00000
LDS_SIZE = 163840
F_STAGE = 53248; F_NST = 3; F_G = 16384; F_U = 32768; F_Q = 49152
K_W = 122880; K_GW = 151552
L_CNT = 163840 - 48
QC, GC, KC, RC, XC, QD, AD = 4, 8, 12, 20, 24, 28, 36
L_QX = 98304
L_RED = 114688
SPIN = 1 << 17

def f32bits(x): return struct.unpack("<I", struct.pack("<f", x))[0]
QSCALE = f32bits(28 ** -0.5 * math.log2(math.e))
LOG2E = f32bits(math.log2(math.e))

out = []
def E(s): out.append("    " + s)
def L(s): out.append(s + ":")
def C(s): out.append("    ; " + s)
def v(a, n=1): return f"v{a}" if n == 1 else f"v[{a}:{a+n-1}]"
def mfma(d, a, b, c=None):
    E(f"v_mfma_f32_32x32x16_bf16 {v(d,16)}, {v(a,4)}, {v(b,4)}, " + ("0" if c is None else v(c,16)))
def nop(n):
    while n > 0:
        k = min(n, 16); E(f"s_nop {k-1}"); n -= k
nst = [0]
def stamp(n):
    if STAMPS:
        E(f"{CLK} s[{72+2*n}:{73+2*n}]"); E("s_waitcnt lgkmcnt(0)")
def stamp_flush(tag):
    if STAMPS:
        E("s_memrealtime s[92:93]"); E("s_waitcnt lgkmcnt(0)")
        E("s_lshl_b32 s90, s2, 3"); E("s_add_u32 s90, s90, s44"); E("s_lshl_b32 s90, s90, 6"); E(f"s_add_u32 s90, s90, {WS_ST}")
        for q in range(2):
            for e in range(4): E(f"v_mov_b32 v{4+e}, s{72+2*(4*q+e)}")
            E(f"buffer_store_dwordx4 v[4:7], off, s[28:31], s90 offset:{16*q}"); nop(2)
        E("v_mov_b32 v4, s92"); E("v_mov_b32 v5, s88"); E("v_mov_b32 v6, s89"); E("v_mov_b32 v7, s94")
        E("buffer_store_dwordx4 v[4:7], off, s[28:31], s90 offset:32")
        E("s_waitcnt vmcnt(0)")

X, WQ, WG, WU, WD, WO, WS, OUT, DBG, KVW = "s[4:7]", "s[8:11]", "s[12:15]", "s[16:19]", "s[20:23]", "s[24:27]", "s[28:31]", "s[32:35]", "s[36:39]", "s[40:43]"

def srd(base, size):
    E(f"s_mov_b32 s{base+2}, {size}"); E(f"s_mov_b32 s{base+3}, 0x20000")
WS_SIZE = WS_END + (0x20000 if STAMPS else 0)

def entry():
    E("s_cmp_ge_u32 s2, 256"); E("s_cbranch_scc1 L_end")
    E("s_load_dwordx2 s[4:5], s[0:1], 0")
    E("s_load_dwordx2 s[28:29], s[0:1], 96")
    E("s_load_dwordx2 s[36:37], s[0:1], 88")
    if STAMPS:
        E("s_memrealtime s[88:89]"); E("s_getreg_b32 s94, hwreg(HW_REG_HW_ID)"); E(f"{CLK} s[72:73]")
    E("v_lshrrev_b32 v1, 6, v0"); E("v_and_b32 v0, 63, v0")
    E("v_readfirstlane_b32 s44, v1")
    E("s_and_b32 s68, s2, 7"); E("s_lshr_b32 s69, s2, 3")
    E("s_and_b32 s46, s68, 1"); E("s_lshl_b32 s46, s46, 3"); E("s_and_b32 s70, s69, 7"); E("s_add_u32 s46, s46, s70")
    E("s_lshr_b32 s47, s68, 1"); E("s_lshl_b32 s47, s47, 2"); E("s_lshr_b32 s70, s69, 3"); E("s_add_u32 s47, s47, s70")
    E("s_xor_b32 s47, s47, 15")
    E("s_mov_b32 s50, s47")
    E("s_and_b32 s45, s44, 3")
    srd(4, 1835008); srd(28, WS_SIZE); srd(36, 256)
    E("v_lshlrev_b32 v29, 4, v0")
    E("v_lshrrev_b32 v31, 5, v0")
    E("s_cmp_ge_u32 s44, 4"); E("s_cbranch_scc1 L_g")
    E("s_load_dwordx2 s[8:9], s[0:1], 8")
    srd(8, 401408); srd(40, 65536)
    E("s_mov_b32 s15, 0x20000"); E("s_mov_b32 s19, 0x20000")
    E("s_cmp_ge_u32 s47, 14"); E("s_cbranch_scc1 L_ak")

def lane_pieces():
    E("v_and_b32 v24, 31, v0")
    E("v_bfe_u32 v25, v0, 1, 3")
    E("v_xor_b32 v25, v25, v31"); E("v_lshlrev_b32 v25, 4, v25")
    E("v_lshl_add_u32 v30, v24, 7, v25")
    E("v_bfe_u32 v28, v0, 2, 2")
    E("v_bfe_u32 v24, v0, 4, 1"); E("v_and_b32 v25, 3, v0"); E("v_lshlrev_b32 v25, 3, v25"); E("v_lshl_add_u32 v27, v24, 5, v25")

def g_entry():
    L("L_g")
    E("s_load_dwordx2 s[20:21], s[0:1], 64")
    E("s_load_dwordx2 s[24:25], s[0:1], 32")
    E("s_load_dwordx2 s[32:33], s[0:1], 80")
    srd(20, 1605632); srd(24, 401408); srd(32, 1835008)
    E("s_lshl_b32 s48, s68, 2"); E("s_and_b32 s70, s69, 3"); E("s_add_u32 s48, s48, s70")
    E("s_lshr_b32 s49, s69, 2"); E("s_xor_b32 s49, s49, 7")
    E("s_cmp_ge_u32 s47, 14"); E("s_cbranch_scc1 L_gk")

def x_dma_addrs(rg="s45"):
    E("v_lshrrev_b32 v24, 4, v0")
    E("v_and_b32 v25, 7, v0"); E("v_xor_b32 v25, v25, v24"); E("v_lshlrev_b32 v25, 4, v25")
    E("v_lshrrev_b32 v26, 3, v0"); E("v_mul_u32_u24 v26, 896, v26")
    E("v_add_u32 v1, v26, v25")
    E("v_xor_b32 v25, 64, v25"); E("v_add_u32 v2, v26, v25"); E("v_add_u32 v2, 6144, v2")
    E("v_add_u32 v3, 12288, v1"); E("v_add_u32 v4, 12288, v2")
    E("s_lshl_b32 s52, s46, 2"); E(f"s_add_u32 s52, s52, {rg}"); E("s_mul_i32 s52, s52, 28672")
    E("s_lshl_b32 s55, s45, 12")

def prefill():
    E("s_lshl_b32 s65, s46, 2"); E("s_add_u32 s65, s65, s45"); E("s_lshl_b32 s65, s65, 4"); E("s_add_u32 s65, s65, s50"); E("s_lshl_b32 s65, s65, 11"); E(f"s_add_u32 s65, s65, {WS_O}")
    for r in range(4): E(f"v_mov_b32 v{56+r}, -1")
    for n in range(2): E(f"buffer_store_dwordx4 v[56:59], v29, {WS}, s65 offen offset:{1024*n} sc1")

def go_poll(label, sleep):
    E(f"s_mov_b32 s62, {SPIN}")
    L(label)
    E(f"buffer_load_dword v24, off, {DBG}, 0 offset:128 sc1"); E("s_waitcnt vmcnt(0)")
    E("v_readfirstlane_b32 s63, v24"); E("s_sub_u32 s62, s62, 1"); E("s_cmp_eq_u32 s62, 0"); E(f"s_cbranch_scc1 {label}_x")
    E("s_cmp_lg_u32 s63, 0"); E(f"s_cbranch_scc1 {label}_x"); E(f"s_sleep {sleep}"); E(f"s_branch {label}")
    L(label + "_x")

ASET = (14, 19, 88)
QACC, XF, WF = 32, 48, 64
PREG = 80
QS = 96; OA = 128; KB = 192; VB = 224
S0, S1 = 48, 64
VG = 93
def a_addr(idx, off):
    return ASET[off >> 16] + idx, off & 0xffff

def q_setup(rg="s45"):
    E("v_lshrrev_b32 v25, 2, v0"); E("v_mul_u32_u24 v25, 896, v25"); E("v_and_b32 v26, 3, v0"); E("v_lshl_add_u32 v13, v26, 4, v25")
    E("s_mul_i32 s57, s50, 56"); E("s_and_b32 s54, s57, 0xfffffff0"); E(f"s_mul_i32 s70, {rg}, 14336"); E("s_add_u32 s54, s54, s70")
    E("s_and_b32 s57, s57, 8")
    E(f"s_lshl_b32 s56, {rg}, 10")

def a_setup2(sets):
    lane_pieces()
    E("v_add_u32 v14, s55, v30")
    for s in range(1, 4): E(f"v_xor_b32 v{14+s}, {32*s}, v14")
    E("v_lshl_add_u32 v25, v31, 3, v28"); E("v_lshl_add_u32 v18, v25, 6, v27"); E("v_add_u32 v18, s57, v18")
    if sets:
        for k in range(5):
            E(f"v_add_u32 v{19+k}, 0x10000, v{14+k}"); E(f"v_add_u32 v{88+k}, 0x20000, v{14+k}")
    E(f"v_mov_b32 v24, {L_CNT}")
    E("v_mov_b32 v94, 0"); E("v_mov_b32 v95, 0")
    for o in (0, 8, 16, 24, 32): E(f"ds_write_b64 v24, v[94:95] offset:{o}")
    E("s_lshl_b32 s70, s45, 16"); E("s_add_u32 s40, s28, s70"); E("s_addc_u32 s41, s29, 0")

def a_inits():
    R = [f"v_mov_b32 v{r}, 0" for r in list(range(OA, OA+64)) + list(range(PREG, PREG+8)) + list(range(VB+24, VB+32))]
    R += ["v_and_b32 v94, 31, v0", "v_lshlrev_b32 v94, 2, v94"]
    return R

def a_dma_groups(pos):
    st = ((pos + 2) % F_NST) * F_STAGE
    kb = [f"s_xor_b32 s64, s58, {pos}"] if pos < 6 else ["s_mov_b32 s64, 6"]
    gs = []
    gs.append(kb + [f"s_add_u32 m0, s59, {st}", "s_lshl_b32 s65, s64, 7", "s_add_u32 s65, s65, s52"] + [f"buffer_load_dwordx4 v{1+n}, {X}, s65 offen offset:{1024*n} lds" for n in range(4)])
    gs.append([f"s_add_u32 m0, s51, {st+F_G}", "s_mul_i32 s65, s64, 229376", "s_add_u32 s65, s65, s53"] + [f"buffer_load_dwordx4 v{5+n}, {WG}, s65 offen offset:{1024*n} lds" for n in range(4)])
    gs.append([f"s_add_u32 m0, s51, {st+F_U}", "s_mul_i32 s66, s64, 57344"] + [f"buffer_load_dwordx4 v{9+n}, {WU}, s65 offen offset:{1024*n} lds" for n in range(4)])
    gs.append([f"s_add_u32 m0, s56, {st+F_Q}", "s_add_u32 s66, s66, s54", f"buffer_load_dwordx4 v13, {WQ}, s66 offen lds"])
    return gs

def kv_prologue_loads():
    E("s_lshl_b32 s70, s69, 2"); E("s_add_u32 s70, s70, s45"); E("s_lshl_b32 s70, s70, 11"); E("v_lshlrev_b32 v24, 7, v0")
    E("s_mov_b32 exec_lo, 0xffff"); E("s_mov_b32 exec_hi, 0")
    E(f"buffer_load_dword v95, v24, {WS}, s70 offen sc1")
    E("s_mov_b64 exec, -1")
    E("s_lshl_b32 s70, s46, 2"); E("s_add_u32 s70, s70, s45"); E("s_lshl_b32 s70, s70, 7"); E(f"s_add_u32 s70, s70, {WS_G}")
    E(f"buffer_load_dword v{VG}, v94, {WS}, s70 offen sc1")
    E("s_mov_b32 s60, 0")
    for t in range(3):
        tile_loads(t)

def tile_loads(u):
    E(f"buffer_load_dwordx4 {v(KB+8*u,4)}, v29, {KVW}, s60 offen sc1")
    E(f"buffer_load_dwordx4 {v(KB+8*u+4,4)}, v29, {KVW}, s60 offen offset:1024 sc1")
    E(f"buffer_load_dwordx4 {v(VB+8*u,4)}, v29, {KVW}, s60 offen offset:2048 sc1")
    E(f"buffer_load_dwordx4 {v(VB+8*u+4,4)}, v29, {KVW}, s60 offen offset:3072 sc1")
    E("s_add_u32 s60, s60, 4096")

def a_ffn():
    per = 13
    L("L_af")
    E("s_load_dwordx2 s[12:13], s[0:1], 48"); E("s_load_dwordx2 s[16:17], s[0:1], 56")
    E("s_mov_b32 s14, 1605632"); E("s_mov_b32 s18, 1605632")
    E("s_lshr_b32 s58, s69, 2"); E("s_lshr_b32 s70, s69, 3"); E("s_xor_b32 s58, s58, s70"); E("s_and_b32 s58, s58, 1")
    E("s_add_u32 s60, s45, s69"); E("s_and_b32 s60, s60, 3")
    E("s_and_b32 s70, s70, 2"); E("s_add_u32 s61, s45, s70"); E("s_and_b32 s61, s61, 3")
    E("s_lshl_b32 s59, s61, 12"); E("s_lshl_b32 s51, s60, 12")
    x_dma_addrs("s61")
    E("v_and_b32 v25, 15, v0"); E("v_lshlrev_b32 v26, 1, v24"); E("v_xor_b32 v25, v25, v26"); E("v_lshlrev_b32 v25, 4, v25")
    E("v_mul_u32_u24 v26, 3584, v24"); E("v_add_u32 v5, v26, v25"); E("v_xor_b32 v9, 128, v5")
    for n in range(1, 4):
        E(f"v_add_u32 v{5+n}, {13312*n}, v5"); E(f"v_add_u32 v{9+n}, {13312*n}, v9")
    E("s_mul_i32 s53, s60, 57344"); E("s_lshl_b32 s70, s47, 8"); E("s_add_u32 s53, s53, s70")
    q_setup("s60")
    E("s_waitcnt lgkmcnt(0)")
    stamp(7)
    for g in a_dma_groups(0):
        for l in g: E(l)
    E("s_barrier")
    for g in a_dma_groups(1):
        for l in g: E(l)
    a_setup2(True)
    issued = 2
    E(f"s_waitcnt vmcnt({per}) lgkmcnt(0)")
    E("s_barrier")
    stamp(1)
    inits = a_inits()
    for kb in range(7):
        st = ((kb + 2) % F_NST) * F_STAGE
        C(f"--- A block {kb}")
        if kb == 6:
            E("s_cmp_eq_u32 s61, 1"); E("s_cbranch_scc1 L_af_rdy")
            go_poll("L_af_poll", 4)
            kv_prologue_loads()
            L("L_af_rdy")
        for s in range(4):
            r, o = a_addr(s, st); E(f"ds_read_b128 {v(XF+4*s,4)}, v{r} offset:{o}")
            for q in range(2):
                r, o = a_addr(4, st + F_Q + s*1024 + q*256); E(f"ds_read_b64_tr_b16 {v(WF+4*s+2*q,2)}, v{r} offset:{o}")
        groups = a_dma_groups(kb + 2) if kb + 2 <= 6 else []
        if groups: issued += 1
        for s in range(4):
            if s < len(groups):
                for l in groups[s]: E(l)
            E(f"s_waitcnt lgkmcnt({9-3*s})")
            mfma(QACC, WF+4*s, XF+4*s, None if (kb == 0 and s == 0) else QACC)
        if 1 <= kb <= 4:
            n = (len(inits) + 3) // 4 if kb < 4 else len(inits)
            n = min(21, len(inits)) if kb < 4 else len(inits)
            for l in inits[:n]: E(l)
            inits = inits[n:]
        if kb == 5:
            E(f"buffer_load_dword v24, off, {DBG}, 0 sc1"); E("s_waitcnt vmcnt(0)")
            E("v_readfirstlane_b32 s63, v24"); E("s_mov_b32 s61, 0"); E("s_cmp_lt_u32 s63, 32"); E("s_cbranch_scc1 L_af_notyet")
            kv_prologue_loads(); E("s_mov_b32 s61, 1")
            L("L_af_notyet")
            E("s_barrier")
        elif kb < 5:
            E(f"s_waitcnt vmcnt({(issued-(kb+2))*per})")
            E("s_barrier")
    E(f"s_mov_b32 s58, {L_QX}")
    E("s_branch L_attn")

def a_kv():
    L("L_ak")
    E("s_load_dwordx2 s[16:17], s[0:1], 72")
    E("s_cmp_eq_u32 s47, 14"); E("s_cbranch_scc1 L_ak_k")
    E("s_load_dwordx2 s[12:13], s[0:1], 24"); E("s_branch L_ak_j")
    L("L_ak_k")
    E("s_load_dwordx2 s[12:13], s[0:1], 16")
    L("L_ak_j")
    E("s_mov_b32 s14, 25088"); E("s_mov_b32 s18, 896")
    E("s_lshl_b32 s55, s45, 12")
    q_setup()
    E("s_waitcnt lgkmcnt(0)")
    stamp(7)
    E(f"s_add_u32 s53, s56, {K_W}"); E("s_mov_b32 s70, s56")
    for n in range(7):
        E("s_mov_b32 m0, s53"); E("s_add_u32 s53, s53, 4096")
        E(f"buffer_load_dwordx4 v29, {WG}, s70 offen lds"); E("s_add_u32 s70, s70, 4096")
    E(f"s_mov_b32 m0, {K_GW}"); E("s_nop 0"); E(f"buffer_load_dwordx4 v29, {WU}, 0 offen lds")
    a_setup2(False)
    E(f"v_add_u32 v18, {K_W}, v18")
    E("s_waitcnt vmcnt(0) lgkmcnt(0)")
    E("s_barrier")
    stamp(1)
    for l in a_inits(): E(l)
    for r in range(QACC, QACC+16): E(f"v_mov_b32 v{r}, 0")
    E("s_barrier")
    E(f"s_add_u32 s53, s56, {K_W}")
    for n in range(7):
        E("s_mov_b32 m0, s53"); E("s_add_u32 s53, s53, 4096")
        E(f"buffer_load_dwordx4 v13, {WQ}, s54 offen lds"); E("s_add_u32 s54, s54, 57344")
    E("s_waitcnt vmcnt(0)")
    E("s_barrier")
    E("s_mov_b32 s59, 7")
    L("L_akloop")
    b0 = len(out)
    for s in range(4):
        E(f"ds_read_b128 {v(XF+4*s,4)}, v{14+s}")
        for q in range(2): E(f"ds_read_b64_tr_b16 {v(WF+4*s+2*q,2)}, v18 offset:{s*1024+q*256}")
    for s in range(4):
        E(f"s_waitcnt lgkmcnt({9-3*s})")
        mfma(QACC, WF+4*s, XF+4*s, QACC)
        E(f"v_add_u32 v{14+s}, 16384, v{14+s}")
    E("v_add_u32 v18, 4096, v18")
    E("s_sub_u32 s59, s59, 1"); E("s_cmp_lg_u32 s59, 0"); E("s_cbranch_scc1 L_akloop")
    loops.append(out[b0:])
    go_poll("L_ak_poll", 8)
    kv_prologue_loads()
    E(f"s_mov_b32 s58, {L_RED}")

def lds_spin(label, off, target, areg, treg, sleep=0):
    E(f"s_mov_b32 s62, {SPIN*8}")
    L(label)
    E(f"ds_read_b32 v{treg}, v{areg} offset:{off}"); E("s_waitcnt lgkmcnt(0)")
    E(f"v_readfirstlane_b32 s63, v{treg}"); E("s_sub_u32 s62, s62, 1"); E("s_cmp_eq_u32 s62, 0"); E(f"s_cbranch_scc1 {label}_x")
    if sleep:
        E(f"s_cmp_ge_u32 s63, {target}"); E(f"s_cbranch_scc1 {label}_x"); E(f"s_sleep {sleep}"); E(f"s_branch {label}")
    else:
        E(f"s_cmp_lt_u32 s63, {target}"); E(f"s_cbranch_scc1 {label}")
    L(label + "_x")

def owrites(s):
    R = []
    for q in range(4):
        if s == 2 and q == 3:
            R.append(f"ds_write_b32 v{1+s}, v{OA+16*s+12} offset:3072")
            R.append("s_mov_b32 exec_hi, 0")
        R.append(f"ds_write_b128 v{1+s}, {v(OA+16*s+4*q,4)} offset:{1024*q}")
    return R

def period(u, s):
    tau = 4*u + s
    Sc = (S0, S1)[tau & 1]; Sn = (S0, S1)[(tau+1) & 1]
    un, sn = ((tau+1)//4) % 4, (tau+1) % 4
    up, sp = ((tau-1)//4) % 4, (tau-1) % 4
    ul = (u + 3) % 4
    ex = [f"v_exp_f32 v{Sc+r}, v{Sc+r}" for r in range(16)]
    cv = [f"v_cvt_pk_bf16_f32 v{PREG+r}, v{Sc+2*r}, v{Sc+2*r+1}" for r in range(8)]
    if s == 0: Y = [[f"buffer_load_dwordx4 {v(KB+8*ul,4)}, v29, {KVW}, s60 offen sc1"], [f"buffer_load_dwordx4 {v(KB+8*ul+4,4)}, v29, {KVW}, s60 offen offset:1024 sc1"]]
    if s == 1: Y = [[f"buffer_load_dwordx4 {v(VB+8*ul,4)}, v29, {KVW}, s60 offen offset:2048 sc1"], [f"buffer_load_dwordx4 {v(VB+8*ul+4,4)}, v29, {KVW}, s60 offen offset:3072 sc1"]]
    if s == 2: Y = [["s_add_u32 s60, s60, 4096"], ["s_waitcnt vmcnt(8)"]]
    if s == 3: Y = [["s_nop 0"], ["s_nop 0"]]
    if not SPREAD:
        if s == 0: Y = [["s_nop 0"], ["s_nop 0"]]
        if s == 1: Y = [[f"buffer_load_dwordx4 {v(KB+8*ul,4)}, v29, {KVW}, s60 offen sc1", f"buffer_load_dwordx4 {v(KB+8*ul+4,4)}, v29, {KVW}, s60 offen offset:1024 sc1"] + Y[0] + Y[1], ["s_nop 0"]]
    if u == 2 and s == 3: Y = [["s_sub_u32 s59, s59, 1"], ["s_nop 0"]]
    if u == 3 and s == 2:
        Y = [["s_add_u32 s60, s60, 4096", "s_cmp_lg_u32 s59, 0"], ["s_waitcnt vmcnt(8)", "s_cbranch_scc1 L_ow2"] + owrites(0) + ["L_ow2:"]]
    if u == 3 and s == 3:
        Y = [["s_cbranch_scc1 L_ow3"] + owrites(1) + ["L_ow3:"], ["s_nop 0"]]
    def emit(ls):
        for l in ls:
            if l == "s_nop 0" and not YNOP: continue
            if l.endswith(":"): L(l[:-1])
            else: E(l)
    mfma(Sn, KB+8*un, QS+8*sn)
    emit(ex[0:3])
    mfma(Sn, KB+8*un+4, QS+8*sn+4, Sn)
    emit(ex[3:6])
    mfma(OA+16*sp, VB+8*up, PREG, OA+16*sp)
    emit(ex[6:9])
    mfma(OA+16*sp, VB+8*up+4, PREG+4, OA+16*sp)
    emit(ex[9:12]); emit(Y[0]); emit(ex[12:15]); emit(Y[1]); emit(ex[15:16]); emit(cv)

def attention():
    L("L_attn")
    stamp(2)
    E("s_setprio 3")
    C("Q epilogue -> slot 3")
    Q3 = QS + 24
    E(f"s_mov_b32 s64, {QSCALE}"); E(f"s_mov_b32 s65, {QSCALE}")
    E("v_cmp_eq_u32 vcc, 0, v31")
    E("s_lshl_b32 s66, s45, 11"); E("s_add_u32 s66, s66, s58"); E("v_add_u32 v24, s66, v29")
    E(f"v_mov_b32 v25, {L_CNT}"); E("v_mov_b32 v26, 1")
    nop(3)
    for r in range(0, 16, 2): E(f"v_pk_mul_f32 {v(QACC+r,2)}, s[64:65], {v(QACC+r,2)}")
    for r in range(8): E(f"v_cvt_pk_bf16_f32 v{Q3+r}, v{QACC+2*r}, v{QACC+2*r+1}")
    E(f"v_cndmask_b32 v{Q3+6}, 0, v{Q3+6}, vcc"); E(f"v_cndmask_b32 v{Q3+7}, 0, v{Q3+7}, vcc")
    E(f"ds_write_b128 v24, {v(Q3,4)}")
    E("s_waitcnt vmcnt(10)")
    mfma(S0, KB, Q3); mfma(S0, KB+4, Q3+4, S0)
    for s in range(3):
        E(f"s_add_u32 s65, s45, {1+s}"); E("s_and_b32 s65, s65, 3"); E("s_lshl_b32 s65, s65, 11"); E("s_add_u32 s65, s65, s58")
        E(f"v_add_u32 v{1+s}, s65, v29")
    E(f"v_max3_f32 v4, v{S0}, v{S0+1}, v{S0+2}"); E(f"v_max3_f32 v5, v{S0+3}, v{S0+4}, v{S0+5}")
    E(f"v_max3_f32 v4, v4, v{S0+6}, v{S0+7}"); E(f"v_max3_f32 v5, v5, v{S0+8}, v{S0+9}")
    E(f"v_max3_f32 v4, v4, v{S0+10}, v{S0+11}"); E(f"v_max3_f32 v5, v5, v{S0+12}, v{S0+13}")
    E(f"v_max3_f32 v4, v4, v{S0+14}, v{S0+15}")
    E("v_max_f32 v4, v4, v5")
    E("v_mov_b32 v5, v4"); nop(2)
    E("v_permlane32_swap_b32 v4, v5"); nop(1)
    E("v_max_f32 v4, v4, v5")
    E("v_cvt_pk_bf16_f32 v4, -v4, 0")
    E(f"v_cndmask_b32 v{Q3+6}, v4, v{Q3+6}, vcc")
    E(f"ds_write_b128 v24, {v(Q3+4,4)} offset:1024")
    E("s_mov_b64 exec, 1")
    E(f"ds_add_u32 v25, v26 offset:{QC}")
    E("s_mov_b64 exec, -1")
    lds_spin("L_qspin", QC, 4, 25, 5)
    for s in range(3):
        E(f"ds_read_b128 {v(QS+8*s,4)}, v{1+s}"); E(f"ds_read_b128 {v(QS+8*s+4,4)}, v{1+s} offset:1024")
    E("s_mov_b64 exec, 1")
    E(f"ds_add_u32 v25, v26 offset:{QD}")
    E("s_mov_b64 exec, -1")
    E("s_waitcnt lgkmcnt(5)")
    mfma(S0, KB, QS); mfma(S0, KB+4, QS+4, S0)
    for s in range(3):
        E(f"s_add_u32 s65, s45, {1+s}"); E("s_and_b32 s65, s65, 3"); E("s_mul_i32 s65, s65, 12288"); E(f"s_add_u32 s65, s65, {L_RED+4096*s}")
        E(f"v_add_u32 v{1+s}, s65, v29")
    E("s_mul_i32 s65, s45, 12288"); E(f"s_add_u32 s65, s65, {L_RED}"); E("v_add_u32 v4, s65, v29")
    E("s_lshl_b32 s65, s46, 2"); E("s_add_u32 s65, s65, s45"); E("s_lshl_b32 s65, s65, 4"); E("s_add_u32 s65, s65, s50"); E("s_lshl_b32 s65, s65, 11"); E(f"s_add_u32 s65, s65, {WS_O}")
    E(f"v_mov_b32 v7, {f32bits(2.0**100)}"); E(f"v_mov_b32 v8, {f32bits(2.0**-60)}"); E("v_mov_b32 v9, 0x7f800000")
    E("s_waitcnt vmcnt(8) lgkmcnt(0)")
    E("s_mov_b32 s59, 4")
    E("s_setprio 1")
    stamp(3)
    out.append(".p2align 6")
    L("L_aloop")
    b0 = len(out)
    for u in range(4):
        for s in range(4): period(u, s)
    E("s_cbranch_scc1 L_aloop")
    loops.append(out[b0:])
    stamp(4)
    E("s_setprio 3")
    O3 = OA + 48
    mfma(O3, VB+24, PREG, O3); mfma(O3, VB+28, PREG+4, O3)
    for l in owrites(2): E(l)
    E("s_mov_b32 exec_lo, 1")
    E(f"ds_add_u32 v25, v26 offset:{RC}"); E("s_mov_b64 exec, -1")
    E("s_waitcnt vmcnt(0)")
    lds_spin("L_rspin", RC, 4, 25, 5)
    stamp(5)
    for q in range(12): E(f"ds_read_b128 {v(KB+4*q,4)}, v4 offset:{1024*q}")
    E("v_cmp_eq_u32 vcc, 0, v31")
    for s in range(3):
        E(f"s_waitcnt lgkmcnt({8-4*s})")
        for r in range(0, 16, 2): E(f"v_pk_add_f32 {v(O3+r,2)}, {v(O3+r,2)}, {v(KB+16*s+r,2)}")
    E(f"v_mov_b32 v4, v{O3+12}"); E(f"v_mov_b32 v5, v{O3+12}")
    for r in (13, 14, 15): E(f"v_cndmask_b32 v{O3+r}, 0, v{O3+r}, vcc")
    E("v_permlane32_swap_b32 v4, v5")
    E(f"v_pk_add_f32 v[10:11], {v(O3,2)}, {v(O3+2,2)}"); E(f"v_pk_add_f32 v[12:13], {v(O3+4,2)}, {v(O3+6,2)}")
    E(f"v_pk_add_f32 v[10:11], v[10:11], {v(O3+8,2)}"); E(f"v_pk_add_f32 v[12:13], v[12:13], {v(O3+10,2)}")
    E(f"v_pk_add_f32 v[10:11], v[10:11], {v(O3+12,2)}"); E(f"v_pk_add_f32 v[12:13], v[12:13], {v(O3+14,2)}")
    E("v_cmp_ge_f32 s[66:67], v7, v5"); E("v_cmp_le_f32 s[68:69], v8, v5")
    E("v_pk_add_f32 v[10:11], v[10:11], v[12:13]")
    E("v_rcp_f32 v4, v5")
    E("v_add_f32 v6, v10, v11")
    E("v_cmp_gt_f32 s[70:71], v9, |v6|")
    E(f"v_mul_f32 v4, v{VG}, v4")
    E("s_and_b64 s[66:67], s[66:67], s[68:69]"); E("s_and_b64 s[66:67], s[66:67], s[70:71]")
    E("s_cmp_eq_u64 s[66:67], -1"); E("s_cbranch_scc0 L_fb")
    L("L_norm")
    E("v_mov_b32 v5, v4")
    for r in range(0, 16, 2): E(f"v_pk_mul_f32 {v(O3+r,2)}, v[4:5], {v(O3+r,2)}")
    for r in range(8): E(f"v_cvt_pk_bf16_f32 v{PREG+r}, v{O3+2*r}, v{O3+2*r+1}")
    for r in range(4): E(f"v_min_u32 v{PREG+r}, -2, v{PREG+r}")
    E(f"buffer_store_dwordx4 {v(PREG,4)}, v29, {WS}, s65 offen sc1")
    E(f"v_cndmask_b32 v{PREG+6}, 0, v{PREG+6}, vcc"); E(f"v_cndmask_b32 v{PREG+7}, 0, v{PREG+7}, vcc")
    for r in range(4, 8): E(f"v_min_u32 v{PREG+r}, -2, v{PREG+r}")
    E(f"buffer_store_dwordx4 {v(PREG+4,4)}, v29, {WS}, s65 offen offset:1024 sc1")
    E("s_mov_b64 exec, 1"); E(f"ds_add_u32 v25, v26 offset:{AD}"); E("s_mov_b64 exec, -1")
    stamp(6)
    stamp_flush("a")
    E("s_endpgm")
    L("L_fb")
    E("v_cmp_eq_u32 vcc, 0, v31"); E("v_mov_b32 v4, 0xff800000"); E("s_mov_b32 s60, 0")
    E(f"v_cndmask_b32 v{Q3+6}, 0, v{Q3+6}, vcc")
    L("L_fb1")
    E(f"buffer_load_dwordx4 {v(KB,4)}, v29, {WS}, s60 offen sc1"); E(f"buffer_load_dwordx4 {v(KB+4,4)}, v29, {WS}, s60 offen offset:1024 sc1")
    E("s_waitcnt vmcnt(0)")
    mfma(S0, KB, Q3); mfma(S0, KB+4, Q3+4, S0); nop(12)
    for r in range(0, 16, 2): E(f"v_max3_f32 v4, v4, v{S0+r}, v{S0+r+1}")
    E("s_add_u32 s60, s60, 4096"); E("s_cmp_lt_u32 s60, 0x40000"); E("s_cbranch_scc1 L_fb1")
    E("v_mov_b32 v5, v4"); nop(2); E("v_permlane32_swap_b32 v4, v5"); nop(1); E("v_max_f32 v4, v4, v5")
    for r in range(16): E(f"v_mov_b32 v{O3+r}, 0")
    E("s_mov_b32 s60, 0")
    L("L_fb2")
    E(f"buffer_load_dwordx4 {v(KB,4)}, v29, {WS}, s60 offen sc1"); E(f"buffer_load_dwordx4 {v(KB+4,4)}, v29, {WS}, s60 offen offset:1024 sc1")
    E(f"buffer_load_dwordx4 {v(VB,4)}, v29, {WS}, s60 offen offset:2048 sc1"); E(f"buffer_load_dwordx4 {v(VB+4,4)}, v29, {WS}, s60 offen offset:3072 sc1")
    E("s_waitcnt vmcnt(0)")
    mfma(S0, KB, Q3); mfma(S0, KB+4, Q3+4, S0); nop(12)
    for r in range(16): E(f"v_sub_f32 v{S0+r}, v{S0+r}, v4")
    for r in range(16): E(f"v_exp_f32 v{S0+r}, v{S0+r}")
    nop(1)
    for r in range(8): E(f"v_cvt_pk_bf16_f32 v{PREG+r}, v{S0+2*r}, v{S0+2*r+1}")
    nop(2)
    mfma(O3, VB, PREG, O3); mfma(O3, VB+4, PREG+4, O3)
    E("s_add_u32 s60, s60, 4096"); E("s_cmp_lt_u32 s60, 0x40000"); E("s_cbranch_scc1 L_fb2")
    nop(12)
    E(f"v_mov_b32 v4, v{O3+12}"); E(f"v_mov_b32 v5, v{O3+12}"); nop(2)
    E("v_permlane32_swap_b32 v4, v5"); nop(1)
    E("v_rcp_f32 v4, v5"); nop(1)
    E(f"v_mul_f32 v4, v{VG}, v4")
    E("s_branch L_norm")

def d_setup():
    E("s_add_u32 s13, s45, s49"); E("s_add_u32 s13, s13, s48"); E("s_and_b32 s13, s13, 3"); E("s_lshl_b32 s13, s13, 1")
    E("s_lshr_b32 s14, s49, 2"); E("s_lshr_b32 s70, s48, 1"); E("s_xor_b32 s14, s14, s70"); E("s_and_b32 s14, s14, 1")
    E("s_add_u32 s13, s13, s14"); E("s_xor_b32 s14, s13, 1")
    E("s_and_b32 s70, s49, 1"); E("s_lshl_b32 s70, s70, 1"); E("s_xor_b32 s8, s45, s70")
    E("s_and_b32 s9, s8, 1"); E("s_lshr_b32 s10, s8, 1"); E("s_lshl_b32 s12, s8, 11")
    E("v_lshrrev_b32 v17, 3, v0"); E("v_mul_u32_u24 v17, 896, v17")
    E("v_bfe_u32 v18, v0, 4, 1"); E("v_lshlrev_b32 v18, 2, v18"); E("v_and_b32 v19, 7, v0"); E("v_xor_b32 v18, v18, v19")
    E("v_lshl_add_u32 v32, v18, 4, v17"); E("v_add_u32 v33, 6144, v32")
    E("v_lshl_add_u32 v17, v31, 2, v28"); E("v_lshl_add_u32 v17, v17, 7, v27")
    E("v_lshrrev_b32 v18, 1, v28"); E("v_xor_b32 v18, s10, v18"); E("v_lshl_add_u32 v17, v18, 6, v17")
    E("v_add_u32 v34, s12, v17"); E("v_xor_b32 v35, 64, v34"); E("v_add_u32 v36, 0x10000, v34"); E("v_add_u32 v37, 0x10000, v35")
    E("s_lshl_b32 s70, s10, 12"); E("v_add_u32 v38, s70, v17"); E("v_xor_b32 v39, 64, v38")
    E("s_lshl_b32 s11, s48, 1"); E("s_add_u32 s11, s11, s9"); E("s_xor_b32 s70, s11, 1")
    E("s_mul_i32 s71, s11, 114688"); E(f"s_add_u32 s71, s71, {WS_H}"); E("v_add_u32 v40, s71, v29")
    E("s_mul_i32 s71, s70, 114688"); E(f"s_add_u32 s71, s71, {WS_H}"); E("v_add_u32 v41, s71, v29")
    E("s_lshl_b32 s15, s49, 7"); E("s_mul_i32 s16, s13, 200704"); E("s_add_u32 s16, s16, s15"); E("s_mov_b32 s17, s12")
    E("v_and_b32 v19, 31, v0"); E("v_lshlrev_b32 v42, 2, v19")
    E("v_min_u32 v43, 15, v0"); E("v_lshlrev_b32 v43, 7, v43")
    E("v_mul_u32_u24 v44, 3584, v0")
    E("s_lshl_b32 s70, s11, 4"); E("s_lshl_b32 s71, s10, 3"); E("s_add_u32 s70, s70, s71"); E("s_lshl_b32 s70, s70, 11"); E(f"s_add_u32 s70, s70, {WS_O}")
    E("v_add_u32 v45, s70, v29"); E("v_add_u32 v46, 1024, v45")
    E("v_add_u32 v47, s12, v29"); E("v_add_u32 v47, 0x10000, v47"); E("v_xor_b32 v48, 2048, v47"); E("v_xor_b32 v49, 4096, v47")
    E("v_mul_u32_u24 v50, 896, v19"); E("v_lshl_add_u32 v50, v31, 4, v50")
    E(f"v_mov_b32 v25, {L_CNT}"); E("v_mov_b32 v26, 1")

def wd_slot():
    return ["s_mov_b32 m0, s17", "s_add_u32 s17, s17, 8192", f"buffer_load_dwordx4 v32, {WD}, s16 offen lds",
            f"buffer_load_dwordx4 v33, {WD}, s16 offen offset:1024 lds", "s_add_u32 s16, s16, 14336"]

def g_ffn():
    L("L_gf")
    ACC = 128; GX = 64; GW_ = 80
    E("s_barrier")
    lane_pieces()
    E("s_and_b32 s52, s45, 1"); E("s_lshr_b32 s53, s45, 1")
    E("s_lshl_b32 s70, s52, 13"); E("v_add_u32 v1, s70, v30")
    for s in range(1, 4): E(f"v_xor_b32 v{1+s}, {32*s}, v1")
    E("v_bfe_u32 v17, v0, 4, 1")
    E("v_lshl_add_u32 v18, v17, 2, v28")
    E("s_lshl_b32 s70, s53, 2"); E("v_xor_b32 v18, s70, v18"); E("v_lshlrev_b32 v18, 5, v18")
    E("v_and_b32 v19, 3, v0"); E("v_lshl_add_u32 v18, v19, 3, v18")
    E("v_lshl_add_u32 v19, v31, 3, v28"); E("v_lshl_add_u32 v18, v19, 8, v18")
    E("v_lshl_add_u32 v18, v17, 14, v18"); E(f"v_add_u32 v5, {F_G}, v18")
    for t in range(1, 4): E(f"v_xor_b32 v{5+t}, {32*t}, v5")
    for k in range(8): E(f"v_add_u32 v{9+k}, {2*F_STAGE}, v{1+k}")
    for r in range(ACC, ACC+128): E(f"v_mov_b32 v{r}, 0")
    d_setup()
    E("s_cmp_eq_u32 s49, 7"); E("s_cselect_b32 s18, 99, 6")
    E("s_mov_b32 s54, 0"); E(f"s_mov_b32 s55, {2*F_STAGE}")
    E("s_waitcnt lgkmcnt(0)")
    prefill()
    E("s_barrier")
    stamp(1)
    def reads(s):
        st = s & 1
        R = []
        R.append(f"ds_read_b128 {v(GX+8*st,4)}, v{9+s}")
        for q in range(2): R.append(f"ds_read_b64_tr_b16 {v(GW_+16*st+2*q,2)}, v13 offset:{4096*s+1024*q}")
        R.append(f"ds_read_b128 {v(GX+8*st+4,4)}, v{9+s} offset:4096")
        for t in range(1, 4):
            for q in range(2): R.append(f"ds_read_b64_tr_b16 {v(GW_+16*st+4*t+2*q,2)}, v{13+t} offset:{4096*s+1024*q}")
        return R
    for l in reads(0): E(l)
    out.append(".p2align 6")
    L("L_gfloop")
    b0 = len(out)
    for s in range(4):
        st = s & 1
        E("s_waitcnt lgkmcnt(0)")
        R = reads((s+1) % 4)
        n = 0
        for t in range(4):
            for a in range(2):
                d = ACC + 64*a + 16*t
                mfma(d, GW_+16*st+4*t, GX+8*st+4*a, d)
                if s == 3 and n == 0:
                    E("s_cmp_lg_u32 s54, 6"); E("s_cbranch_scc1 L_gf_bar"); E("s_setprio 3"); E("s_branch L_gf_nobar")
                    L("L_gf_bar"); E("s_barrier"); L("L_gf_nobar")
                for l in R[:2]: E(l)
                R = R[2:]
                if s in (1, 2) and n == 4:
                    E("s_cmp_lt_u32 s54, s18"); E(f"s_cbranch_scc1 L_gf_nd{s}")
                    for l in wd_slot() + wd_slot(): E(l)
                    L(f"L_gf_nd{s}")
                if s == 2 and n == 5:
                    E(f"s_add_u32 s55, s55, {F_STAGE}"); E(f"s_cmp_eq_u32 s55, {3*F_STAGE}"); E("s_cselect_b32 s55, 0, s55")
                if s == 2 and n >= 6:
                    for k in range(4*(n-6), 4*(n-6)+4): E(f"v_add_u32 v{9+k}, s55, v{1+k}")
                n += 1
    E("s_add_u32 s54, s54, 1"); E("s_cmp_lt_u32 s54, 7"); E("s_cbranch_scc1 L_gfloop")
    loops.append(out[b0:])
    stamp(2)
    E("s_lshl_b32 s56, s46, 2"); E("s_lshl_b32 s70, s52, 1"); E("s_add_u32 s56, s56, s70"); E("s_mul_i32 s56, s56, 114688")
    E("s_lshl_b32 s70, s47, 13"); E("s_add_u32 s56, s56, s70"); E("s_lshl_b32 s70, s53, 12"); E("s_add_u32 s56, s56, s70"); E(f"s_add_u32 s56, s56, {WS_H}")
    E("s_add_u32 s57, s56, 114688")
    E("s_waitcnt lgkmcnt(0)")
    for t in range(4):
        for a in range(2):
            d = ACC + 64*a + 16*t
            for r in range(0, 8, 2): E(f"v_pk_mul_f32 {v(d+r,2)}, {v(d+r,2)}, {v(d+8+r,2)}")
            for r in range(4): E(f"v_cvt_pk_bf16_f32 v{d+8+r}, v{d+2*r}, v{d+2*r+1}")
            E(f"buffer_store_dwordx4 {v(d+8,4)}, v29, {WS}, s{56+a} offen offset:{1024*t} sc1")
    E("s_mov_b32 s19, 8")
    E("s_branch L_gpub")

def g_kv():
    L("L_gk")
    D1, D2, D3 = 128, 128, 160
    GX = 64; GWf = 80; GG = 96
    x_dma_addrs()
    E("s_mov_b32 s53, s55")
    E("s_waitcnt lgkmcnt(0)")
    def xblk():
        E("s_mov_b32 m0, s53"); E("s_add_u32 s53, s53, 16384")
        for n in range(4): E(f"buffer_load_dwordx4 v{1+n}, {X}, s52 offen offset:{1024*n} lds")
        E("s_add_u32 s52, s52, 128")
    for kb in range(3): xblk()
    lane_pieces()
    E("v_add_u32 v9, s55, v30")
    for s in range(1, 4): E(f"v_xor_b32 v{9+s}, {32*s}, v9")
    E("v_lshl_add_u32 v17, v31, 3, v28"); E("v_mul_u32_u24 v17, 56, v17"); E("v_add_u32 v13, v17, v27"); E(f"v_add_u32 v13, {K_W}, v13")
    E("v_lshlrev_b32 v6, 4, v31"); E(f"v_add_u32 v6, {K_GW}, v6")
    for r in range(16): E(f"v_mov_b32 v{D1+r}, 0"); E(f"v_mov_b32 v{D3+r}, 0")
    E("s_mov_b32 s54, 0"); E("s_mov_b32 s59, 0x10000000")
    E("s_barrier")
    stamp(1)
    L("L_gkloop")
    b0 = len(out)
    E("s_cmp_ge_u32 s54, 4"); E("s_cbranch_scc1 L_gk_dum")
    xblk()
    E("s_branch L_gk_rd")
    L("L_gk_dum")
    for n in range(4): E(f"buffer_load_dword v40, off, {X}, s59")
    L("L_gk_rd")
    E("s_waitcnt vmcnt(12)")
    for s in range(4):
        E(f"ds_read_b128 {v(GX+4*s,4)}, v{9+s}")
        for q in range(2): E(f"ds_read_b64_tr_b16 {v(GWf+4*s+2*q,2)}, v13 offset:{896*s+224*q}")
    E("s_cmp_eq_u32 s47, 15"); E("s_cbranch_scc1 L_gk_lv")
    for s in range(4):
        E(f"s_waitcnt lgkmcnt({9-2*s})")
        mfma(D1, GWf+4*s, GX+4*s, D1)
        E(f"ds_read_b128 {v(GG+4*s,4)}, v6 offset:{32*s}")
    for s in range(4):
        E(f"s_waitcnt lgkmcnt({3-s})")
        mfma(D3, GG+4*s, GX+4*s, D3)
    E("s_branch L_gk_le")
    L("L_gk_lv")
    for s in range(4):
        E(f"s_waitcnt lgkmcnt({9-3*s})")
        mfma(D2, GX+4*s, GWf+4*s, D2)
    L("L_gk_le")
    for s in range(4): E(f"v_add_u32 v{9+s}, 16384, v{9+s}")
    E("v_add_u32 v13, 3584, v13"); E("v_add_u32 v6, 128, v6")
    E("s_add_u32 s54, s54, 1"); E("s_cmp_lt_u32 s54, 7"); E("s_cbranch_scc1 L_gkloop")
    loops.append(out[b0:])
    E("s_barrier")
    stamp(2)
    E("s_lshl_b32 s56, s46, 2"); E("s_add_u32 s56, s56, s45"); E("s_lshl_b32 s57, s56, 7"); E("s_lshl_b32 s56, s56, 12"); E(f"s_add_u32 s57, s57, {WS_G}")
    E("v_and_b32 v17, 31, v0")
    nop(6)
    E("s_cmp_eq_u32 s47, 15"); E("s_cbranch_scc1 L_gk_v")
    E("v_cmp_eq_u32 vcc, 0, v31")
    for r in range(8): E(f"v_cvt_pk_bf16_f32 v{32+r}, v{D1+2*r}, v{D1+2*r+1}")
    E("v_mov_b32 v18, 0x3f80")
    E("v_cndmask_b32 v38, v18, v38, vcc"); E("v_cndmask_b32 v39, 0, v39, vcc")
    E(f"buffer_store_dwordx4 v[32:35], v29, {WS}, s56 offen sc1")
    E(f"buffer_store_dwordx4 v[36:39], v29, {WS}, s56 offen offset:1024 sc1")
    E(f"v_mul_f32 v18, {f32bits(-math.log2(math.e)):#x}, v{D3}")
    E("v_exp_f32 v18, v18"); E("v_lshlrev_b32 v17, 2, v17")
    E("v_add_f32 v18, 1.0, v18"); E("v_rcp_f32 v18, v18")
    E("s_mov_b32 exec_hi, 0")
    E(f"buffer_store_dword v18, v17, {WS}, s57 offen sc1")
    E("s_mov_b64 exec, -1")
    E("s_branch L_gk_pub")
    L("L_gk_v")
    E("v_cmp_gt_u32 vcc, 28, v17"); E("v_cmp_eq_u32 s[66:67], 28, v17")
    E("v_mov_b32 v18, 0x3f803f80"); E("v_mov_b32 v19, 0")
    E("v_cndmask_b32 v18, v19, v18, s[66:67]")
    for r in range(8): E(f"v_cvt_pk_bf16_f32 v{32+r}, v{D2+2*r}, v{D2+2*r+1}")
    for r in range(8): E(f"v_cndmask_b32 v{32+r}, v18, v{32+r}, vcc")
    E(f"buffer_store_dwordx4 v[32:35], v29, {WS}, s56 offen offset:2048 sc1")
    E(f"buffer_store_dwordx4 v[36:39], v29, {WS}, s56 offen offset:3072 sc1")
    L("L_gk_pub")
    E("s_lshl_b32 s70, s47, 2"); E("s_add_u32 s70, s70, s45"); E("s_cmp_lg_u32 s70, 56"); E("s_cbranch_scc1 L_gk_nz")
    E("v_lshlrev_b32 v41, 7, v0"); E("v_mov_b32 v42, 0"); E("s_lshl_b32 s70, s46, 11"); E(f"s_add_u32 s70, s70, {WS_HF}")
    E("s_mov_b32 exec_lo, 0xffff"); E("s_mov_b32 exec_hi, 0")
    E(f"buffer_store_dword v42, v41, {WS}, s70 offen sc1")
    E("s_mov_b64 exec, -1")
    L("L_gk_nz")
    E(f"v_mov_b32 v25, {L_CNT}"); E("v_mov_b32 v26, 1")
    E("s_waitcnt vmcnt(0)")
    E("s_mov_b64 exec, 1")
    E(f"ds_add_rtn_u32 v24, v25, v26 offset:{KC}"); E("s_waitcnt lgkmcnt(0)")
    E("v_readfirstlane_b32 s63, v24"); nop(1)
    E("s_cmp_lg_u32 s63, 3"); E("s_cbranch_scc1 L_gk_nosig")
    E("v_mov_b32 v24, 1")
    E(f"buffer_atomic_add v24, off, {DBG}, 0 sc0 sc1"); E("s_waitcnt vmcnt(0)")
    E("v_readfirstlane_b32 s63, v24"); nop(1)
    E("s_cmp_lg_u32 s63, 31"); E("s_cbranch_scc1 L_gk_nosig")
    E(f"buffer_store_dword v26, off, {DBG}, 0 offset:128 sc1")
    L("L_gk_nosig")
    E("s_mov_b64 exec, -1")
    stamp(5)
    prefill()
    d_setup()
    E("s_mov_b32 s19, 12")
    E("s_barrier")
    lds_spin("L_gk_s1", QD, 4, 25, 24, 4)
    L("L_gpub")
    E("s_setprio 3")
    lds_spin("L_g_go", QC, 1, 25, 24, 2)
    E("s_waitcnt vmcnt(0)")
    E("s_mov_b64 exec, 1")
    E(f"ds_add_rtn_u32 v24, v25, v26 offset:{GC}"); E("s_waitcnt lgkmcnt(0)")
    E("v_readfirstlane_b32 s63, v24")
    E("s_lshl_b32 s70, s46, 4"); E("s_add_u32 s70, s70, s47"); E("s_lshl_b32 s70, s70, 7"); E(f"s_add_u32 s70, s70, {WS_HF}")
    E("s_cmp_lg_u32 s63, 3"); E("s_cbranch_scc1 L_g_nosig")
    E(f"buffer_store_dword v26, off, {WS}, s70 sc1")
    L("L_g_nosig")
    E("s_mov_b64 exec, -1")

def g_down():
    L("L_gd")
    stamp(3)
    E("s_cmp_eq_u32 s49, 7"); E("s_cbranch_scc1 L_gend")
    HB = 64; WFR = 176; ACC = 192
    E("s_setprio 0")
    L("L_gd_wd")
    E("s_waitcnt vmcnt(6)")
    for l in wd_slot(): E(l)
    E("s_sub_u32 s19, s19, 1"); E("s_cmp_lg_u32 s19, 0"); E("s_cbranch_scc1 L_gd_wd")
    E("s_and_b32 s70, s48, 3"); E("s_mul_i32 s70, s70, 896")
    E("s_mul_i32 s71, s8, 100352"); E("s_add_u32 s70, s70, s71"); E("s_add_u32 s70, s70, s15")
    E("s_mov_b32 exec_lo, 0xfffffff"); E("s_mov_b32 exec_hi, 0")
    E(f"buffer_load_dword v10, v44, {WO}, s70 offen")
    E("s_mov_b64 exec, -1")
    E("s_lshl_b32 s70, s11, 7"); E(f"s_add_u32 s70, s70, {WS_G}")
    E(f"buffer_load_dword v9, v42, {WS}, s70 offen sc1")
    E("s_lshr_b32 s70, s48, 1"); E("s_lshl_b32 s70, s70, 11"); E(f"s_add_u32 s70, s70, {WS_HF}")
    E("s_setprio 3")
    lds_spin("L_gd_s1", QD, 4, 25, 24, 2)
    lds_spin("L_gd_s2", GC, 4, 25, 24, 2)
    for k in range(2):
        for l in wd_slot(): E(l)
    E(f"s_mov_b32 s62, {SPIN}")
    L("L_gd_poll")
    E(f"buffer_load_dword v18, v43, {WS}, s70 offen sc1"); E("s_waitcnt vmcnt(0)")
    E("v_cmp_ne_u32 vcc, 1, v18"); E("s_sub_u32 s62, s62, 1"); E("s_cmp_eq_u32 s62, 0"); E("s_cbranch_scc1 L_gd_go")
    E("s_cbranch_vccz L_gd_go"); E("s_sleep 6"); E("s_branch L_gd_poll")
    L("L_gd_go")
    stamp(4)
    E("s_setprio 0")
    NH = DD + 1
    ops = []
    E("s_mul_i32 s59, s13, 14336")
    E("s_mul_i32 s16, s14, 200704"); E("s_add_u32 s16, s16, s15")
    def hload(s):
        if s == 14: E("s_mul_i32 s59, s14, 14336")
        o = (s % 14) % 4
        r = HB + 8*(s % NH)
        E(f"buffer_load_dwordx4 {v(r,4)}, v40, {WS}, s59 offen offset:{1024*o} sc1"); E(f"buffer_load_dwordx4 {v(r+4,4)}, v41, {WS}, s59 offen offset:{1024*o} sc1")
        if o == 3: E("s_add_u32 s59, s59, 4096")
        ops.extend([("h", s)]*2)
    def younger(tags):
        idx = [k for k, t in enumerate(ops) if t in tags]
        return len(ops) - 1 - max(idx) if idx else None
    def wreads(s):
        st = s & 1; sl = s % 14
        return [f"ds_read_b64_tr_b16 {v(WFR+8*st+4*ct+2*q,2)}, v{34+ct+2*(sl>>3)} offset:{8192*(sl&7)+1024*q}" for ct in range(2) for q in range(2)]
    for s in range(DD): hload(s)
    for l in wreads(0): E(l)
    for s in range(28):
        st = s & 1
        n = younger({("h", s), ("w", s+1)})
        E(f"s_waitcnt vmcnt({n}) lgkmcnt(0)")
        R = wreads(s+1) if s < 27 else []
        for a in range(2):
            for ct in range(2):
                d = ACC + 32*a + 16*ct
                mfma(d, WFR+8*st+4*ct, HB+8*(s % NH)+4*a, None if s == 0 else d)
                if R: E(R.pop(0))
                if a == 0 and ct == 1 and s + DD < 28: hload(s + DD)
        if s == 14:
            E("s_mul_i32 s16, s8, 100352"); E("s_add_u32 s16, s16, s15")
        if s < 22:
            srd_ = WD if s < 14 else WO
            E(f"s_add_u32 m0, s12, {8192*(s % 14)}"); E("s_nop 0")
            E(f"buffer_load_dwordx4 v32, {srd_}, s16 offen lds"); E(f"buffer_load_dwordx4 v33, {srd_}, s16 offen offset:1024 lds")
            E(f"s_add_u32 s16, s16, {14336 if (s < 14 or s % 2 == 0) else 10752}")
            ops.extend([("w", s+14)]*2)
    stamp(5)
    OF = HB + 48
    E("s_setprio 3")
    E(f"ds_read_b32 v24, v25 offset:{AD}")
    for g in range(4):
        E(f"s_mov_b32 s{52+g}, {4096*g}")
        for n in range(4): E(f"buffer_load_dwordx4 {v(OF+16*g+4*n,4)}, v45, {WS}, s{52+g} offen offset:{1024*n} sc1")
    E("s_waitcnt vmcnt(16) lgkmcnt(0)")
    E("v_readfirstlane_b32 s67, v24")
    for q in range(8): E(f"ds_write_b128 v47, {v(ACC+32+4*q,4)} offset:{8192*(q>>1)+1024*(q&1)}")
    E("s_mov_b64 exec, 1"); E(f"ds_add_u32 v25, v26 offset:{XC}"); E("s_mov_b64 exec, -1")
    E("v_sub_f32 v8, 1.0, v9"); E("v_sub_f32 v9, 1.0, v9")
    E("s_mul_i32 s66, s11, 28672"); E("s_add_u32 s66, s66, s15"); E("s_lshl_b32 s71, s10, 6"); E("s_add_u32 s66, s66, s71")
    lds_spin("L_gx", XC, 4, 25, 24)
    for q in (4, 5, 6, 7, 0, 1, 2, 3): E(f"ds_read_b128 {v(ACC+32+4*q,4)}, v48 offset:{8192*(q>>1)+1024*(q&1)}")
    def woread(ct, e):
        hh, a = e >> 1, e & 1
        off = (hh >> 2)*2048 + (2*(hh & 3) + a)*8192
        return [f"ds_read_b64_tr_b16 {v(WFR+4*(e&3)+2*q,2)}, v{38+ct} offset:{off+1024*q}" for q in range(2)]
    for e in range(3):
        for l in woread(1, e): E(l)
    E("s_waitcnt lgkmcnt(10)")
    for r in range(16, 32, 2): E(f"v_pk_add_f32 {v(ACC+r,2)}, {v(ACC+r,2)}, {v(ACC+32+r,2)}")
    for r in range(16, 32, 2): E(f"v_pk_mul_f32 {v(ACC+r,2)}, v[8:9], {v(ACC+r,2)}")
    E("s_waitcnt lgkmcnt(6)")
    for r in range(0, 16, 2): E(f"v_pk_add_f32 {v(ACC+r,2)}, {v(ACC+r,2)}, {v(ACC+32+r,2)}")
    for r in range(0, 16, 2): E(f"v_pk_mul_f32 {v(ACC+r,2)}, v[8:9], {v(ACC+r,2)}")
    E("s_waitcnt lgkmcnt(0)")
    E("s_cmp_ge_u32 s67, 4"); E("s_cbranch_scc1 L_ge_spec")
    lds_spin("L_ge_ad", AD, 4, 25, 24, 1)
    E("s_sleep 8")
    for g in range(4):
        for n in range(4): E(f"buffer_load_dwordx4 {v(OF+16*g+4*n,4)}, v45, {WS}, s{52+g} offen offset:{1024*n} sc1")
    L("L_ge_spec")
    E(f"s_mov_b32 s62, {SPIN}")
    for g in range(4):
        E(f"s_waitcnt vmcnt({12-4*g})")
        L(f"L_ge_c{g}")
        E(f"v_max3_u32 v17, v{OF+16*g}, v{OF+16*g+1}, v{OF+16*g+2}"); E(f"v_max3_u32 v18, v{OF+16*g+3}, v{OF+16*g+4}, v{OF+16*g+5}")
        E(f"v_max3_u32 v17, v17, v{OF+16*g+6}, v{OF+16*g+7}"); E(f"v_max3_u32 v18, v18, v{OF+16*g+8}, v{OF+16*g+9}")
        E(f"v_max3_u32 v17, v17, v{OF+16*g+10}, v{OF+16*g+11}"); E(f"v_max3_u32 v18, v18, v{OF+16*g+12}, v{OF+16*g+13}")
        E(f"v_max3_u32 v17, v17, v{OF+16*g+14}, v{OF+16*g+15}")
        E("v_max_u32 v17, v17, v18")
        E("v_cmp_eq_u32 vcc, -1, v17"); E(f"s_cbranch_vccz L_ge_k{g}")
        E("s_sub_u32 s62, s62, 1"); E("s_cmp_eq_u32 s62, 0"); E("s_cbranch_scc1 L_ge_to")
        for n in range(4): E(f"buffer_load_dwordx4 {v(OF+16*g+4*n,4)}, v45, {WS}, s{52+g} offen offset:{1024*n} sc1")
        E("s_waitcnt vmcnt(0)"); E(f"s_branch L_ge_c{g}")
        L(f"L_ge_k{g}")
    L("L_ge_to")
    E("s_waitcnt vmcnt(0)")
    L("L_ge_go")
    stamp(6)
    seq = [(1, e) for e in range(16)] + [(0, e) for e in range(16)]
    pend = 6
    for k, (ct, e) in enumerate(seq):
        ahead = min(2, len(seq)-1-k)
        extra = 0
        if 16+3 < k <= 16+3+2: extra = 0
        E(f"s_waitcnt lgkmcnt({2*ahead})") if not (20 <= k) else E(f"s_waitcnt lgkmcnt({2*ahead})")
        mfma(ACC+16*ct, WFR+4*(k&3), OF+4*e, ACC+16*ct)
        if k == 20:
            for q in range(4): E(f"ds_write_b128 v47, {v(ACC+16+4*q,4)} offset:{8192*(4+(q>>1))+1024*(q&1)}")
        if k == 23:
            E("s_barrier")
            for q in range(4): E(f"ds_read_b128 {v(ACC+32+4*q,4)}, v49 offset:{8192*(4+(q>>1))+1024*(q&1)}")
        if k + 3 < len(seq):
            c2, e2 = seq[k+3]
            hh, a = e2 >> 1, e2 & 1
            off = (hh >> 2)*2048 + (2*(hh & 3) + a)*8192
            for q in range(2): E(f"ds_read_b64_tr_b16 {v(WFR+4*((k+3)&3)+2*q,2)}, v{38+c2} offset:{off+1024*q}")
    nop(12)
    for r in range(0, 16, 2): E(f"v_pk_add_f32 {v(ACC+r,2)}, {v(ACC+r,2)}, {v(ACC+32+r,2)}")
    for r in range(8): E(f"v_cvt_pk_bf16_f32 v{56+r}, v{ACC+2*r}, v{ACC+2*r+1}")
    nop(1)
    for p in range(2):
        E(f"v_permlane32_swap_b32 v{56+4*p}, v{58+4*p}"); E(f"v_permlane32_swap_b32 v{57+4*p}, v{59+4*p}")
    for p in range(2):
        E(f"buffer_store_dwordx4 {v(56+4*p,4)}, v50, {OUT}, s66 offen offset:{32*p}")
    stamp(7)
    L("L_gend")
    stamp_flush("g")
    L("L_end")
    E("s_endpgm")

loops = []
entry()
a_ffn()
a_kv()
attention()
g_entry()
g_ffn()
g_kv()
g_down()

errs = hazard.check(out, "main")
for k, b in enumerate(loops): errs += hazard.check(b + b, f"loop{k}")
for e in sorted(set(errs)): print("HAZARD", e, file=sys.stderr)

hdr = open("gated_mix__grouped_kv_mqa__glu_gated_bilinear__prompt.s.ref").read().split("; Override")[0]
print(hdr, end="")
print(f"; @launch grid=(256,1,1) block=(512,1,1) lds={LDS_SIZE}")
print('.amdgcn_target "amdgcn-amd-amdhsa--gfx950"')
print(".text"); print(f".globl {NAME}"); print(".p2align 8"); print(f".type {NAME},@function"); print(f"{NAME}:")
print("\n".join(l for l in out if l is not None))
print('.section .rodata,"a"'); print(".p2align 6"); print(f".amdhsa_kernel {NAME}")
print("  .amdhsa_next_free_vgpr 256\n  .amdhsa_next_free_sgpr 96\n  .amdhsa_accum_offset 256\n  .amdhsa_group_segment_fixed_size 0\n  .amdhsa_kernarg_size 104")
print("  .amdhsa_user_sgpr_count 2\n  .amdhsa_user_sgpr_kernarg_segment_ptr 1\n  .amdhsa_system_sgpr_workgroup_id_x 1\n.end_amdhsa_kernel")
```

```python
import sys, math, struct
import hazard

NAME = "gated_mix__grouped_kv_mqa__glu_gated_bilinear__prompt_kernel"
STAMPS = "--stamps" in sys.argv
def opt(name, default):
    for a in sys.argv:
        if a.startswith(f"--{name}="): return int(a.split("=")[1])
    return default
GROUPS = [int(c) for c in str(opt("groups", 2221))]
XP = opt("xp", 0)
PRE = opt("pre", 2)
DD = opt("D", 3); SPREAD = opt("spread", 0); YNOP = opt("ynop", 0)
CLK = "s_memrealtime" if "--rt" in sys.argv else "s_memtime"

WS_KV = 0x000000
WS_G = 0x040000
WS_HF = 0x048000
WS_O = 0x080000
WS_H = 0x300000
WS_END = 0xA00000
WS_ST = 0xA00000
LDS_SIZE = 163840
F_STAGE = 53248; F_NST = 3; F_G = 16384; F_U = 32768; F_Q = 49152
K_W = 122880; K_GW = 151552
L_CNT = 163840 - 48
QC, GC, KC, RC, XC, QD, AD = 4, 8, 12, 20, 24, 28, 36
L_QX = 98304
L_RED = 114688
SPIN = 1 << 17

def f32bits(x): return struct.unpack("<I", struct.pack("<f", x))[0]
QSCALE = f32bits(28 ** -0.5 * math.log2(math.e))
LOG2E = f32bits(math.log2(math.e))

out = []
def E(s): out.append("    " + s)
def L(s): out.append(s + ":")
def C(s): out.append("    ; " + s)
def v(a, n=1): return f"v{a}" if n == 1 else f"v[{a}:{a+n-1}]"
def mfma(d, a, b, c=None):
    E(f"v_mfma_f32_32x32x16_bf16 {v(d,16)}, {v(a,4)}, {v(b,4)}, " + ("0" if c is None else v(c,16)))
def add2(d, a, b):
    E(f"v_add_f32 v{d}, v{a}, v{b}"); E(f"v_add_f32 v{d+1}, v{a+1}, v{b+1}")
def nop(n):
    while n > 0:
        k = min(n, 16); E(f"s_nop {k-1}"); n -= k
nst = [0]
def stamp(n):
    if STAMPS:
        E(f"{CLK} s[{72+2*n}:{73+2*n}]"); E("s_waitcnt lgkmcnt(0)")
def stamp_flush(tag):
    if STAMPS:
        E("s_memrealtime s[92:93]"); E("s_waitcnt lgkmcnt(0)")
        E("s_lshl_b32 s90, s2, 3"); E("s_add_u32 s90, s90, s44"); E("s_lshl_b32 s90, s90, 6"); E(f"s_add_u32 s90, s90, {WS_ST}")
        for q in range(2):
            for e in range(4): E(f"v_mov_b32 v{4+e}, s{72+2*(4*q+e)}")
            E(f"buffer_store_dwordx4 v[4:7], off, s[28:31], s90 offset:{16*q}"); nop(2)
        E("v_mov_b32 v4, s92"); E("v_mov_b32 v5, s88"); E("v_mov_b32 v6, s89"); E("v_mov_b32 v7, s94")
        E("buffer_store_dwordx4 v[4:7], off, s[28:31], s90 offset:32")
        E("s_waitcnt vmcnt(0)")

X, WQ, WG, WU, WD, WO, WS, OUT, DBG, KVW = "s[4:7]", "s[8:11]", "s[12:15]", "s[16:19]", "s[20:23]", "s[24:27]", "s[28:31]", "s[32:35]", "s[36:39]", "s[40:43]"

def srd(base, size):
    E(f"s_mov_b32 s{base+2}, {size}"); E(f"s_mov_b32 s{base+3}, 0x20000")
WS_SIZE = WS_END + (0x20000 if STAMPS else 0)

def entry():
    E("s_cmp_ge_u32 s2, 256"); E("s_cbranch_scc1 L_end")
    E("s_load_dwordx2 s[4:5], s[0:1], 0")
    E("s_load_dwordx2 s[28:29], s[0:1], 96")
    E("s_load_dwordx2 s[36:37], s[0:1], 88")
    if STAMPS:
        E("s_memrealtime s[88:89]"); E("s_getreg_b32 s94, hwreg(HW_REG_HW_ID)"); E(f"{CLK} s[72:73]")
    E("v_lshrrev_b32 v1, 6, v0"); E("v_and_b32 v0, 63, v0")
    E("v_readfirstlane_b32 s44, v1")
    E("s_and_b32 s68, s2, 7"); E("s_lshr_b32 s69, s2, 3")
    E("s_and_b32 s46, s68, 1"); E("s_lshl_b32 s46, s46, 3"); E("s_and_b32 s70, s69, 7"); E("s_add_u32 s46, s46, s70")
    E("s_lshr_b32 s47, s68, 1"); E("s_lshl_b32 s47, s47, 2"); E("s_lshr_b32 s70, s69, 3"); E("s_add_u32 s47, s47, s70")
    E("s_xor_b32 s47, s47, 15")
    E("s_mov_b32 s50, s47")
    E("s_and_b32 s45, s44, 3")
    srd(4, 1835008); srd(28, WS_SIZE); srd(36, 256)
    E("v_lshlrev_b32 v29, 4, v0")
    E("v_lshrrev_b32 v31, 5, v0")
    E("s_cmp_ge_u32 s44, 4"); E("s_cbranch_scc1 L_g")
    E("s_load_dwordx2 s[8:9], s[0:1], 8")
    srd(8, 401408); srd(40, 65536)
    E("s_mov_b32 s15, 0x20000"); E("s_mov_b32 s19, 0x20000")
    E("s_cmp_ge_u32 s47, 14"); E("s_cbranch_scc1 L_ak")

def lane_pieces():
    E("v_and_b32 v24, 31, v0")
    E("v_bfe_u32 v25, v0, 1, 3")
    E("v_xor_b32 v25, v25, v31"); E("v_lshlrev_b32 v25, 4, v25")
    E("v_lshl_add_u32 v30, v24, 7, v25")
    E("v_bfe_u32 v28, v0, 2, 2")
    E("v_bfe_u32 v24, v0, 4, 1"); E("v_and_b32 v25, 3, v0"); E("v_lshlrev_b32 v25, 3, v25"); E("v_lshl_add_u32 v27, v24, 5, v25")

def g_entry():
    L("L_g")
    E("s_load_dwordx2 s[20:21], s[0:1], 64")
    E("s_load_dwordx2 s[24:25], s[0:1], 32")
    E("s_load_dwordx2 s[32:33], s[0:1], 80")
    srd(20, 1605632); srd(24, 401408); srd(32, 1835008)
    E("s_lshl_b32 s48, s68, 2"); E("s_and_b32 s70, s69, 3"); E("s_add_u32 s48, s48, s70")
    E("s_lshr_b32 s49, s69, 2"); E("s_xor_b32 s49, s49, 7")
    E("s_cmp_ge_u32 s47, 14"); E("s_cbranch_scc1 L_gk")

def x_dma_addrs(rg="s45"):
    E("v_lshrrev_b32 v24, 4, v0")
    E("v_and_b32 v25, 7, v0"); E("v_xor_b32 v25, v25, v24"); E("v_lshlrev_b32 v25, 4, v25")
    E("v_lshrrev_b32 v26, 3, v0"); E("v_mul_u32_u24 v26, 896, v26")
    E("v_add_u32 v1, v26, v25")
    E("v_xor_b32 v25, 64, v25"); E("v_add_u32 v2, v26, v25"); E("v_add_u32 v2, 6144, v2")
    E("v_add_u32 v3, 12288, v1"); E("v_add_u32 v4, 12288, v2")
    E("s_lshl_b32 s52, s46, 2"); E(f"s_add_u32 s52, s52, {rg}"); E("s_mul_i32 s52, s52, 28672")
    E("s_lshl_b32 s55, s45, 12")

def prefill():
    E("s_lshl_b32 s65, s46, 2"); E("s_add_u32 s65, s65, s45"); E("s_lshl_b32 s65, s65, 4"); E("s_add_u32 s65, s65, s50"); E("s_lshl_b32 s65, s65, 11"); E(f"s_add_u32 s65, s65, {WS_O}")
    for r in range(4): E(f"v_mov_b32 v{56+r}, -1")
    for n in range(2): E(f"buffer_store_dwordx4 v[56:59], v29, {WS}, s65 offen offset:{1024*n} sc1")

def go_poll(label, sleep):
    E(f"s_mov_b32 s62, {SPIN}")
    L(label)
    E(f"buffer_load_dword v24, off, {DBG}, 0 offset:128 sc1"); E("s_waitcnt vmcnt(0)")
    E("v_readfirstlane_b32 s63, v24"); E("s_sub_u32 s62, s62, 1"); E("s_cmp_eq_u32 s62, 0"); E(f"s_cbranch_scc1 {label}_x")
    E("s_cmp_lg_u32 s63, 0"); E(f"s_cbranch_scc1 {label}_x"); E(f"s_sleep {sleep}"); E(f"s_branch {label}")
    L(label + "_x")

ASET = (14, 19, 88)
QACC, XF, WF = 32, 48, 64
PREG = 80
QS = 96; OA = 128; KB = 192; VB = 224
S0, S1 = 48, 64
VG = 93
def a_addr(idx, off):
    return ASET[off >> 16] + idx, off & 0xffff

def q_setup(rg="s45"):
    E("v_lshrrev_b32 v25, 2, v0"); E("v_mul_u32_u24 v25, 896, v25"); E("v_and_b32 v26, 3, v0"); E("v_lshl_add_u32 v13, v26, 4, v25")
    E("s_mul_i32 s57, s50, 56"); E("s_and_b32 s54, s57, 0xfffffff0"); E(f"s_mul_i32 s70, {rg}, 14336"); E("s_add_u32 s54, s54, s70")
    E("s_and_b32 s57, s57, 8")
    E(f"s_lshl_b32 s56, {rg}, 10")

def a_setup2(sets):
    lane_pieces()
    E("v_add_u32 v14, s55, v30")
    for s in range(1, 4): E(f"v_xor_b32 v{14+s}, {32*s}, v14")
    E("v_lshl_add_u32 v25, v31, 3, v28"); E("v_lshl_add_u32 v18, v25, 6, v27"); E("v_add_u32 v18, s57, v18")
    if sets:
        for k in range(5):
            E(f"v_add_u32 v{19+k}, 0x10000, v{14+k}"); E(f"v_add_u32 v{88+k}, 0x20000, v{14+k}")
    E(f"v_mov_b32 v24, {L_CNT}")
    E("v_mov_b32 v94, 0"); E("v_mov_b32 v95, 0")
    for o in (0, 8, 16, 24, 32): E(f"ds_write_b64 v24, v[94:95] offset:{o}")
    E("s_lshl_b32 s70, s45, 16"); E("s_add_u32 s40, s28, s70"); E("s_addc_u32 s41, s29, 0")

def a_inits():
    R = [f"v_mov_b32 v{r}, 0" for r in list(range(OA, OA+64)) + list(range(PREG, PREG+8)) + list(range(VB+24, VB+32))]
    R += ["v_and_b32 v94, 31, v0", "v_lshlrev_b32 v94, 2, v94"]
    return R

def a_dma_groups(pos):
    st = ((pos + 2) % F_NST) * F_STAGE
    kb = [f"s_bfe_u32 s64, s58, {0x40000 + 4*pos:#x}"]
    gs = []
    gs.append(kb + [f"s_add_u32 m0, s59, {st}", "s_lshl_b32 s65, s64, 7", "s_add_u32 s65, s65, s52"] + [f"buffer_load_dwordx4 v{1+n}, {X}, s65 offen offset:{1024*n} lds" for n in range(4)])
    gs.append([f"s_add_u32 m0, s51, {st+F_G}", "s_mul_i32 s65, s64, 229376", "s_add_u32 s65, s65, s53"] + [f"buffer_load_dwordx4 v{5+n}, {WG}, s65 offen offset:{1024*n} lds" for n in range(4)])
    gs.append([f"s_add_u32 m0, s51, {st+F_U}", "s_mul_i32 s66, s64, 57344"] + [f"buffer_load_dwordx4 v{9+n}, {WU}, s65 offen offset:{1024*n} lds" for n in range(4)])
    gs.append([f"s_add_u32 m0, s56, {st+F_Q}", "s_add_u32 s66, s66, s54", f"buffer_load_dwordx4 v13, {WQ}, s66 offen lds"])
    return gs

def kv_prologue_loads():
    E("s_lshl_b32 s70, s69, 2"); E("s_add_u32 s70, s70, s45"); E("s_lshl_b32 s70, s70, 11"); E("v_lshlrev_b32 v24, 7, v0")
    E("s_mov_b32 exec_lo, 0xffff"); E("s_mov_b32 exec_hi, 0")
    E(f"buffer_load_dword v95, v24, {WS}, s70 offen sc1")
    E("s_mov_b64 exec, -1")
    E("s_lshl_b32 s70, s46, 2"); E("s_add_u32 s70, s70, s45"); E("s_lshl_b32 s70, s70, 7"); E(f"s_add_u32 s70, s70, {WS_G}")
    E(f"buffer_load_dword v{VG}, v94, {WS}, s70 offen sc1")
    E("s_mov_b32 s60, 0")
    for t in range(3):
        tile_loads(t)

def tile_loads(u):
    E(f"buffer_load_dwordx4 {v(KB+8*u,4)}, v29, {KVW}, s60 offen sc1")
    E(f"buffer_load_dwordx4 {v(KB+8*u+4,4)}, v29, {KVW}, s60 offen offset:1024 sc1")
    E(f"buffer_load_dwordx4 {v(VB+8*u,4)}, v29, {KVW}, s60 offen offset:2048 sc1")
    E(f"buffer_load_dwordx4 {v(VB+8*u+4,4)}, v29, {KVW}, s60 offen offset:3072 sc1")
    E("s_add_u32 s60, s60, 4096")

def a_ffn():
    per = 13
    L("L_af")
    E("s_load_dwordx2 s[12:13], s[0:1], 48"); E("s_load_dwordx2 s[16:17], s[0:1], 56")
    E("s_mov_b32 s14, 1605632"); E("s_mov_b32 s18, 1605632")
    E("s_lshr_b32 s70, s69, 3"); E("s_add_u32 s71, s69, s70"); E("s_and_b32 s71, s71, 7"); E("s_lshl_b32 s71, s71, 2")
    E("s_mov_b32 s58, 0")
    b = 0
    for n in GROUPS:
        if n == 1:
            E(f"s_or_b32 s58, s58, {b << (4*b):#x}")
        else:
            tab = sum(((u % n)) << (4*u) for u in range(8))
            seq = sum((b + (k % n)) << (4*k) for k in range(2*n-1))
            E(f"s_lshr_b32 s64, {tab:#x}, s71"); E("s_and_b32 s64, s64, 15"); E("s_lshl_b32 s64, s64, 2")
            E(f"s_mov_b32 s66, {seq & 0xffffffff:#x}"); E(f"s_mov_b32 s67, {seq >> 32:#x}"); E("s_lshr_b64 s[66:67], s[66:67], s64")
            E(f"s_and_b32 s66, s66, {(1 << (4*n)) - 1:#x}"); E(f"s_lshl_b32 s66, s66, {4*b}"); E("s_or_b32 s58, s58, s66")
        b += n
    E("s_bfe_u32 s60, s69, 0x10002"); E("s_lshl_b32 s60, s60, 1"); E("s_bfe_u32 s64, s69, 0x10001"); E("s_add_u32 s60, s60, s64")
    E("s_add_u32 s60, s60, s45"); E("s_and_b32 s60, s60, 3")
    E("s_and_b32 s70, s70, 2"); E("s_add_u32 s61, s45, s70"); E("s_and_b32 s61, s61, 3")
    E("s_lshl_b32 s59, s61, 12"); E("s_lshl_b32 s51, s60, 12")
    x_dma_addrs("s61")
    E("v_and_b32 v25, 15, v0"); E("v_lshlrev_b32 v26, 1, v24"); E("v_xor_b32 v25, v25, v26"); E("v_lshlrev_b32 v25, 4, v25")
    E("v_mul_u32_u24 v26, 3584, v24"); E("v_add_u32 v5, v26, v25"); E("v_xor_b32 v9, 128, v5")
    for n in range(1, 4):
        E(f"v_add_u32 v{5+n}, {13312*n}, v5"); E(f"v_add_u32 v{9+n}, {13312*n}, v9")
    E("s_mul_i32 s53, s60, 57344"); E("s_lshl_b32 s70, s47, 8"); E("s_add_u32 s53, s53, s70")
    q_setup("s60")
    E("s_waitcnt lgkmcnt(0)")
    stamp(7)
    allg = [(b, k, g) for b in range(7) for k, g in enumerate(a_dma_groups(b))]
    cnt = [4, 4, 4, 1]
    ops = []
    def issue(n):
        for _ in range(n):
            b, k, g = allg.pop(0)
            for l in g:
                if (XP & 4) and b >= 2 and "buffer_load" in l: continue
                E(l)
            ops.extend([b]*cnt[k])
    def after(b): return len(ops) - 1 - max(k for k, t in enumerate(ops) if t == b)
    issue(4)
    E("s_barrier")
    a_setup2(True)
    issue(PRE)
    E(f"s_waitcnt vmcnt({after(0)}) lgkmcnt(0)")
    E("s_barrier")
    stamp(1)
    inits = a_inits()
    plan = {0: [8-PRE-1, 5, 4, 4, 4], 1: [8-PRE, 4, 4, 4, 4], 2: [8-PRE-2, 5, 5, 4, 4]}[opt("plan", 2)] + [0, 0]
    for kb in range(7):
        st = ((kb + 2) % F_NST) * F_STAGE
        C(f"--- A block {kb}")
        if kb == 5: E(f"buffer_load_dword v24, off, {DBG}, 0 sc1")
        if kb == 6:
            E("s_cmp_eq_u32 s61, 1"); E("s_cbranch_scc1 L_af_rdy")
            go_poll("L_af_poll", 4)
            kv_prologue_loads()
            L("L_af_rdy")
        n = plan[kb]
        if n > 4: issue(n - 4); n = 4
        for s in range(4):
            if XP & 1: break
            r, o = a_addr(s, st); E(f"ds_read_b128 {v(XF+4*s,4)}, v{r} offset:{o}")
            for q in range(2):
                r, o = a_addr(4, st + F_Q + s*1024 + q*256); E(f"ds_read_b64_tr_b16 {v(WF+4*s+2*q,2)}, v{r} offset:{o}")
        for s in range(4):
            if s < n: issue(1)
            if XP & 1: continue
            E(f"s_waitcnt lgkmcnt({9-3*s})")
            mfma(QACC, WF+4*s, XF+4*s, None if (kb == 0 and s == 0) else QACC)
        if 2 <= kb <= 5:
            n = min(21, len(inits)) if kb < 5 else len(inits)
            for l in inits[:n]: E(l)
            inits = inits[n:]
        if kb == 5:
            E("s_waitcnt vmcnt(0)")
            E("v_readfirstlane_b32 s63, v24"); E("s_mov_b32 s61, 0"); E("s_cmp_lt_u32 s63, 32"); E("s_cbranch_scc1 L_af_notyet")
            kv_prologue_loads(); E("s_mov_b32 s61, 1")
            L("L_af_notyet")
            E("s_barrier")
        elif kb < 5:
            E(f"s_waitcnt vmcnt({after(kb+1)})")
            E("s_barrier")
    assert not allg
    E(f"s_mov_b32 s58, {L_QX}")
    E("s_branch L_attn")

def a_kv():
    L("L_ak")
    E("s_load_dwordx2 s[16:17], s[0:1], 72")
    E("s_cmp_eq_u32 s47, 14"); E("s_cbranch_scc1 L_ak_k")
    E("s_load_dwordx2 s[12:13], s[0:1], 24"); E("s_branch L_ak_j")
    L("L_ak_k")
    E("s_load_dwordx2 s[12:13], s[0:1], 16")
    L("L_ak_j")
    E("s_mov_b32 s14, 25088"); E("s_mov_b32 s18, 896")
    E("s_lshl_b32 s55, s45, 12")
    q_setup()
    E("s_waitcnt lgkmcnt(0)")
    stamp(7)
    E(f"s_add_u32 s53, s56, {K_W}"); E("s_mov_b32 s70, s56")
    for n in range(7):
        E("s_mov_b32 m0, s53"); E("s_add_u32 s53, s53, 4096")
        E(f"buffer_load_dwordx4 v29, {WG}, s70 offen lds"); E("s_add_u32 s70, s70, 4096")
    E(f"s_mov_b32 m0, {K_GW}"); E("s_nop 0"); E(f"buffer_load_dwordx4 v29, {WU}, 0 offen lds")
    a_setup2(False)
    E(f"v_add_u32 v18, {K_W}, v18")
    E("s_waitcnt vmcnt(0) lgkmcnt(0)")
    E("s_barrier")
    stamp(1)
    for l in a_inits(): E(l)
    for r in range(QACC, QACC+16): E(f"v_mov_b32 v{r}, 0")
    E("s_barrier")
    E(f"s_add_u32 s53, s56, {K_W}")
    for n in range(7):
        E("s_mov_b32 m0, s53"); E("s_add_u32 s53, s53, 4096")
        E(f"buffer_load_dwordx4 v13, {WQ}, s54 offen lds"); E("s_add_u32 s54, s54, 57344")
    E("s_waitcnt vmcnt(0)")
    E("s_barrier")
    E("s_mov_b32 s59, 7")
    L("L_akloop")
    b0 = len(out)
    for s in range(4):
        E(f"ds_read_b128 {v(XF+4*s,4)}, v{14+s}")
        for q in range(2): E(f"ds_read_b64_tr_b16 {v(WF+4*s+2*q,2)}, v18 offset:{s*1024+q*256}")
    for s in range(4):
        E(f"s_waitcnt lgkmcnt({9-3*s})")
        mfma(QACC, WF+4*s, XF+4*s, QACC)
        E(f"v_add_u32 v{14+s}, 16384, v{14+s}")
    E("v_add_u32 v18, 4096, v18")
    E("s_sub_u32 s59, s59, 1"); E("s_cmp_lg_u32 s59, 0"); E("s_cbranch_scc1 L_akloop")
    loops.append(out[b0:])
    go_poll("L_ak_poll", 8)
    kv_prologue_loads()
    E(f"s_mov_b32 s58, {L_RED}")

def lds_spin(label, off, target, areg, treg, sleep=0):
    E(f"s_mov_b32 s62, {SPIN*8}")
    L(label)
    E(f"ds_read_b32 v{treg}, v{areg} offset:{off}"); E("s_waitcnt lgkmcnt(0)")
    E(f"v_readfirstlane_b32 s63, v{treg}"); E("s_sub_u32 s62, s62, 1"); E("s_cmp_eq_u32 s62, 0"); E(f"s_cbranch_scc1 {label}_x")
    if sleep:
        E(f"s_cmp_ge_u32 s63, {target}"); E(f"s_cbranch_scc1 {label}_x"); E(f"s_sleep {sleep}"); E(f"s_branch {label}")
    else:
        E(f"s_cmp_lt_u32 s63, {target}"); E(f"s_cbranch_scc1 {label}")
    L(label + "_x")

def owrites(s):
    R = []
    for q in range(4):
        if s == 2 and q == 3:
            R.append(f"ds_write_b32 v{1+s}, v{OA+16*s+12} offset:3072")
            R.append("s_mov_b32 exec_hi, 0")
        R.append(f"ds_write_b128 v{1+s}, {v(OA+16*s+4*q,4)} offset:{1024*q}")
    return R

def period(u, s):
    tau = 4*u + s
    Sc = (S0, S1)[tau & 1]; Sn = (S0, S1)[(tau+1) & 1]
    un, sn = ((tau+1)//4) % 4, (tau+1) % 4
    up, sp = ((tau-1)//4) % 4, (tau-1) % 4
    ul = (u + 3) % 4
    ex = [f"v_exp_f32 v{Sc+r}, v{Sc+r}" for r in range(16)]
    cv = [f"v_cvt_pk_bf16_f32 v{PREG+r}, v{Sc+2*r}, v{Sc+2*r+1}" for r in range(8)]
    if s == 0: Y = [[f"buffer_load_dwordx4 {v(KB+8*ul,4)}, v29, {KVW}, s60 offen sc1"], [f"buffer_load_dwordx4 {v(KB+8*ul+4,4)}, v29, {KVW}, s60 offen offset:1024 sc1"]]
    if s == 1: Y = [[f"buffer_load_dwordx4 {v(VB+8*ul,4)}, v29, {KVW}, s60 offen offset:2048 sc1"], [f"buffer_load_dwordx4 {v(VB+8*ul+4,4)}, v29, {KVW}, s60 offen offset:3072 sc1"]]
    if s == 2: Y = [["s_add_u32 s60, s60, 4096"], ["s_waitcnt vmcnt(8)"]]
    if s == 3: Y = [["s_nop 0"], ["s_nop 0"]]
    if not SPREAD:
        if s == 0: Y = [["s_nop 0"], ["s_nop 0"]]
        if s == 1: Y = [[f"buffer_load_dwordx4 {v(KB+8*ul,4)}, v29, {KVW}, s60 offen sc1", f"buffer_load_dwordx4 {v(KB+8*ul+4,4)}, v29, {KVW}, s60 offen offset:1024 sc1"] + Y[0] + Y[1], ["s_nop 0"]]
    if u == 2 and s == 3: Y = [["s_sub_u32 s59, s59, 1"], ["s_nop 0"]]
    if u == 3 and s == 2:
        Y = [["s_add_u32 s60, s60, 4096", "s_cmp_lg_u32 s59, 0"], ["s_waitcnt vmcnt(8)", "s_cbranch_scc1 L_ow2"] + owrites(0) + ["L_ow2:"]]
    if u == 3 and s == 3:
        Y = [["s_cbranch_scc1 L_ow3"] + owrites(1) + ["L_ow3:"], ["s_nop 0"]]
    def emit(ls):
        for l in ls:
            if l == "s_nop 0" and not YNOP: continue
            if l.endswith(":"): L(l[:-1])
            else: E(l)
    mfma(Sn, KB+8*un, QS+8*sn)
    emit(ex[0:3])
    mfma(Sn, KB+8*un+4, QS+8*sn+4, Sn)
    emit(ex[3:6])
    mfma(OA+16*sp, VB+8*up, PREG, OA+16*sp)
    emit(ex[6:9])
    mfma(OA+16*sp, VB+8*up+4, PREG+4, OA+16*sp)
    emit(ex[9:12]); emit(Y[0]); emit(ex[12:15]); emit(Y[1]); emit(ex[15:16]); emit(cv)

def attention():
    L("L_attn")
    stamp(2)
    E("s_setprio 3")
    C("Q epilogue -> slot 3")
    Q3 = QS + 24
    E(f"s_mov_b32 s64, {QSCALE}"); E("s_nop 0")
    E("v_cmp_eq_u32 vcc, 0, v31")
    E("s_lshl_b32 s66, s45, 11"); E("s_add_u32 s66, s66, s58"); E("v_add_u32 v24, s66, v29")
    E(f"v_mov_b32 v25, {L_CNT}"); E("v_mov_b32 v26, 1")
    nop(3)
    for r in range(16): E(f"v_mul_f32 v{QACC+r}, s64, v{QACC+r}")
    for r in range(8): E(f"v_cvt_pk_bf16_f32 v{Q3+r}, v{QACC+2*r}, v{QACC+2*r+1}")
    E(f"v_cndmask_b32 v{Q3+6}, 0, v{Q3+6}, vcc"); E(f"v_cndmask_b32 v{Q3+7}, 0, v{Q3+7}, vcc")
    E(f"ds_write_b128 v24, {v(Q3,4)}")
    E("s_waitcnt vmcnt(10)")
    mfma(S0, KB, Q3); mfma(S0, KB+4, Q3+4, S0)
    for s in range(3):
        E(f"s_add_u32 s65, s45, {1+s}"); E("s_and_b32 s65, s65, 3"); E("s_lshl_b32 s65, s65, 11"); E("s_add_u32 s65, s65, s58")
        E(f"v_add_u32 v{1+s}, s65, v29")
    E(f"v_max3_f32 v4, v{S0}, v{S0+1}, v{S0+2}"); E(f"v_max3_f32 v5, v{S0+3}, v{S0+4}, v{S0+5}")
    E(f"v_max3_f32 v4, v4, v{S0+6}, v{S0+7}"); E(f"v_max3_f32 v5, v5, v{S0+8}, v{S0+9}")
    E(f"v_max3_f32 v4, v4, v{S0+10}, v{S0+11}"); E(f"v_max3_f32 v5, v5, v{S0+12}, v{S0+13}")
    E(f"v_max3_f32 v4, v4, v{S0+14}, v{S0+15}")
    E("v_max_f32 v4, v4, v5")
    E("v_mov_b32 v5, v4"); nop(2)
    E("v_permlane32_swap_b32 v4, v5"); nop(1)
    E("v_max_f32 v4, v4, v5")
    E("v_cvt_pk_bf16_f32 v4, -v4, 0")
    E(f"v_cndmask_b32 v{Q3+6}, v4, v{Q3+6}, vcc")
    E(f"ds_write_b128 v24, {v(Q3+4,4)} offset:1024")
    E("s_mov_b64 exec, 1")
    E(f"ds_add_u32 v25, v26 offset:{QC}")
    E("s_mov_b64 exec, -1")
    lds_spin("L_qspin", QC, 4, 25, 5)
    for s in range(3):
        E(f"ds_read_b128 {v(QS+8*s,4)}, v{1+s}"); E(f"ds_read_b128 {v(QS+8*s+4,4)}, v{1+s} offset:1024")
    E("s_mov_b64 exec, 1")
    E(f"ds_add_u32 v25, v26 offset:{QD}")
    E("s_mov_b64 exec, -1")
    E("s_waitcnt lgkmcnt(5)")
    mfma(S0, KB, QS); mfma(S0, KB+4, QS+4, S0)
    for s in range(3):
        E(f"s_add_u32 s65, s45, {1+s}"); E("s_and_b32 s65, s65, 3"); E("s_mul_i32 s65, s65, 12288"); E(f"s_add_u32 s65, s65, {L_RED+4096*s}")
        E(f"v_add_u32 v{1+s}, s65, v29")
    E("s_mul_i32 s65, s45, 12288"); E(f"s_add_u32 s65, s65, {L_RED}"); E("v_add_u32 v4, s65, v29")
    E("s_lshl_b32 s65, s46, 2"); E("s_add_u32 s65, s65, s45"); E("s_lshl_b32 s65, s65, 4"); E("s_add_u32 s65, s65, s50"); E("s_lshl_b32 s65, s65, 11"); E(f"s_add_u32 s65, s65, {WS_O}")
    E(f"v_mov_b32 v7, {f32bits(2.0**100)}"); E(f"v_mov_b32 v8, {f32bits(2.0**-60)}"); E("v_mov_b32 v9, 0x7f800000")
    E("s_waitcnt vmcnt(8) lgkmcnt(0)")
    E("s_mov_b32 s59, 4")
    E("s_setprio 1")
    stamp(3)
    out.append(".p2align 6")
    L("L_aloop")
    b0 = len(out)
    for u in range(4):
        for s in range(4): period(u, s)
    E("s_cbranch_scc1 L_aloop")
    loops.append(out[b0:])
    stamp(4)
    E("s_setprio 3")
    O3 = OA + 48
    mfma(O3, VB+24, PREG, O3); mfma(O3, VB+28, PREG+4, O3)
    for l in owrites(2): E(l)
    E("s_mov_b32 exec_lo, 1")
    E(f"ds_add_u32 v25, v26 offset:{RC}"); E("s_mov_b64 exec, -1")
    E("s_waitcnt vmcnt(0)")
    lds_spin("L_rspin", RC, 4, 25, 5)
    stamp(5)
    for q in range(12): E(f"ds_read_b128 {v(KB+4*q,4)}, v4 offset:{1024*q}")
    E("v_cmp_eq_u32 vcc, 0, v31")
    for s in range(3):
        E(f"s_waitcnt lgkmcnt({8-4*s})")
        for r in range(16): E(f"v_add_f32 v{O3+r}, v{O3+r}, v{KB+16*s+r}")
    E(f"v_mov_b32 v4, v{O3+12}"); E(f"v_mov_b32 v5, v{O3+12}")
    for r in (13, 14, 15): E(f"v_cndmask_b32 v{O3+r}, 0, v{O3+r}, vcc")
    E("v_permlane32_swap_b32 v4, v5")
    E(f"v_add_f32 v10, v{O3}, v{O3+1}"); E(f"v_add_f32 v11, v{O3+2}, v{O3+3}")
    E("v_rcp_f32 v4, v5")
    for r in range(4, 16, 2): E(f"v_add_f32 v10, v10, v{O3+r}"); E(f"v_add_f32 v11, v11, v{O3+r+1}")
    E("v_cmp_ge_f32 s[66:67], v7, v5"); E("v_cmp_le_f32 s[68:69], v8, v5")
    E("v_add_f32 v6, v10, v11")
    E("v_cmp_gt_f32 s[70:71], v9, |v6|")
    E(f"v_mul_f32 v4, v{VG}, v4")
    E("s_and_b64 s[66:67], s[66:67], s[68:69]"); E("s_and_b64 s[66:67], s[66:67], s[70:71]")
    E("s_cmp_eq_u64 s[66:67], -1"); E("s_cbranch_scc0 L_fb")
    L("L_norm")
    for r in range(8): E(f"v_mul_f32 v{O3+r}, v4, v{O3+r}")
    for r in range(4): E(f"v_cvt_pk_bf16_f32 v{PREG+r}, v{O3+2*r}, v{O3+2*r+1}")
    for r in range(4): E(f"v_min_u32 v{PREG+r}, -2, v{PREG+r}")
    E(f"buffer_store_dwordx4 {v(PREG,4)}, v29, {WS}, s65 offen sc1")
    for r in range(8, 16): E(f"v_mul_f32 v{O3+r}, v4, v{O3+r}")
    for r in range(4, 8): E(f"v_cvt_pk_bf16_f32 v{PREG+r}, v{O3+2*r}, v{O3+2*r+1}")
    E(f"v_cndmask_b32 v{PREG+6}, 0, v{PREG+6}, vcc"); E(f"v_cndmask_b32 v{PREG+7}, 0, v{PREG+7}, vcc")
    for r in range(4, 8): E(f"v_min_u32 v{PREG+r}, -2, v{PREG+r}")
    E(f"buffer_store_dwordx4 {v(PREG+4,4)}, v29, {WS}, s65 offen offset:1024 sc1")
    E("s_mov_b64 exec, 1"); E(f"ds_add_u32 v25, v26 offset:{AD}"); E("s_mov_b64 exec, -1")
    stamp(6)
    stamp_flush("a")
    E("s_endpgm")
    L("L_fb")
    E("v_cmp_eq_u32 vcc, 0, v31"); E("v_mov_b32 v4, 0xff800000"); E("s_mov_b32 s60, 0")
    E(f"v_cndmask_b32 v{Q3+6}, 0, v{Q3+6}, vcc")
    L("L_fb1")
    E(f"buffer_load_dwordx4 {v(KB,4)}, v29, {WS}, s60 offen sc1"); E(f"buffer_load_dwordx4 {v(KB+4,4)}, v29, {WS}, s60 offen offset:1024 sc1")
    E("s_waitcnt vmcnt(0)")
    mfma(S0, KB, Q3); mfma(S0, KB+4, Q3+4, S0); nop(12)
    for r in range(0, 16, 2): E(f"v_max3_f32 v4, v4, v{S0+r}, v{S0+r+1}")
    E("s_add_u32 s60, s60, 4096"); E("s_cmp_lt_u32 s60, 0x40000"); E("s_cbranch_scc1 L_fb1")
    E("v_mov_b32 v5, v4"); nop(2); E("v_permlane32_swap_b32 v4, v5"); nop(1); E("v_max_f32 v4, v4, v5")
    for r in range(16): E(f"v_mov_b32 v{O3+r}, 0")
    E("s_mov_b32 s60, 0")
    L("L_fb2")
    E(f"buffer_load_dwordx4 {v(KB,4)}, v29, {WS}, s60 offen sc1"); E(f"buffer_load_dwordx4 {v(KB+4,4)}, v29, {WS}, s60 offen offset:1024 sc1")
    E(f"buffer_load_dwordx4 {v(VB,4)}, v29, {WS}, s60 offen offset:2048 sc1"); E(f"buffer_load_dwordx4 {v(VB+4,4)}, v29, {WS}, s60 offen offset:3072 sc1")
    E("s_waitcnt vmcnt(0)")
    mfma(S0, KB, Q3); mfma(S0, KB+4, Q3+4, S0); nop(12)
    for r in range(16): E(f"v_sub_f32 v{S0+r}, v{S0+r}, v4")
    for r in range(16): E(f"v_exp_f32 v{S0+r}, v{S0+r}")
    nop(1)
    for r in range(8): E(f"v_cvt_pk_bf16_f32 v{PREG+r}, v{S0+2*r}, v{S0+2*r+1}")
    nop(2)
    mfma(O3, VB, PREG, O3); mfma(O3, VB+4, PREG+4, O3)
    E("s_add_u32 s60, s60, 4096"); E("s_cmp_lt_u32 s60, 0x40000"); E("s_cbranch_scc1 L_fb2")
    nop(12)
    E(f"v_mov_b32 v4, v{O3+12}"); E(f"v_mov_b32 v5, v{O3+12}"); nop(2)
    E("v_permlane32_swap_b32 v4, v5"); nop(1)
    E("v_rcp_f32 v4, v5"); nop(1)
    E(f"v_mul_f32 v4, v{VG}, v4")
    E("s_branch L_norm")

def d_setup():
    E("s_add_u32 s13, s45, s49"); E("s_add_u32 s13, s13, s48"); E("s_and_b32 s13, s13, 3"); E("s_lshl_b32 s13, s13, 1")
    E("s_lshr_b32 s14, s49, 2"); E("s_lshr_b32 s70, s48, 1"); E("s_xor_b32 s14, s14, s70"); E("s_and_b32 s14, s14, 1")
    E("s_add_u32 s13, s13, s14"); E("s_xor_b32 s14, s13, 1")
    E("s_and_b32 s70, s49, 1"); E("s_lshl_b32 s70, s70, 1"); E("s_xor_b32 s8, s45, s70")
    E("s_and_b32 s9, s8, 1"); E("s_lshr_b32 s10, s8, 1"); E("s_lshl_b32 s12, s8, 11")
    E("v_lshrrev_b32 v17, 3, v0"); E("v_mul_u32_u24 v17, 896, v17")
    E("v_bfe_u32 v18, v0, 4, 1"); E("v_lshlrev_b32 v18, 2, v18"); E("v_and_b32 v19, 7, v0"); E("v_xor_b32 v18, v18, v19")
    E("v_lshl_add_u32 v32, v18, 4, v17"); E("v_add_u32 v33, 6144, v32")
    E("v_lshl_add_u32 v17, v31, 2, v28"); E("v_lshl_add_u32 v17, v17, 7, v27")
    E("v_lshrrev_b32 v18, 1, v28"); E("v_xor_b32 v18, s10, v18"); E("v_lshl_add_u32 v17, v18, 6, v17")
    E("v_add_u32 v34, s12, v17"); E("v_xor_b32 v35, 64, v34"); E("v_add_u32 v36, 0x10000, v34"); E("v_add_u32 v37, 0x10000, v35")
    E("s_lshl_b32 s70, s10, 12"); E("v_add_u32 v38, s70, v17"); E("v_xor_b32 v39, 64, v38")
    E("s_lshl_b32 s11, s48, 1"); E("s_add_u32 s11, s11, s9"); E("s_xor_b32 s70, s11, 1")
    E("s_mul_i32 s71, s11, 114688"); E(f"s_add_u32 s71, s71, {WS_H}"); E("v_add_u32 v40, s71, v29")
    E("s_mul_i32 s71, s70, 114688"); E(f"s_add_u32 s71, s71, {WS_H}"); E("v_add_u32 v41, s71, v29")
    E("s_lshl_b32 s15, s49, 7"); E("s_mul_i32 s16, s13, 200704"); E("s_add_u32 s16, s16, s15"); E("s_mov_b32 s17, s12")
    E("v_and_b32 v19, 31, v0"); E("v_lshlrev_b32 v42, 2, v19")
    E("v_min_u32 v43, 15, v0"); E("v_lshlrev_b32 v43, 7, v43")
    E("v_mul_u32_u24 v44, 3584, v0")
    E("s_lshl_b32 s70, s11, 4"); E("s_lshl_b32 s71, s10, 3"); E("s_add_u32 s70, s70, s71"); E("s_lshl_b32 s70, s70, 11"); E(f"s_add_u32 s70, s70, {WS_O}")
    E("v_add_u32 v45, s70, v29"); E("v_add_u32 v46, 1024, v45")
    E("v_add_u32 v47, s12, v29"); E("v_add_u32 v47, 0x10000, v47"); E("v_xor_b32 v48, 2048, v47"); E("v_xor_b32 v49, 4096, v47")
    E("v_mul_u32_u24 v50, 896, v19"); E("v_lshl_add_u32 v50, v31, 4, v50")
    E(f"v_mov_b32 v25, {L_CNT}"); E("v_mov_b32 v26, 1")

def wd_slot():
    return ["s_mov_b32 m0, s17", "s_add_u32 s17, s17, 8192", f"buffer_load_dwordx4 v32, {WD}, s16 offen lds",
            f"buffer_load_dwordx4 v33, {WD}, s16 offen offset:1024 lds", "s_add_u32 s16, s16, 14336"]

def g_ffn():
    L("L_gf")
    ACC = 128; GX = 64; GW_ = 80
    lane_pieces()
    E("s_and_b32 s52, s45, 1"); E("s_lshr_b32 s53, s45, 1")
    E("s_lshl_b32 s70, s52, 13"); E("v_add_u32 v1, s70, v30")
    for s in range(1, 4): E(f"v_xor_b32 v{1+s}, {32*s}, v1")
    E("v_bfe_u32 v17, v0, 4, 1")
    E("v_lshl_add_u32 v18, v17, 2, v28")
    E("s_lshl_b32 s70, s53, 2"); E("v_xor_b32 v18, s70, v18"); E("v_lshlrev_b32 v18, 5, v18")
    E("v_and_b32 v19, 3, v0"); E("v_lshl_add_u32 v18, v19, 3, v18")
    E("v_lshl_add_u32 v19, v31, 3, v28"); E("v_lshl_add_u32 v18, v19, 8, v18")
    E("v_lshl_add_u32 v18, v17, 14, v18"); E(f"v_add_u32 v5, {F_G}, v18")
    for t in range(1, 4): E(f"v_xor_b32 v{5+t}, {32*t}, v5")
    for k in range(8): E(f"v_add_u32 v{9+k}, {2*F_STAGE}, v{1+k}")
    for r in range(ACC, ACC+128): E(f"v_mov_b32 v{r}, 0")
    d_setup()
    E("s_cmp_eq_u32 s49, 7"); E("s_cselect_b32 s18, 99, 6")
    E("s_mov_b32 s54, 0"); E(f"s_mov_b32 s55, {2*F_STAGE}")
    E("s_waitcnt lgkmcnt(0)")
    E("s_barrier")
    prefill()
    E("s_barrier")
    stamp(1)
    def reads(s):
        st = s & 1
        R = []
        R.append(f"ds_read_b128 {v(GX+8*st,4)}, v{9+s}")
        for q in range(2): R.append(f"ds_read_b64_tr_b16 {v(GW_+16*st+2*q,2)}, v13 offset:{4096*s+1024*q}")
        R.append(f"ds_read_b128 {v(GX+8*st+4,4)}, v{9+s} offset:4096")
        for t in range(1, 4):
            for q in range(2): R.append(f"ds_read_b64_tr_b16 {v(GW_+16*st+4*t+2*q,2)}, v{13+t} offset:{4096*s+1024*q}")
        if XP & 2: R = [l for l in R if "tr_b16" not in l]
        return R
    for l in reads(0): E(l)
    out.append(".p2align 6")
    L("L_gfloop")
    b0 = len(out)
    for s in range(4):
        st = s & 1
        E("s_waitcnt lgkmcnt(0)")
        R = reads((s+1) % 4)
        n = 0
        for t in range(4):
            for a in range(2):
                d = ACC + 64*a + 16*t
                mfma(d, GW_+16*st+4*t, GX+8*st+4*a, d)
                if s == 3 and n == 0:
                    E("s_cmp_lg_u32 s54, 6"); E("s_cbranch_scc1 L_gf_bar"); E("s_setprio 3"); E("s_branch L_gf_nobar")
                    L("L_gf_bar"); E("s_barrier"); L("L_gf_nobar")
                for l in R[:2]: E(l)
                R = R[2:]
                if s in (1, 2) and n == 4:
                    E("s_cmp_lt_u32 s54, s18"); E(f"s_cbranch_scc1 L_gf_nd{s}")
                    for l in wd_slot() + wd_slot(): E(l)
                    L(f"L_gf_nd{s}")
                if s == 2 and n == 5:
                    E(f"s_add_u32 s55, s55, {F_STAGE}"); E(f"s_cmp_eq_u32 s55, {3*F_STAGE}"); E("s_cselect_b32 s55, 0, s55")
                if s == 2 and n >= 6:
                    for k in range(4*(n-6), 4*(n-6)+4): E(f"v_add_u32 v{9+k}, s55, v{1+k}")
                n += 1
    E("s_add_u32 s54, s54, 1"); E("s_cmp_lt_u32 s54, 7"); E("s_cbranch_scc1 L_gfloop")
    loops.append(out[b0:])
    stamp(2)
    E("s_lshl_b32 s56, s46, 2"); E("s_lshl_b32 s70, s52, 1"); E("s_add_u32 s56, s56, s70"); E("s_mul_i32 s56, s56, 114688")
    E("s_lshl_b32 s70, s47, 13"); E("s_add_u32 s56, s56, s70"); E("s_lshl_b32 s70, s53, 12"); E("s_add_u32 s56, s56, s70"); E(f"s_add_u32 s56, s56, {WS_H}")
    E("s_add_u32 s57, s56, 114688")
    E("s_waitcnt lgkmcnt(0)")
    for t in range(4):
        for a in range(2):
            d = ACC + 64*a + 16*t
            for r in range(8): E(f"v_mul_f32 v{d+r}, v{d+r}, v{d+8+r}")
            for r in range(4): E(f"v_cvt_pk_bf16_f32 v{d+8+r}, v{d+2*r}, v{d+2*r+1}")
            E(f"buffer_store_dwordx4 {v(d+8,4)}, v29, {WS}, s{56+a} offen offset:{1024*t} sc1")
    E("s_mov_b32 s19, 8")
    E("s_branch L_gpub")

def g_kv():
    L("L_gk")
    D1, D2, D3 = 128, 128, 160
    GX = 64; GWf = 80; GG = 96
    x_dma_addrs()
    E("s_mov_b32 s53, s55")
    E("s_waitcnt lgkmcnt(0)")
    def xblk():
        E("s_mov_b32 m0, s53"); E("s_add_u32 s53, s53, 16384")
        for n in range(4): E(f"buffer_load_dwordx4 v{1+n}, {X}, s52 offen offset:{1024*n} lds")
        E("s_add_u32 s52, s52, 128")
    for kb in range(3): xblk()
    lane_pieces()
    E("v_add_u32 v9, s55, v30")
    for s in range(1, 4): E(f"v_xor_b32 v{9+s}, {32*s}, v9")
    E("v_lshl_add_u32 v17, v31, 3, v28"); E("v_mul_u32_u24 v17, 56, v17"); E("v_add_u32 v13, v17, v27"); E(f"v_add_u32 v13, {K_W}, v13")
    E("v_lshlrev_b32 v6, 4, v31"); E(f"v_add_u32 v6, {K_GW}, v6")
    for r in range(16): E(f"v_mov_b32 v{D1+r}, 0"); E(f"v_mov_b32 v{D3+r}, 0")
    E("s_mov_b32 s54, 0"); E("s_mov_b32 s59, 0x10000000")
    E("s_barrier")
    stamp(1)
    L("L_gkloop")
    b0 = len(out)
    E("s_cmp_ge_u32 s54, 4"); E("s_cbranch_scc1 L_gk_dum")
    xblk()
    E("s_branch L_gk_rd")
    L("L_gk_dum")
    for n in range(4): E(f"buffer_load_dword v40, off, {X}, s59")
    L("L_gk_rd")
    E("s_waitcnt vmcnt(12)")
    for s in range(4):
        E(f"ds_read_b128 {v(GX+4*s,4)}, v{9+s}")
        for q in range(2): E(f"ds_read_b64_tr_b16 {v(GWf+4*s+2*q,2)}, v13 offset:{896*s+224*q}")
    E("s_cmp_eq_u32 s47, 15"); E("s_cbranch_scc1 L_gk_lv")
    for s in range(4):
        E(f"s_waitcnt lgkmcnt({9-2*s})")
        mfma(D1, GWf+4*s, GX+4*s, D1)
        E(f"ds_read_b128 {v(GG+4*s,4)}, v6 offset:{32*s}")
    for s in range(4):
        E(f"s_waitcnt lgkmcnt({3-s})")
        mfma(D3, GG+4*s, GX+4*s, D3)
    E("s_branch L_gk_le")
    L("L_gk_lv")
    for s in range(4):
        E(f"s_waitcnt lgkmcnt({9-3*s})")
        mfma(D2, GX+4*s, GWf+4*s, D2)
    L("L_gk_le")
    for s in range(4): E(f"v_add_u32 v{9+s}, 16384, v{9+s}")
    E("v_add_u32 v13, 3584, v13"); E("v_add_u32 v6, 128, v6")
    E("s_add_u32 s54, s54, 1"); E("s_cmp_lt_u32 s54, 7"); E("s_cbranch_scc1 L_gkloop")
    loops.append(out[b0:])
    E("s_barrier")
    stamp(2)
    E("s_lshl_b32 s56, s46, 2"); E("s_add_u32 s56, s56, s45"); E("s_lshl_b32 s57, s56, 7"); E("s_lshl_b32 s56, s56, 12"); E(f"s_add_u32 s57, s57, {WS_G}")
    E("v_and_b32 v17, 31, v0")
    nop(6)
    E("s_cmp_eq_u32 s47, 15"); E("s_cbranch_scc1 L_gk_v")
    E("v_cmp_eq_u32 vcc, 0, v31")
    for r in range(8): E(f"v_cvt_pk_bf16_f32 v{32+r}, v{D1+2*r}, v{D1+2*r+1}")
    E("v_mov_b32 v18, 0x3f80")
    E("v_cndmask_b32 v38, v18, v38, vcc"); E("v_cndmask_b32 v39, 0, v39, vcc")
    E(f"buffer_store_dwordx4 v[32:35], v29, {WS}, s56 offen sc1")
    E(f"buffer_store_dwordx4 v[36:39], v29, {WS}, s56 offen offset:1024 sc1")
    E(f"v_mul_f32 v18, {f32bits(-math.log2(math.e)):#x}, v{D3}")
    E("v_exp_f32 v18, v18"); E("v_lshlrev_b32 v17, 2, v17")
    E("v_add_f32 v18, 1.0, v18"); E("v_rcp_f32 v18, v18")
    E("s_mov_b32 exec_hi, 0")
    E(f"buffer_store_dword v18, v17, {WS}, s57 offen sc1")
    E("s_mov_b64 exec, -1")
    E("s_branch L_gk_pub")
    L("L_gk_v")
    E("v_cmp_gt_u32 vcc, 28, v17"); E("v_cmp_eq_u32 s[66:67], 28, v17")
    E("v_mov_b32 v18, 0x3f803f80"); E("v_mov_b32 v19, 0")
    E("v_cndmask_b32 v18, v19, v18, s[66:67]")
    for r in range(8): E(f"v_cvt_pk_bf16_f32 v{32+r}, v{D2+2*r}, v{D2+2*r+1}")
    for r in range(8): E(f"v_cndmask_b32 v{32+r}, v18, v{32+r}, vcc")
    E(f"buffer_store_dwordx4 v[32:35], v29, {WS}, s56 offen offset:2048 sc1")
    E(f"buffer_store_dwordx4 v[36:39], v29, {WS}, s56 offen offset:3072 sc1")
    L("L_gk_pub")
    E("s_lshl_b32 s70, s47, 2"); E("s_add_u32 s70, s70, s45"); E("s_cmp_lg_u32 s70, 56"); E("s_cbranch_scc1 L_gk_nz")
    E("v_lshlrev_b32 v41, 7, v0"); E("v_mov_b32 v42, 0"); E("s_lshl_b32 s70, s46, 11"); E(f"s_add_u32 s70, s70, {WS_HF}")
    E("s_mov_b32 exec_lo, 0xffff"); E("s_mov_b32 exec_hi, 0")
    E(f"buffer_store_dword v42, v41, {WS}, s70 offen sc1")
    E("s_mov_b64 exec, -1")
    L("L_gk_nz")
    E(f"v_mov_b32 v25, {L_CNT}"); E("v_mov_b32 v26, 1")
    E("s_waitcnt vmcnt(0)")
    E("s_mov_b64 exec, 1")
    E(f"ds_add_rtn_u32 v24, v25, v26 offset:{KC}"); E("s_waitcnt lgkmcnt(0)")
    E("v_readfirstlane_b32 s63, v24"); nop(1)
    E("s_cmp_lg_u32 s63, 3"); E("s_cbranch_scc1 L_gk_nosig")
    E("v_mov_b32 v24, 1")
    E(f"buffer_atomic_add v24, off, {DBG}, 0 sc0 sc1"); E("s_waitcnt vmcnt(0)")
    E("v_readfirstlane_b32 s63, v24"); nop(1)
    E("s_cmp_lg_u32 s63, 31"); E("s_cbranch_scc1 L_gk_nosig")
    E(f"buffer_store_dword v26, off, {DBG}, 0 offset:128 sc1")
    L("L_gk_nosig")
    E("s_mov_b64 exec, -1")
    stamp(5)
    prefill()
    d_setup()
    E("s_mov_b32 s19, 12")
    E("s_barrier")
    lds_spin("L_gk_s1", QD, 4, 25, 24, 4)
    L("L_gpub")
    E("s_setprio 3")
    lds_spin("L_g_go", QC, 1, 25, 24, 2)
    E("s_waitcnt vmcnt(0)")
    E("s_mov_b64 exec, 1")
    E(f"ds_add_rtn_u32 v24, v25, v26 offset:{GC}"); E("s_waitcnt lgkmcnt(0)")
    E("v_readfirstlane_b32 s63, v24")
    E("s_lshl_b32 s70, s46, 4"); E("s_add_u32 s70, s70, s47"); E("s_lshl_b32 s70, s70, 7"); E(f"s_add_u32 s70, s70, {WS_HF}")
    E("s_cmp_lg_u32 s63, 3"); E("s_cbranch_scc1 L_g_nosig")
    E(f"buffer_store_dword v26, off, {WS}, s70 sc1")
    L("L_g_nosig")
    E("s_mov_b64 exec, -1")

def g_down():
    L("L_gd")
    stamp(3)
    E("s_cmp_eq_u32 s49, 7"); E("s_cbranch_scc1 L_gend")
    HB = 64; WFR = 176; ACC = 192
    E("s_setprio 0")
    L("L_gd_wd")
    E("s_waitcnt vmcnt(6)")
    for l in wd_slot(): E(l)
    E("s_sub_u32 s19, s19, 1"); E("s_cmp_lg_u32 s19, 0"); E("s_cbranch_scc1 L_gd_wd")
    E("s_and_b32 s70, s48, 3"); E("s_mul_i32 s70, s70, 896")
    E("s_mul_i32 s71, s8, 100352"); E("s_add_u32 s70, s70, s71"); E("s_add_u32 s70, s70, s15")
    E("s_mov_b32 exec_lo, 0xfffffff"); E("s_mov_b32 exec_hi, 0")
    E(f"buffer_load_dword v10, v44, {WO}, s70 offen")
    E("s_mov_b64 exec, -1")
    E("s_lshl_b32 s70, s11, 7"); E(f"s_add_u32 s70, s70, {WS_G}")
    E(f"buffer_load_dword v9, v42, {WS}, s70 offen sc1")
    E("s_lshr_b32 s70, s48, 1"); E("s_lshl_b32 s70, s70, 11"); E(f"s_add_u32 s70, s70, {WS_HF}")
    E("s_setprio 3")
    lds_spin("L_gd_s1", QD, 4, 25, 24, 2)
    lds_spin("L_gd_s2", GC, 4, 25, 24, 2)
    for k in range(2):
        for l in wd_slot(): E(l)
    E(f"s_mov_b32 s62, {SPIN}")
    L("L_gd_poll")
    E(f"buffer_load_dword v18, v43, {WS}, s70 offen sc1"); E("s_waitcnt vmcnt(0)")
    E("v_cmp_ne_u32 vcc, 1, v18"); E("s_sub_u32 s62, s62, 1"); E("s_cmp_eq_u32 s62, 0"); E("s_cbranch_scc1 L_gd_go")
    E("s_cbranch_vccz L_gd_go"); E("s_sleep 6"); E("s_branch L_gd_poll")
    L("L_gd_go")
    stamp(4)
    E("s_setprio 0")
    NH = DD + 1
    ops = []
    E("s_mul_i32 s59, s13, 14336")
    E("s_mul_i32 s16, s14, 200704"); E("s_add_u32 s16, s16, s15")
    def hload(s):
        if s == 14: E("s_mul_i32 s59, s14, 14336")
        o = (s % 14) % 4
        r = HB + 8*(s % NH)
        E(f"buffer_load_dwordx4 {v(r,4)}, v40, {WS}, s59 offen offset:{1024*o} sc1"); E(f"buffer_load_dwordx4 {v(r+4,4)}, v41, {WS}, s59 offen offset:{1024*o} sc1")
        if o == 3: E("s_add_u32 s59, s59, 4096")
        ops.extend([("h", s)]*2)
    def younger(tags):
        idx = [k for k, t in enumerate(ops) if t in tags]
        return len(ops) - 1 - max(idx) if idx else None
    def wreads(s):
        st = s & 1; sl = s % 14
        return [f"ds_read_b64_tr_b16 {v(WFR+8*st+4*ct+2*q,2)}, v{34+ct+2*(sl>>3)} offset:{8192*(sl&7)+1024*q}" for ct in range(2) for q in range(2)]
    for s in range(DD): hload(s)
    for l in wreads(0): E(l)
    for s in range(28):
        st = s & 1
        n = younger({("h", s), ("w", s+1)})
        E(f"s_waitcnt vmcnt({n}) lgkmcnt(0)")
        R = wreads(s+1) if s < 27 else []
        for a in range(2):
            for ct in range(2):
                d = ACC + 32*a + 16*ct
                mfma(d, WFR+8*st+4*ct, HB+8*(s % NH)+4*a, None if s == 0 else d)
                if R: E(R.pop(0))
                if a == 0 and ct == 1 and s + DD < 28: hload(s + DD)
        if s == 14:
            E("s_mul_i32 s16, s8, 100352"); E("s_add_u32 s16, s16, s15")
        if s < 22:
            srd_ = WD if s < 14 else WO
            E(f"s_add_u32 m0, s12, {8192*(s % 14)}"); E("s_nop 0")
            E(f"buffer_load_dwordx4 v32, {srd_}, s16 offen lds"); E(f"buffer_load_dwordx4 v33, {srd_}, s16 offen offset:1024 lds")
            E(f"s_add_u32 s16, s16, {14336 if (s < 14 or s % 2 == 0) else 10752}")
            ops.extend([("w", s+14)]*2)
    stamp(5)
    OF = 32
    def wo_reg(e): return 96 + 8*e if e < 12 else 224 + 8*(e-12)
    E("s_setprio 2")
    for d, sr in ((1, 38), (2, 39), (3, 45), (4, 47), (5, 48), (6, 49), (7, 50)): E(f"v_mov_b32 v{d}, v{sr}")
    E("v_sub_f32 v9, 1.0, v9")
    E("s_mul_i32 s66, s11, 28672"); E("s_add_u32 s66, s66, s15"); E("s_lshl_b32 s71, s10, 6"); E("s_add_u32 s66, s66, s71")
    for g in range(4): E(f"s_mov_b32 s{52+g}, {4096*g}")
    for q in range(8): E(f"ds_write_b128 v4, {v(ACC+32+4*q,4)} offset:{8192*(q>>1)+1024*(q&1)}")
    E("s_waitcnt vmcnt(0)")
    E("s_mov_b64 exec, 1"); E(f"ds_add_u32 v25, v26 offset:{XC}"); E("s_mov_b64 exec, -1")
    lds_spin("L_gx", XC, 4, 25, 24)
    E(f"ds_read_b32 v24, v25 offset:{AD}")
    for q in range(8): E(f"ds_read_b128 {v(ACC+32+4*q,4)}, v5 offset:{8192*(q>>1)+1024*(q&1)}")
    def oloads(g0):
        for g in range(g0, 4):
            for n in range(4): E(f"buffer_load_dwordx4 {v(OF+16*g+4*n,4)}, v3, {WS}, s{52+g} offen offset:{1024*n} sc1")
    E("s_waitcnt lgkmcnt(8)")
    E("v_readfirstlane_b32 s67, v24"); nop(1)
    E("s_cmp_lt_u32 s67, 4"); E("s_cbranch_scc1 L_ge_ne")
    oloads(0)
    L("L_ge_ne")
    def woread(e):
        hh, a = e >> 1, e & 1
        off = (hh >> 2)*2048 + (2*(hh & 3) + a)*8192
        for ct in range(2):
            for q in range(2): E(f"ds_read_b64_tr_b16 {v(wo_reg(e)+4*ct+2*q,2)}, v{1+ct} offset:{off+1024*q}")
    for e in range(12): woread(e)
    E("s_waitcnt lgkmcnt(15)")
    for r in range(32): E(f"v_add_f32 v{ACC+r}, v{ACC+r}, v{ACC+32+r}")
    for e in range(12, 16): woread(e)
    for r in range(32): E(f"v_mul_f32 v{ACC+r}, v9, v{ACC+r}")
    E("s_waitcnt lgkmcnt(0)")
    E("s_cmp_ge_u32 s67, 4"); E("s_cbranch_scc1 L_ge_ld")
    lds_spin("L_ge_ad", AD, 4, 25, 24, 1)
    if opt("osleep", 6): E(f"s_sleep {opt('osleep', 6)}")
    oloads(0)
    L("L_ge_ld")
    E(f"s_mov_b32 s62, {SPIN}")
    for g in range(4):
        L(f"L_ge_c{g}")
        E(f"s_waitcnt vmcnt({12-4*g})")
        E(f"v_max3_u32 v17, v{OF+16*g}, v{OF+16*g+1}, v{OF+16*g+2}"); E(f"v_max3_u32 v18, v{OF+16*g+3}, v{OF+16*g+4}, v{OF+16*g+5}")
        E(f"v_max3_u32 v17, v17, v{OF+16*g+6}, v{OF+16*g+7}"); E(f"v_max3_u32 v18, v18, v{OF+16*g+8}, v{OF+16*g+9}")
        E(f"v_max3_u32 v17, v17, v{OF+16*g+10}, v{OF+16*g+11}"); E(f"v_max3_u32 v18, v18, v{OF+16*g+12}, v{OF+16*g+13}")
        E(f"v_max3_u32 v17, v17, v{OF+16*g+14}, v{OF+16*g+15}")
        E("v_max_u32 v17, v17, v18")
        E("v_cmp_eq_u32 vcc, -1, v17"); E(f"s_cbranch_vccz L_ge_k{g}")
        E("s_cmp_eq_u32 s62, 0"); E(f"s_cbranch_scc1 L_ge_k{g}")
        E("s_sub_u32 s62, s62, 1")
        oloads(g)
        E(f"s_branch L_ge_c{g}")
        L(f"L_ge_k{g}")
        for e in range(4*g, 4*g+4):
            mfma(ACC+16, wo_reg(e)+4, OF+4*e, ACC+16)
        for e in range(4*g, 4*g+4):
            mfma(ACC, wo_reg(e), OF+4*e, ACC)
    nop(2)
    stamp(6)
    nop(6)
    for q in range(4): E(f"ds_write_b128 v4, {v(ACC+16+4*q,4)} offset:{8192*(4+(q>>1))+1024*(q&1)}")
    E("s_waitcnt lgkmcnt(0)")
    E("s_barrier")
    for q in range(4): E(f"ds_read_b128 {v(ACC+16+4*q,4)}, v6 offset:{8192*(4+(q>>1))+1024*(q&1)}")
    for p in range(2):
        E(f"s_waitcnt lgkmcnt({2-2*p})")
        for r in range(8*p, 8*p+8): E(f"v_add_f32 v{ACC+r}, v{ACC+r}, v{ACC+16+r}")
        for r in range(4*p, 4*p+4): E(f"v_cvt_pk_bf16_f32 v{56+r}, v{ACC+2*r}, v{ACC+2*r+1}")
        nop(1)
        E(f"v_permlane32_swap_b32 v{56+4*p}, v{58+4*p}"); E(f"v_permlane32_swap_b32 v{57+4*p}, v{59+4*p}")
        E(f"buffer_store_dwordx4 {v(56+4*p,4)}, v7, {OUT}, s66 offen offset:{32*p}")
    stamp(7)
    L("L_gend")
    stamp_flush("g")
    L("L_end")
    E("s_endpgm")

loops = []
entry()
a_ffn()
a_kv()
attention()
g_entry()
g_ffn()
g_kv()
g_down()

errs = hazard.check(out, "main")
for k, b in enumerate(loops): errs += hazard.check(b + b, f"loop{k}")
for e in sorted(set(errs)): print("HAZARD", e, file=sys.stderr)

hdr = open("gated_mix__grouped_kv_mqa__glu_gated_bilinear__prompt.s.ref").read().split("; Override")[0]
print(hdr, end="")
print(f"; @launch grid=(256,1,1) block=(512,1,1) lds={LDS_SIZE}")
print('.amdgcn_target "amdgcn-amd-amdhsa--gfx950"')
print(".text"); print(f".globl {NAME}"); print(".p2align 8"); print(f".type {NAME},@function"); print(f"{NAME}:")
print("\n".join(l for l in out if l is not None))
print('.section .rodata,"a"'); print(".p2align 6"); print(f".amdhsa_kernel {NAME}")
print("  .amdhsa_next_free_vgpr 256\n  .amdhsa_next_free_sgpr 96\n  .amdhsa_accum_offset 256\n  .amdhsa_group_segment_fixed_size 0\n  .amdhsa_kernarg_size 104")
print("  .amdhsa_user_sgpr_count 2\n  .amdhsa_user_sgpr_kernarg_segment_ptr 1\n  .amdhsa_system_sgpr_workgroup_id_x 1\n.end_amdhsa_kernel")
```

```python
import sys, math, struct
import hazard

NAME = "gated_mix__grouped_kv_mqa__glu_gated_bilinear__prompt_kernel"
STAMPS = "--stamps" in sys.argv
def opt(name, default):
    for a in sys.argv:
        if a.startswith(f"--{name}="): return int(a.split("=")[1])
    return default
GROUPS = [int(c) for c in str(opt("groups", 2221))]
XP = opt("xp", 0)
PRE = opt("pre", 2)
EWS = [int(c) for c in str(opt("ews", 12)).replace("9", "0")]
DD = opt("D", 3); SPREAD = opt("spread", 0); YNOP = opt("ynop", 0)
CLK = "s_memrealtime" if "--rt" in sys.argv else "s_memtime"

WS_KV = 0x000000
WS_G = 0x040000
WS_HF = 0x048000
WS_O = 0x080000
WS_H = 0x300000
WS_END = 0xA00000
WS_ST = 0xA00000
LDS_SIZE = 163840
F_STAGE = 53248; F_NST = 3; F_G = 16384; F_U = 32768; F_Q = 49152
K_W = 122880; K_GW = 151552
L_CNT = 163840 - 48
QC, GC, KC, RC, XC, QD, AD, WL = 4, 8, 12, 20, 24, 28, 36, 40
L_QX = 98304
L_RED = 114688
SPIN = 1 << 17

def f32bits(x): return struct.unpack("<I", struct.pack("<f", x))[0]
QSCALE = f32bits(28 ** -0.5 * math.log2(math.e))
LOG2E = f32bits(math.log2(math.e))

out = []
def E(s): out.append("    " + s)
def L(s): out.append(s + ":")
def C(s): out.append("    ; " + s)
def v(a, n=1): return f"v{a}" if n == 1 else f"v[{a}:{a+n-1}]"
def mfma(d, a, b, c=None):
    E(f"v_mfma_f32_32x32x16_bf16 {v(d,16)}, {v(a,4)}, {v(b,4)}, " + ("0" if c is None else v(c,16)))
def add2(d, a, b):
    E(f"v_add_f32 v{d}, v{a}, v{b}"); E(f"v_add_f32 v{d+1}, v{a+1}, v{b+1}")
def nop(n):
    while n > 0:
        k = min(n, 16); E(f"s_nop {k-1}"); n -= k
nst = [0]
def stamp(n):
    if STAMPS and "--lite" not in sys.argv:
        E(f"{CLK} s[{72+2*n}:{73+2*n}]"); E("s_waitcnt lgkmcnt(0)")
def stamp_flush(tag):
    if STAMPS:
        E("s_memrealtime s[92:93]"); E("s_waitcnt lgkmcnt(0)")
        E("s_lshl_b32 s90, s2, 3"); E("s_add_u32 s90, s90, s44"); E("s_lshl_b32 s90, s90, 6"); E(f"s_add_u32 s90, s90, {WS_ST}")
        for q in range(2):
            for e in range(4): E(f"v_mov_b32 v{4+e}, s{72+2*(4*q+e)}")
            E(f"buffer_store_dwordx4 v[4:7], off, s[28:31], s90 offset:{16*q}"); nop(2)
        E("v_mov_b32 v4, s92"); E("v_mov_b32 v5, s88"); E("v_mov_b32 v6, s89"); E("v_mov_b32 v7, s94")
        E("buffer_store_dwordx4 v[4:7], off, s[28:31], s90 offset:32")
        E("s_waitcnt vmcnt(0)")

X, WQ, WG, WU, WD, WO, WS, OUT, DBG, KVW = "s[4:7]", "s[8:11]", "s[12:15]", "s[16:19]", "s[20:23]", "s[24:27]", "s[28:31]", "s[32:35]", "s[36:39]", "s[40:43]"

def srd(base, size):
    E(f"s_mov_b32 s{base+2}, {size}"); E(f"s_mov_b32 s{base+3}, 0x20000")
WS_SIZE = WS_END + (0x20000 if STAMPS else 0)

def entry():
    E("s_cmp_ge_u32 s2, 256"); E("s_cbranch_scc1 L_end")
    E("s_load_dwordx2 s[4:5], s[0:1], 0")
    E("s_load_dwordx2 s[28:29], s[0:1], 96")
    E("s_load_dwordx2 s[36:37], s[0:1], 88")
    if STAMPS:
        E("s_memrealtime s[88:89]"); E("s_getreg_b32 s94, hwreg(HW_REG_HW_ID)"); E(f"{CLK} s[72:73]")
    E("v_lshrrev_b32 v1, 6, v0"); E("v_and_b32 v0, 63, v0")
    E("v_readfirstlane_b32 s44, v1")
    E("s_and_b32 s68, s2, 7"); E("s_lshr_b32 s69, s2, 3")
    E("s_and_b32 s46, s68, 1"); E("s_lshl_b32 s46, s46, 3"); E("s_and_b32 s70, s69, 7"); E("s_add_u32 s46, s46, s70")
    E("s_lshr_b32 s47, s68, 1"); E("s_lshl_b32 s47, s47, 2"); E("s_lshr_b32 s70, s69, 3"); E("s_add_u32 s47, s47, s70")
    E("s_xor_b32 s47, s47, 15")
    E("s_mov_b32 s50, s47")
    E("s_and_b32 s45, s44, 3")
    srd(4, 1835008); srd(28, WS_SIZE); srd(36, 256)
    E("v_lshlrev_b32 v29, 4, v0")
    E("v_lshrrev_b32 v31, 5, v0")
    E("s_cmp_ge_u32 s44, 4"); E("s_cbranch_scc1 L_g")
    E("s_load_dwordx2 s[8:9], s[0:1], 8")
    srd(8, 401408); srd(40, 65536)
    E("s_mov_b32 s15, 0x20000"); E("s_mov_b32 s19, 0x20000")
    E("s_cmp_ge_u32 s47, 14"); E("s_cbranch_scc1 L_ak")

def lane_pieces():
    E("v_and_b32 v24, 31, v0")
    E("v_bfe_u32 v25, v0, 1, 3")
    E("v_xor_b32 v25, v25, v31"); E("v_lshlrev_b32 v25, 4, v25")
    E("v_lshl_add_u32 v30, v24, 7, v25")
    E("v_bfe_u32 v28, v0, 2, 2")
    E("v_bfe_u32 v24, v0, 4, 1"); E("v_and_b32 v25, 3, v0"); E("v_lshlrev_b32 v25, 3, v25"); E("v_lshl_add_u32 v27, v24, 5, v25")

def g_entry():
    L("L_g")
    E("s_load_dwordx2 s[20:21], s[0:1], 64")
    E("s_load_dwordx2 s[24:25], s[0:1], 32")
    E("s_load_dwordx2 s[32:33], s[0:1], 80")
    srd(20, 1605632); srd(24, 401408); srd(32, 1835008)
    E("s_lshl_b32 s48, s68, 2"); E("s_and_b32 s70, s69, 3"); E("s_add_u32 s48, s48, s70")
    E("s_lshr_b32 s49, s69, 2"); E("s_xor_b32 s49, s49, 7")
    E("s_cmp_ge_u32 s47, 14"); E("s_cbranch_scc1 L_gk")

def x_dma_addrs(rg="s45"):
    E("v_lshrrev_b32 v24, 4, v0")
    E("v_and_b32 v25, 7, v0"); E("v_xor_b32 v25, v25, v24"); E("v_lshlrev_b32 v25, 4, v25")
    E("v_lshrrev_b32 v26, 3, v0"); E("v_mul_u32_u24 v26, 896, v26")
    E("v_add_u32 v1, v26, v25")
    E("v_xor_b32 v25, 64, v25"); E("v_add_u32 v2, v26, v25"); E("v_add_u32 v2, 6144, v2")
    E("v_add_u32 v3, 12288, v1"); E("v_add_u32 v4, 12288, v2")
    E("s_lshl_b32 s52, s46, 2"); E(f"s_add_u32 s52, s52, {rg}"); E("s_mul_i32 s52, s52, 28672")
    E("s_lshl_b32 s55, s45, 12")

def prefill():
    E("s_lshl_b32 s65, s46, 2"); E("s_add_u32 s65, s65, s45"); E("s_lshl_b32 s65, s65, 4"); E("s_add_u32 s65, s65, s50"); E("s_lshl_b32 s65, s65, 11"); E(f"s_add_u32 s65, s65, {WS_O}")
    for r in range(4): E(f"v_mov_b32 v{56+r}, -1")
    for n in range(2): E(f"buffer_store_dwordx4 v[56:59], v29, {WS}, s65 offen offset:{1024*n} sc1")

def go_poll(label, sleep):
    E(f"s_mov_b32 s62, {SPIN}")
    L(label)
    E(f"buffer_load_dword v24, off, {DBG}, 0 offset:128 sc1"); E("s_waitcnt vmcnt(0)")
    E("v_readfirstlane_b32 s63, v24"); E("s_sub_u32 s62, s62, 1"); E("s_cmp_eq_u32 s62, 0"); E(f"s_cbranch_scc1 {label}_x")
    E("s_cmp_lg_u32 s63, 0"); E(f"s_cbranch_scc1 {label}_x"); E(f"s_sleep {sleep}"); E(f"s_branch {label}")
    L(label + "_x")

ASET = (14, 19, 88)
QACC, XF, WF = 32, 48, 64
PREG = 80
QS = 96; OA = 128; KB = 192; VB = 224
S0, S1 = 48, 64
VG = 93
def a_addr(idx, off):
    return ASET[off >> 16] + idx, off & 0xffff

def q_setup(rg="s45"):
    E("v_lshrrev_b32 v25, 2, v0"); E("v_mul_u32_u24 v25, 896, v25"); E("v_and_b32 v26, 3, v0"); E("v_lshl_add_u32 v13, v26, 4, v25")
    E("s_mul_i32 s57, s50, 56"); E("s_and_b32 s54, s57, 0xfffffff0"); E(f"s_mul_i32 s70, {rg}, 14336"); E("s_add_u32 s54, s54, s70")
    E("s_and_b32 s57, s57, 8")
    E(f"s_lshl_b32 s56, {rg}, 10")

def a_setup2(sets):
    lane_pieces()
    E("v_add_u32 v14, s55, v30")
    for s in range(1, 4): E(f"v_xor_b32 v{14+s}, {32*s}, v14")
    E("v_lshl_add_u32 v25, v31, 3, v28"); E("v_lshl_add_u32 v18, v25, 6, v27"); E("v_add_u32 v18, s57, v18")
    if sets:
        for k in range(5):
            E(f"v_add_u32 v{19+k}, 0x10000, v{14+k}"); E(f"v_add_u32 v{88+k}, 0x20000, v{14+k}")
    E(f"v_mov_b32 v24, {L_CNT}")
    E("v_mov_b32 v94, 0"); E("v_mov_b32 v95, 0")
    for o in (0, 8, 16, 24, 32, 40): E(f"ds_write_b64 v24, v[94:95] offset:{o}")
    E("s_lshl_b32 s70, s45, 16"); E("s_add_u32 s40, s28, s70"); E("s_addc_u32 s41, s29, 0")

def a_inits():
    R = [f"v_mov_b32 v{r}, 0" for r in list(range(OA, OA+64)) + list(range(PREG, PREG+8)) + list(range(VB+24, VB+32))]
    R += ["v_and_b32 v94, 31, v0", "v_lshlrev_b32 v94, 2, v94"]
    return R

def kbsel(pos): return f"s_xor_b32 s64, s58, {pos}" if pos < 6 else "s_mov_b32 s64, 6"
def a_dma_group(a):
    pos = int(a[1]); st = ((pos + 2) % F_NST) * F_STAGE
    if a[0] == "X":
        return [kbsel(pos), f"s_add_u32 m0, s59, {st}", "s_lshl_b32 s65, s64, 7", "s_add_u32 s65, s65, s52"] + [f"buffer_load_dwordx4 v{1+n}, {X}, s65 offen offset:{1024*n} lds" for n in range(4)]
    if a[0] == "h":
        hf = int(a[2])
        return [kbsel(pos), f"s_add_u32 m0, s51, {st+F_G+8192*hf}", "s_mul_i32 s65, s64, 229376", "s_add_u32 s65, s65, s53"] + \
               ([f"s_add_u32 s65, s65, 114688"] if hf else []) + \
               [f"buffer_load_dwordx4 v{5+n}, {WG}, s65 offen offset:{1024*n} lds" for n in range(2)] + \
               [f"s_add_u32 m0, s51, {st+F_U+8192*hf}", "s_nop 0"] + [f"buffer_load_dwordx4 v{7+n}, {WU}, s65 offen offset:{1024*n} lds" for n in range(2)]
    return [kbsel(pos), f"s_add_u32 m0, s56, {st+F_Q}", "s_mul_i32 s65, s64, 57344", "s_add_u32 s65, s65, s54", f"buffer_load_dwordx4 v13, {WQ}, s65 offen lds"]

def lds_post(off, val=26):
    E("s_mov_b64 exec, 1"); E(f"ds_add_u32 v25, v{val} offset:{off}"); E("s_mov_b64 exec, -1")

def kv_prologue_loads():
    E("s_lshl_b32 s70, s69, 2"); E("s_add_u32 s70, s70, s45"); E("s_lshl_b32 s70, s70, 11"); E("v_lshlrev_b32 v24, 7, v0")
    E("s_mov_b32 exec_lo, 0xffff"); E("s_mov_b32 exec_hi, 0")
    E(f"buffer_load_dword v95, v24, {WS}, s70 offen sc1")
    E("s_mov_b64 exec, -1")
    E("s_lshl_b32 s70, s46, 2"); E("s_add_u32 s70, s70, s45"); E("s_lshl_b32 s70, s70, 7"); E(f"s_add_u32 s70, s70, {WS_G}")
    E(f"buffer_load_dword v{VG}, v94, {WS}, s70 offen sc1")
    E("s_mov_b32 s60, 0")
    for t in range(3):
        tile_loads(t)

def tile_loads(u):
    E(f"buffer_load_dwordx4 {v(KB+8*u,4)}, v29, {KVW}, s60 offen sc1")
    E(f"buffer_load_dwordx4 {v(KB+8*u+4,4)}, v29, {KVW}, s60 offen offset:1024 sc1")
    E(f"buffer_load_dwordx4 {v(VB+8*u,4)}, v29, {KVW}, s60 offen offset:2048 sc1")
    E(f"buffer_load_dwordx4 {v(VB+8*u+4,4)}, v29, {KVW}, s60 offen offset:3072 sc1")
    E("s_add_u32 s60, s60, 4096")

HALF = opt("half", 1)
def a_ffn():
    L("L_af")
    E("s_load_dwordx2 s[12:13], s[0:1], 48"); E("s_load_dwordx2 s[16:17], s[0:1], 56")
    E("s_mov_b32 s14, 1605632"); E("s_mov_b32 s18, 1605632")
    E("s_lshr_b32 s70, s69, 3"); E("s_add_u32 s58, s69, s70"); E("s_and_b32 s58, s58, 1")
    E("s_lshr_b32 s60, s69, 1"); E("s_add_u32 s60, s60, s45"); E("s_and_b32 s60, s60, 3")
    E("s_and_b32 s70, s70, 2"); E("s_add_u32 s61, s45, s70"); E("s_and_b32 s61, s61, 3")
    E("s_lshl_b32 s59, s61, 12"); E("s_lshl_b32 s51, s60, 11")
    x_dma_addrs("s61")
    E("v_and_b32 v25, 15, v0"); E("v_lshlrev_b32 v26, 1, v24"); E("v_xor_b32 v25, v25, v26"); E("v_lshlrev_b32 v25, 4, v25")
    E("v_mul_u32_u24 v26, 3584, v24"); E("v_add_u32 v5, v26, v25"); E("v_xor_b32 v7, 128, v5")
    E("v_add_u32 v6, 13312, v5"); E("v_add_u32 v8, 13312, v7")
    E("s_mul_i32 s53, s60, 28672"); E("s_lshl_b32 s70, s47, 8"); E("s_add_u32 s53, s53, s70")
    E("s_waitcnt lgkmcnt(0)")
    stamp(7)
    ops = []
    def after(*tags): return len(ops) - 1 - max(k for k, t in enumerate(ops) if t in tags)
    inits = a_inits()
    state = {"m": 0, "first": True}
    def run(script):
        for a in script.split():
            if a[0] in "XhQ":
                for l in a_dma_group(a): E(l)
                ops.extend([a] * (1 if a[0] == "Q" else 4))
            elif a[0] == "r":
                p = int(a[1]); st = ((p + 2) % F_NST) * F_STAGE
                for s in range(4):
                    r, o = a_addr(s, st); E(f"ds_read_b128 {v(XF+4*s,4)}, v{r} offset:{o}")
                    for q in range(2):
                        r, o = a_addr(4, st + F_Q + s*1024 + q*256); E(f"ds_read_b64_tr_b16 {v(WF+4*s+2*q,2)}, v{r} offset:{o}")
                state["m"] = 0
            elif a == "m":
                s = state["m"]; state["m"] += 1
                E(f"s_waitcnt lgkmcnt({9-3*s})")
                mfma(QACC, WF+4*s, XF+4*s, None if state["first"] else QACC); state["first"] = False
            elif a == "i":
                for _ in range(min(28, len(inits))): E(inits.pop(0))
            elif a[0] == "B":
                E(f"s_waitcnt vmcnt({after(*a[2:].split(','))})"); E("s_barrier")
            elif a == "p":
                E(f"buffer_load_dword v24, off, {DBG}, 0 offset:{0 if opt('kvc', 0) else 128} sc1"); ops.append("p")
    run("X0 h00")
    q_setup("s60")
    E("s_barrier")
    run("h01 Q0")
    a_setup2(True)
    E("s_waitcnt lgkmcnt(0)")
    if HALF == 0:
        run("X1 h10 B:Q0"); stamp(1)
        run("r0 h11 m Q1 m X2 m h20 m B:Q1")
        run("h21 r1 Q2 m X3 m h30 m h31 m B:Q2")
        run("Q3 r2 X4 m h40 m h41 m Q4 m i B:Q3")
        run("r3 X5 m h50 m h51 m Q5 m i B:Q4")
    elif HALF == 1:
        run("X1 B:h00"); stamp(1)
        run("h10 B:Q0")
        run("r0 h11 m Q1 m X2 m m B:Q1")
        run("h20 r1 h21 m Q2 m X3 m h30 m B:Q2")
        run("h31 r2 Q3 m X4 m h40 m h41 m i B:Q3")
        run("Q4 r3 X5 m h50 m h51 m Q5 m i B:Q4")
    else:
        run("X1 B:h00"); stamp(1)
        run("h10 B:Q0")
        run("r0 h11 m Q1 m m m B:h10")
        run("X2 h20 B:Q1")
        run("r1 h21 m Q2 m X3 m m B:Q2")
        run("h30 r2 h31 m Q3 m X4 m h40 m i B:Q3")
        run("h41 Q4 r3 X5 m h50 m h51 m Q5 m i B:Q4")
    run("r4 X6 m h60 m h61 m Q6 m i B:Q5")
    assert not inits
    run("p r5 m m m m")
    E("s_waitcnt vmcnt(0)")
    E("v_readfirstlane_b32 s63, v24"); E("s_mov_b32 s61, 0"); E(f"s_cmp_lt_u32 s63, {32 if opt('kvc', 0) else 1}"); E("s_cbranch_scc1 L_af_notyet")
    kv_prologue_loads(); E("s_mov_b32 s61, 1")
    L("L_af_notyet")
    E("s_barrier")
    E("s_setprio 3")
    E("s_cmp_eq_u32 s61, 1"); E("s_cbranch_scc1 L_af_rdy")
    go_poll("L_af_poll", 3)
    kv_prologue_loads()
    L("L_af_rdy")
    run("r6 m m m m")
    E(f"s_mov_b32 s58, {L_QX}")
    E("s_branch L_attn")

def a_kv():
    L("L_ak")
    E("s_load_dwordx2 s[16:17], s[0:1], 72")
    E("s_cmp_eq_u32 s47, 14"); E("s_cbranch_scc1 L_ak_k")
    E("s_load_dwordx2 s[12:13], s[0:1], 24"); E("s_branch L_ak_j")
    L("L_ak_k")
    E("s_load_dwordx2 s[12:13], s[0:1], 16")
    L("L_ak_j")
    E("s_mov_b32 s14, 25088"); E("s_mov_b32 s18, 896")
    E("s_lshl_b32 s55, s45, 12")
    q_setup()
    E("s_waitcnt lgkmcnt(0)")
    stamp(7)
    E(f"s_add_u32 s53, s56, {K_W}"); E("s_mov_b32 s70, s56")
    for n in range(7):
        E("s_mov_b32 m0, s53"); E("s_add_u32 s53, s53, 4096")
        E(f"buffer_load_dwordx4 v29, {WG}, s70 offen lds"); E("s_add_u32 s70, s70, 4096")
    E(f"s_mov_b32 m0, {K_GW}"); E("s_nop 0"); E(f"buffer_load_dwordx4 v29, {WU}, 0 offen lds")
    a_setup2(False)
    E(f"v_add_u32 v18, {K_W}, v18")
    E("s_waitcnt vmcnt(0) lgkmcnt(0)")
    E("s_barrier")
    stamp(1)
    for l in a_inits(): E(l)
    for r in range(QACC, QACC+16): E(f"v_mov_b32 v{r}, 0")
    E("s_barrier")
    E(f"s_add_u32 s53, s56, {K_W}")
    for n in range(7):
        E("s_mov_b32 m0, s53"); E("s_add_u32 s53, s53, 4096")
        E(f"buffer_load_dwordx4 v13, {WQ}, s54 offen lds"); E("s_add_u32 s54, s54, 57344")
    E("s_waitcnt vmcnt(0)")
    E("s_barrier")
    E("s_mov_b32 s59, 7")
    L("L_akloop")
    b0 = len(out)
    for s in range(4):
        E(f"ds_read_b128 {v(XF+4*s,4)}, v{14+s}")
        for q in range(2): E(f"ds_read_b64_tr_b16 {v(WF+4*s+2*q,2)}, v18 offset:{s*1024+q*256}")
    for s in range(4):
        E(f"s_waitcnt lgkmcnt({9-3*s})")
        mfma(QACC, WF+4*s, XF+4*s, QACC)
        E(f"v_add_u32 v{14+s}, 16384, v{14+s}")
    E("v_add_u32 v18, 4096, v18")
    E("s_sub_u32 s59, s59, 1"); E("s_cmp_lg_u32 s59, 0"); E("s_cbranch_scc1 L_akloop")
    loops.append(out[b0:])
    go_poll("L_ak_poll", 8)
    kv_prologue_loads()
    E(f"s_mov_b32 s58, {L_RED}")

def lds_spin(label, off, target, areg, treg, sleep=0):
    E(f"s_mov_b32 s62, {SPIN*8}")
    L(label)
    E(f"ds_read_b32 v{treg}, v{areg} offset:{off}"); E("s_waitcnt lgkmcnt(0)")
    E(f"v_readfirstlane_b32 s63, v{treg}"); E("s_sub_u32 s62, s62, 1"); E("s_cmp_eq_u32 s62, 0"); E(f"s_cbranch_scc1 {label}_x")
    if sleep:
        E(f"s_cmp_ge_u32 s63, {target}"); E(f"s_cbranch_scc1 {label}_x"); E(f"s_sleep {sleep}"); E(f"s_branch {label}")
    else:
        E(f"s_cmp_lt_u32 s63, {target}"); E(f"s_cbranch_scc1 {label}")
    L(label + "_x")

def owrites(s):
    R = []
    for q in range(4):
        if s == 2 and q == 3:
            R.append(f"ds_write_b32 v{1+s}, v{OA+16*s+12} offset:3072")
            R.append("s_mov_b32 exec_hi, 0")
        R.append(f"ds_write_b128 v{1+s}, {v(OA+16*s+4*q,4)} offset:{1024*q}")
    return R

def period(u, s):
    tau = 4*u + s
    Sc = (S0, S1)[tau & 1]; Sn = (S0, S1)[(tau+1) & 1]
    un, sn = ((tau+1)//4) % 4, (tau+1) % 4
    up, sp = ((tau-1)//4) % 4, (tau-1) % 4
    ul = (u + 3) % 4
    ex = [f"v_exp_f32 v{Sc+r}, v{Sc+r}" for r in range(16)]
    cv = [f"v_cvt_pk_bf16_f32 v{PREG+r}, v{Sc+2*r}, v{Sc+2*r+1}" for r in range(8)]
    if s == 0: Y = [[f"buffer_load_dwordx4 {v(KB+8*ul,4)}, v29, {KVW}, s60 offen sc1"], [f"buffer_load_dwordx4 {v(KB+8*ul+4,4)}, v29, {KVW}, s60 offen offset:1024 sc1"]]
    if s == 1: Y = [[f"buffer_load_dwordx4 {v(VB+8*ul,4)}, v29, {KVW}, s60 offen offset:2048 sc1"], [f"buffer_load_dwordx4 {v(VB+8*ul+4,4)}, v29, {KVW}, s60 offen offset:3072 sc1"]]
    if s == 2: Y = [["s_add_u32 s60, s60, 4096"], ["s_waitcnt vmcnt(8)"]]
    if s == 3: Y = [["s_nop 0"], ["s_nop 0"]]
    if not SPREAD:
        if s == 0: Y = [["s_nop 0"], ["s_nop 0"]]
        if s == 1: Y = [[f"buffer_load_dwordx4 {v(KB+8*ul,4)}, v29, {KVW}, s60 offen sc1", f"buffer_load_dwordx4 {v(KB+8*ul+4,4)}, v29, {KVW}, s60 offen offset:1024 sc1"] + Y[0] + Y[1], ["s_nop 0"]]
    if u == 2 and s == 3: Y = [["s_sub_u32 s59, s59, 1"], ["s_nop 0"]]
    if u == 3 and s == 2:
        Y = [["s_add_u32 s60, s60, 4096", "s_cmp_lg_u32 s59, 0"], ["s_waitcnt vmcnt(8)", "s_cbranch_scc1 L_ow2"] + owrites(0) + ["L_ow2:"]]
    if u == 3 and s == 3:
        Y = [["s_cbranch_scc1 L_ow3"] + owrites(1) + ["L_ow3:"], ["s_nop 0"]]
    def emit(ls):
        for l in ls:
            if l == "s_nop 0" and not YNOP: continue
            if l.endswith(":"): L(l[:-1])
            else: E(l)
    mfma(Sn, KB+8*un, QS+8*sn)
    emit(ex[0:3])
    mfma(Sn, KB+8*un+4, QS+8*sn+4, Sn)
    emit(ex[3:6])
    mfma(OA+16*sp, VB+8*up, PREG, OA+16*sp)
    emit(ex[6:9])
    mfma(OA+16*sp, VB+8*up+4, PREG+4, OA+16*sp)
    emit(ex[9:12]); emit(Y[0]); emit(ex[12:15]); emit(Y[1]); emit(ex[15:16]); emit(cv)

def attention():
    L("L_attn")
    stamp(2)
    E("s_setprio 3")
    C("Q epilogue -> slot 3")
    Q3 = QS + 24
    E(f"s_mov_b32 s64, {QSCALE}"); E("s_nop 0")
    E("v_cmp_eq_u32 vcc, 0, v31")
    E("s_lshl_b32 s66, s45, 11"); E("s_add_u32 s66, s66, s58"); E("v_add_u32 v24, s66, v29")
    E(f"v_mov_b32 v25, {L_CNT}"); E("v_mov_b32 v26, 1")
    nop(3)
    for r in range(16): E(f"v_mul_f32 v{QACC+r}, s64, v{QACC+r}")
    for r in range(8): E(f"v_cvt_pk_bf16_f32 v{Q3+r}, v{QACC+2*r}, v{QACC+2*r+1}")
    E(f"v_cndmask_b32 v{Q3+6}, 0, v{Q3+6}, vcc"); E(f"v_cndmask_b32 v{Q3+7}, 0, v{Q3+7}, vcc")
    E(f"ds_write_b128 v24, {v(Q3,4)}")
    E("s_waitcnt vmcnt(10)")
    mfma(S0, KB, Q3); mfma(S0, KB+4, Q3+4, S0)
    for s in range(3):
        E(f"s_add_u32 s65, s45, {1+s}"); E("s_and_b32 s65, s65, 3"); E("s_lshl_b32 s65, s65, 11"); E("s_add_u32 s65, s65, s58")
        E(f"v_add_u32 v{1+s}, s65, v29")
    E(f"v_max3_f32 v4, v{S0}, v{S0+1}, v{S0+2}"); E(f"v_max3_f32 v5, v{S0+3}, v{S0+4}, v{S0+5}")
    E(f"v_max3_f32 v4, v4, v{S0+6}, v{S0+7}"); E(f"v_max3_f32 v5, v5, v{S0+8}, v{S0+9}")
    E(f"v_max3_f32 v4, v4, v{S0+10}, v{S0+11}"); E(f"v_max3_f32 v5, v5, v{S0+12}, v{S0+13}")
    E(f"v_max3_f32 v4, v4, v{S0+14}, v{S0+15}")
    E("v_max_f32 v4, v4, v5")
    E("v_mov_b32 v5, v4"); nop(2)
    E("v_permlane32_swap_b32 v4, v5"); nop(1)
    E("v_max_f32 v4, v4, v5")
    E("v_cvt_pk_bf16_f32 v4, -v4, 0")
    E(f"v_cndmask_b32 v{Q3+6}, v4, v{Q3+6}, vcc")
    E(f"ds_write_b128 v24, {v(Q3+4,4)} offset:1024")
    E("s_mov_b64 exec, 1")
    E(f"ds_add_u32 v25, v26 offset:{QC}")
    E("s_mov_b64 exec, -1")
    lds_spin("L_qspin", QC, 4, 25, 5)
    for s in range(3):
        E(f"ds_read_b128 {v(QS+8*s,4)}, v{1+s}"); E(f"ds_read_b128 {v(QS+8*s+4,4)}, v{1+s} offset:1024")
    E("s_mov_b64 exec, 1")
    E(f"ds_add_u32 v25, v26 offset:{QD}")
    E("s_mov_b64 exec, -1")
    E("s_waitcnt lgkmcnt(5)")
    mfma(S0, KB, QS); mfma(S0, KB+4, QS+4, S0)
    for s in range(3):
        E(f"s_add_u32 s65, s45, {1+s}"); E("s_and_b32 s65, s65, 3"); E("s_mul_i32 s65, s65, 12288"); E(f"s_add_u32 s65, s65, {L_RED+4096*s}")
        E(f"v_add_u32 v{1+s}, s65, v29")
    E("s_mul_i32 s65, s45, 12288"); E(f"s_add_u32 s65, s65, {L_RED}"); E("v_add_u32 v4, s65, v29")
    E("s_lshl_b32 s65, s46, 2"); E("s_add_u32 s65, s65, s45"); E("s_lshl_b32 s65, s65, 4"); E("s_add_u32 s65, s65, s50"); E("s_lshl_b32 s65, s65, 11"); E(f"s_add_u32 s65, s65, {WS_O}")
    E(f"v_mov_b32 v7, {f32bits(2.0**100)}"); E(f"v_mov_b32 v8, {f32bits(2.0**-60)}"); E("v_mov_b32 v9, 0x7f800000")
    E("s_waitcnt vmcnt(8) lgkmcnt(0)")
    E(f"s_mov_b32 s59, {3 if XP & 32 else 4}")
    E("s_setprio 1")
    stamp(3)
    out.append(".p2align 6")
    L("L_aloop")
    b0 = len(out)
    for u in range(4):
        for s in range(4): period(u, s)
    E("s_cbranch_scc1 L_aloop")
    loops.append(out[b0:])
    stamp(4)
    E("s_setprio 3")
    O3 = OA + 48
    mfma(O3, VB+24, PREG, O3); mfma(O3, VB+28, PREG+4, O3)
    for l in owrites(2): E(l)
    E("s_mov_b32 exec_lo, 1")
    E(f"ds_add_u32 v25, v26 offset:{RC}"); E("s_mov_b64 exec, -1")
    E("s_waitcnt vmcnt(0)")
    lds_spin("L_rspin", RC, 4, 25, 5)
    stamp(5)
    for q in range(12): E(f"ds_read_b128 {v(KB+4*q,4)}, v4 offset:{1024*q}")
    E("v_cmp_eq_u32 vcc, 0, v31")
    for s in range(3):
        E(f"s_waitcnt lgkmcnt({8-4*s})")
        for r in range(16): E(f"v_add_f32 v{O3+r}, v{O3+r}, v{KB+16*s+r}")
    E(f"v_mov_b32 v4, v{O3+12}"); E(f"v_mov_b32 v5, v{O3+12}")
    for r in (13, 14, 15): E(f"v_cndmask_b32 v{O3+r}, 0, v{O3+r}, vcc")
    E("v_permlane32_swap_b32 v4, v5")
    E(f"v_add_f32 v10, v{O3}, v{O3+1}"); E(f"v_add_f32 v11, v{O3+2}, v{O3+3}")
    E("v_rcp_f32 v4, v5")
    for r in range(4, 16, 2): E(f"v_add_f32 v10, v10, v{O3+r}"); E(f"v_add_f32 v11, v11, v{O3+r+1}")
    E("v_cmp_ge_f32 s[66:67], v7, v5"); E("v_cmp_le_f32 s[68:69], v8, v5")
    E("v_add_f32 v6, v10, v11")
    E("v_cmp_gt_f32 s[70:71], v9, |v6|")
    E(f"v_mul_f32 v4, v{VG}, v4")
    E("s_and_b64 s[66:67], s[66:67], s[68:69]"); E("s_and_b64 s[66:67], s[66:67], s[70:71]")
    E("s_cmp_eq_u64 s[66:67], -1"); E("s_cbranch_scc0 L_fb")
    L("L_norm")
    for r in range(8): E(f"v_mul_f32 v{O3+r}, v4, v{O3+r}")
    for r in range(4): E(f"v_cvt_pk_bf16_f32 v{PREG+r}, v{O3+2*r}, v{O3+2*r+1}")
    for r in range(4): E(f"v_min_u32 v{PREG+r}, -2, v{PREG+r}")
    E(f"buffer_store_dwordx4 {v(PREG,4)}, v29, {WS}, s65 offen sc1")
    for r in range(8, 16): E(f"v_mul_f32 v{O3+r}, v4, v{O3+r}")
    for r in range(4, 8): E(f"v_cvt_pk_bf16_f32 v{PREG+r}, v{O3+2*r}, v{O3+2*r+1}")
    E(f"v_cndmask_b32 v{PREG+6}, 0, v{PREG+6}, vcc"); E(f"v_cndmask_b32 v{PREG+7}, 0, v{PREG+7}, vcc")
    for r in range(4, 8): E(f"v_min_u32 v{PREG+r}, -2, v{PREG+r}")
    E(f"buffer_store_dwordx4 {v(PREG+4,4)}, v29, {WS}, s65 offen offset:1024 sc1")
    E("s_mov_b64 exec, 1"); E(f"ds_add_u32 v25, v26 offset:{AD}"); E("s_mov_b64 exec, -1")
    stamp(6)
    stamp_flush("a")
    E("s_endpgm")
    L("L_fb")
    E("v_cmp_eq_u32 vcc, 0, v31"); E("v_mov_b32 v4, 0xff800000"); E("s_mov_b32 s60, 0")
    E(f"v_cndmask_b32 v{Q3+6}, 0, v{Q3+6}, vcc")
    L("L_fb1")
    E(f"buffer_load_dwordx4 {v(KB,4)}, v29, {WS}, s60 offen sc1"); E(f"buffer_load_dwordx4 {v(KB+4,4)}, v29, {WS}, s60 offen offset:1024 sc1")
    E("s_waitcnt vmcnt(0)")
    mfma(S0, KB, Q3); mfma(S0, KB+4, Q3+4, S0); nop(12)
    for r in range(0, 16, 2): E(f"v_max3_f32 v4, v4, v{S0+r}, v{S0+r+1}")
    E("s_add_u32 s60, s60, 4096"); E("s_cmp_lt_u32 s60, 0x40000"); E("s_cbranch_scc1 L_fb1")
    E("v_mov_b32 v5, v4"); nop(2); E("v_permlane32_swap_b32 v4, v5"); nop(1); E("v_max_f32 v4, v4, v5")
    for r in range(16): E(f"v_mov_b32 v{O3+r}, 0")
    E("s_mov_b32 s60, 0")
    L("L_fb2")
    E(f"buffer_load_dwordx4 {v(KB,4)}, v29, {WS}, s60 offen sc1"); E(f"buffer_load_dwordx4 {v(KB+4,4)}, v29, {WS}, s60 offen offset:1024 sc1")
    E(f"buffer_load_dwordx4 {v(VB,4)}, v29, {WS}, s60 offen offset:2048 sc1"); E(f"buffer_load_dwordx4 {v(VB+4,4)}, v29, {WS}, s60 offen offset:3072 sc1")
    E("s_waitcnt vmcnt(0)")
    mfma(S0, KB, Q3); mfma(S0, KB+4, Q3+4, S0); nop(12)
    for r in range(16): E(f"v_sub_f32 v{S0+r}, v{S0+r}, v4")
    for r in range(16): E(f"v_exp_f32 v{S0+r}, v{S0+r}")
    nop(1)
    for r in range(8): E(f"v_cvt_pk_bf16_f32 v{PREG+r}, v{S0+2*r}, v{S0+2*r+1}")
    nop(2)
    mfma(O3, VB, PREG, O3); mfma(O3, VB+4, PREG+4, O3)
    E("s_add_u32 s60, s60, 4096"); E("s_cmp_lt_u32 s60, 0x40000"); E("s_cbranch_scc1 L_fb2")
    nop(12)
    E(f"v_mov_b32 v4, v{O3+12}"); E(f"v_mov_b32 v5, v{O3+12}"); nop(2)
    E("v_permlane32_swap_b32 v4, v5"); nop(1)
    E("v_rcp_f32 v4, v5"); nop(1)
    E(f"v_mul_f32 v4, v{VG}, v4")
    E("s_branch L_norm")

def d_setup():
    E("s_add_u32 s13, s45, s49"); E("s_add_u32 s13, s13, s48"); E("s_and_b32 s13, s13, 3"); E("s_lshl_b32 s13, s13, 1")
    E("s_lshr_b32 s14, s49, 2"); E("s_lshr_b32 s70, s48, 1"); E("s_xor_b32 s14, s14, s70"); E("s_and_b32 s14, s14, 1")
    E("s_add_u32 s13, s13, s14"); E("s_xor_b32 s14, s13, 1")
    E("s_and_b32 s70, s49, 1"); E("s_lshl_b32 s70, s70, 1"); E("s_xor_b32 s8, s45, s70")
    E("s_and_b32 s9, s8, 1"); E("s_lshr_b32 s10, s8, 1"); E("s_lshl_b32 s12, s8, 11")
    E("v_lshrrev_b32 v17, 3, v0"); E("v_mul_u32_u24 v17, 896, v17")
    E("v_bfe_u32 v18, v0, 4, 1"); E("v_lshlrev_b32 v18, 2, v18"); E("v_and_b32 v19, 7, v0"); E("v_xor_b32 v18, v18, v19")
    E("v_lshl_add_u32 v32, v18, 4, v17"); E("v_add_u32 v33, 6144, v32")
    E("v_lshl_add_u32 v17, v31, 2, v28"); E("v_lshl_add_u32 v17, v17, 7, v27")
    E("v_lshrrev_b32 v18, 1, v28"); E("v_xor_b32 v18, s10, v18"); E("v_lshl_add_u32 v17, v18, 6, v17")
    E("v_add_u32 v34, s12, v17"); E("v_xor_b32 v35, 64, v34"); E("v_add_u32 v36, 0x10000, v34"); E("v_add_u32 v37, 0x10000, v35")
    E("s_lshl_b32 s70, s10, 12"); E("v_add_u32 v38, s70, v17"); E("v_xor_b32 v39, 64, v38")
    E("s_lshl_b32 s11, s48, 1"); E("s_add_u32 s11, s11, s9"); E("s_xor_b32 s70, s11, 1")
    E("s_mul_i32 s71, s11, 114688"); E(f"s_add_u32 s71, s71, {WS_H}"); E("v_add_u32 v40, s71, v29")
    E("s_mul_i32 s71, s70, 114688"); E(f"s_add_u32 s71, s71, {WS_H}"); E("v_add_u32 v41, s71, v29")
    E("s_lshl_b32 s15, s49, 7"); E("s_mul_i32 s16, s13, 200704"); E("s_add_u32 s16, s16, s15"); E("s_mov_b32 s17, s12")
    E("v_and_b32 v19, 31, v0"); E("v_lshlrev_b32 v42, 2, v19")
    E("v_min_u32 v43, 15, v0"); E("v_lshlrev_b32 v43, 7, v43")
    E("v_mul_u32_u24 v44, 3584, v0")
    E("s_lshl_b32 s70, s11, 4"); E("s_lshl_b32 s71, s10, 3"); E("s_add_u32 s70, s70, s71"); E("s_lshl_b32 s70, s70, 11"); E(f"s_add_u32 s70, s70, {WS_O}")
    E("v_add_u32 v45, s70, v29"); E("v_add_u32 v46, 1024, v45")
    E("v_add_u32 v47, s12, v29"); E("v_add_u32 v47, 0x10000, v47"); E("v_xor_b32 v48, 2048, v47"); E("v_xor_b32 v49, 4096, v47")
    E("v_mul_u32_u24 v50, 896, v19"); E("v_lshl_add_u32 v50, v31, 4, v50")
    E(f"v_mov_b32 v25, {L_CNT}"); E("v_mov_b32 v26, 1")

def wd_slot():
    return ["s_mov_b32 m0, s17", "s_add_u32 s17, s17, 8192", f"buffer_load_dwordx4 v32, {WD}, s16 offen lds",
            f"buffer_load_dwordx4 v33, {WD}, s16 offen offset:1024 lds", "s_add_u32 s16, s16, 14336"]

def g_ffn():
    L("L_gf")
    ACC = 128; GX = 64; GW_ = 80
    lane_pieces()
    E("s_and_b32 s52, s45, 1"); E("s_lshr_b32 s53, s45, 1")
    E("s_lshl_b32 s70, s52, 13"); E("v_add_u32 v1, s70, v30")
    for s in range(1, 4): E(f"v_xor_b32 v{1+s}, {32*s}, v1")
    E("v_bfe_u32 v17, v0, 4, 1")
    E("v_lshl_add_u32 v18, v17, 2, v28")
    E("s_lshl_b32 s70, s53, 2"); E("v_xor_b32 v18, s70, v18"); E("v_lshlrev_b32 v18, 5, v18")
    E("v_and_b32 v19, 3, v0"); E("v_lshl_add_u32 v18, v19, 3, v18")
    E("v_lshl_add_u32 v19, v31, 3, v28"); E("v_lshl_add_u32 v18, v19, 8, v18")
    E("v_lshl_add_u32 v18, v17, 14, v18"); E(f"v_add_u32 v5, {F_G}, v18")
    for t in range(1, 4): E(f"v_xor_b32 v{5+t}, {32*t}, v5")
    for k in range(8): E(f"v_add_u32 v{9+k}, {F_STAGE}, v{1+k}"); E(f"v_add_u32 v{112+k}, {2*F_STAGE}, v{1+k}")
    d_setup()
    E("s_lshl_b32 s56, s46, 2"); E("s_lshl_b32 s70, s52, 1"); E("s_add_u32 s56, s56, s70"); E("s_mul_i32 s56, s56, 114688")
    E("s_lshl_b32 s70, s47, 13"); E("s_add_u32 s56, s56, s70"); E("s_lshl_b32 s70, s53, 12"); E("s_add_u32 s56, s56, s70"); E(f"s_add_u32 s56, s56, {WS_H}")
    E("s_add_u32 s57, s56, 114688")
    E("s_waitcnt lgkmcnt(0)")
    E("s_barrier")
    prefill()
    E("s_barrier")
    stamp(1)
    def reads(p, s):
        st = s & 1; ab = (1, 9, 112)[(p + 2) % 3]
        R = []
        R.append(f"ds_read_b128 {v(GX+8*st,4)}, v{ab+s}")
        for q in range(2): R.append(f"ds_read_b64_tr_b16 {v(GW_+16*st+2*q,2)}, v{ab+4} offset:{4096*s+1024*q}")
        R.append(f"ds_read_b128 {v(GX+8*st+4,4)}, v{ab+s} offset:4096")
        for t in range(1, 4):
            for q in range(2): R.append(f"ds_read_b64_tr_b16 {v(GW_+16*st+4*t+2*q,2)}, v{ab+4+t} offset:{4096*s+1024*q}")
        return R
    def ep(n):
        t, a = n >> 1, n & 1
        d = ACC + 64*a + 16*t
        for r in range(8): E(f"v_mul_f32 v{d+r}, v{d+r}, v{d+8+r}")
        for r in range(4): E(f"v_cvt_pk_bf16_f32 v{d+8+r}, v{d+2*r}, v{d+2*r+1}")
        E(f"buffer_store_dwordx4 {v(d+8,4)}, v29, {WS}, s{56+a} offen offset:{1024*t} sc1")
    for l in reads(0, 0): E(l)
    for p in range(7):
        for s in range(4):
            st = s & 1
            last = (p == 6 and s == 3)
            E("s_waitcnt lgkmcnt(0)")
            R = [] if last else (reads(p, s+1) if s < 3 else reads(p+1, 0))
            if p == 6 and s == opt("gps", 3): E("s_setprio 3")
            n = 0
            for t in range(4):
                for a in range(2):
                    d = ACC + 64*a + 16*t
                    mfma(d, GW_+16*st+4*t, GX+8*st+4*a, None if (p == 0 and s == 0) else d)
                    if n == 0 and ((s == 3 and p < 6) or (s == 1 and p < HALF)): E("s_barrier")
                    for l in R[:2]: E(l)
                    R = R[2:]
                    if p == 6 and s in EWS and n == 4:
                        E("s_cmp_eq_u32 s49, 7"); E(f"s_cbranch_scc1 L_gf_nd{s}")
                        for l in wd_slot() + wd_slot(): E(l)
                        L(f"L_gf_nd{s}")
                    if last and n == 1: nop(11)
                    if last and n >= 1: ep(n-1)
                    n += 1
    stamp(2)
    ep(7)
    E(f"s_mov_b32 s19, {12-2*len(EWS)}")
    E("s_branch L_gpub")

def g_kv():
    L("L_gk")
    D1, D2, D3 = 128, 128, 160
    GX = 64; GWf = 80; GG = 96
    x_dma_addrs()
    E("s_mov_b32 s53, s55")
    E("s_waitcnt lgkmcnt(0)")
    def xblk():
        E("s_mov_b32 m0, s53"); E("s_add_u32 s53, s53, 16384")
        for n in range(4): E(f"buffer_load_dwordx4 v{1+n}, {X}, s52 offen offset:{1024*n} lds")
        E("s_add_u32 s52, s52, 128")
    for kb in range(3): xblk()
    lane_pieces()
    E("v_add_u32 v9, s55, v30")
    for s in range(1, 4): E(f"v_xor_b32 v{9+s}, {32*s}, v9")
    E("v_lshl_add_u32 v17, v31, 3, v28"); E("v_mul_u32_u24 v17, 56, v17"); E("v_add_u32 v13, v17, v27"); E(f"v_add_u32 v13, {K_W}, v13")
    E("v_lshlrev_b32 v6, 4, v31"); E(f"v_add_u32 v6, {K_GW}, v6")
    for r in range(16): E(f"v_mov_b32 v{D1+r}, 0"); E(f"v_mov_b32 v{D3+r}, 0")
    E("s_mov_b32 s54, 0"); E("s_mov_b32 s59, 0x10000000")
    E("s_barrier")
    stamp(1)
    L("L_gkloop")
    b0 = len(out)
    E("s_cmp_ge_u32 s54, 4"); E("s_cbranch_scc1 L_gk_dum")
    xblk()
    E("s_branch L_gk_rd")
    L("L_gk_dum")
    for n in range(4): E(f"buffer_load_dword v40, off, {X}, s59")
    L("L_gk_rd")
    E("s_waitcnt vmcnt(12)")
    for s in range(4):
        E(f"ds_read_b128 {v(GX+4*s,4)}, v{9+s}")
        for q in range(2): E(f"ds_read_b64_tr_b16 {v(GWf+4*s+2*q,2)}, v13 offset:{896*s+224*q}")
    E("s_cmp_eq_u32 s47, 15"); E("s_cbranch_scc1 L_gk_lv")
    for s in range(4):
        E(f"s_waitcnt lgkmcnt({9-2*s})")
        mfma(D1, GWf+4*s, GX+4*s, D1)
        E(f"ds_read_b128 {v(GG+4*s,4)}, v6 offset:{32*s}")
    for s in range(4):
        E(f"s_waitcnt lgkmcnt({3-s})")
        mfma(D3, GG+4*s, GX+4*s, D3)
    E("s_branch L_gk_le")
    L("L_gk_lv")
    for s in range(4):
        E(f"s_waitcnt lgkmcnt({9-3*s})")
        mfma(D2, GX+4*s, GWf+4*s, D2)
    L("L_gk_le")
    for s in range(4): E(f"v_add_u32 v{9+s}, 16384, v{9+s}")
    E("v_add_u32 v13, 3584, v13"); E("v_add_u32 v6, 128, v6")
    E("s_add_u32 s54, s54, 1"); E("s_cmp_lt_u32 s54, 7"); E("s_cbranch_scc1 L_gkloop")
    loops.append(out[b0:])
    E("s_barrier")
    stamp(2)
    E("s_lshl_b32 s56, s46, 2"); E("s_add_u32 s56, s56, s45"); E("s_lshl_b32 s57, s56, 7"); E("s_lshl_b32 s56, s56, 12"); E(f"s_add_u32 s57, s57, {WS_G}")
    E("v_and_b32 v17, 31, v0")
    nop(6)
    E("s_cmp_eq_u32 s47, 15"); E("s_cbranch_scc1 L_gk_v")
    E("v_cmp_eq_u32 vcc, 0, v31")
    for r in range(8): E(f"v_cvt_pk_bf16_f32 v{32+r}, v{D1+2*r}, v{D1+2*r+1}")
    E("v_mov_b32 v18, 0x3f80")
    E("v_cndmask_b32 v38, v18, v38, vcc"); E("v_cndmask_b32 v39, 0, v39, vcc")
    E(f"buffer_store_dwordx4 v[32:35], v29, {WS}, s56 offen sc1")
    E(f"buffer_store_dwordx4 v[36:39], v29, {WS}, s56 offen offset:1024 sc1")
    E(f"v_mul_f32 v18, {f32bits(-math.log2(math.e)):#x}, v{D3}")
    E("v_exp_f32 v18, v18"); E("v_lshlrev_b32 v17, 2, v17")
    E("v_add_f32 v18, 1.0, v18"); E("v_rcp_f32 v18, v18")
    E("s_mov_b32 exec_hi, 0")
    E(f"buffer_store_dword v18, v17, {WS}, s57 offen sc1")
    E("s_mov_b64 exec, -1")
    E("s_branch L_gk_pub")
    L("L_gk_v")
    E("v_cmp_gt_u32 vcc, 28, v17"); E("v_cmp_eq_u32 s[66:67], 28, v17")
    E("v_mov_b32 v18, 0x3f803f80"); E("v_mov_b32 v19, 0")
    E("v_cndmask_b32 v18, v19, v18, s[66:67]")
    for r in range(8): E(f"v_cvt_pk_bf16_f32 v{32+r}, v{D2+2*r}, v{D2+2*r+1}")
    for r in range(8): E(f"v_cndmask_b32 v{32+r}, v18, v{32+r}, vcc")
    E(f"buffer_store_dwordx4 v[32:35], v29, {WS}, s56 offen offset:2048 sc1")
    E(f"buffer_store_dwordx4 v[36:39], v29, {WS}, s56 offen offset:3072 sc1")
    L("L_gk_pub")
    E("s_lshl_b32 s70, s47, 2"); E("s_add_u32 s70, s70, s45"); E("s_cmp_lg_u32 s70, 56"); E("s_cbranch_scc1 L_gk_nz")
    E("v_lshlrev_b32 v41, 7, v0"); E("v_mov_b32 v42, 0"); E("s_lshl_b32 s70, s46, 11"); E(f"s_add_u32 s70, s70, {WS_HF}")
    E("s_mov_b32 exec_lo, 0xffff"); E("s_mov_b32 exec_hi, 0")
    E(f"buffer_store_dword v42, v41, {WS}, s70 offen sc1")
    E("s_mov_b64 exec, -1")
    L("L_gk_nz")
    E(f"v_mov_b32 v25, {L_CNT}"); E("v_mov_b32 v26, 1")
    E("s_waitcnt vmcnt(0)")
    E("s_mov_b64 exec, 1")
    E(f"ds_add_rtn_u32 v24, v25, v26 offset:{KC}"); E("s_waitcnt lgkmcnt(0)")
    E("v_readfirstlane_b32 s63, v24"); nop(1)
    E("s_cmp_lg_u32 s63, 3"); E("s_cbranch_scc1 L_gk_nosig")
    E("v_mov_b32 v24, 1")
    E(f"buffer_atomic_add v24, off, {DBG}, 0 sc0 sc1"); E("s_waitcnt vmcnt(0)")
    E("v_readfirstlane_b32 s63, v24"); nop(1)
    E("s_cmp_lg_u32 s63, 31"); E("s_cbranch_scc1 L_gk_nosig")
    E(f"buffer_store_dword v26, off, {DBG}, 0 offset:128 sc1")
    L("L_gk_nosig")
    E("s_mov_b64 exec, -1")
    stamp(5)
    prefill()
    d_setup()
    E("s_mov_b32 s19, 12")
    E("s_barrier")
    lds_spin("L_gk_s1", QD, 4, 25, 24, 4)
    L("L_gpub")
    E("s_setprio 3")
    lds_spin("L_g_go", QC, 1, 25, 24, 2)
    E("s_waitcnt vmcnt(0)")
    E("s_mov_b64 exec, 1")
    E(f"ds_add_rtn_u32 v24, v25, v26 offset:{GC}"); E("s_waitcnt lgkmcnt(0)")
    E("v_readfirstlane_b32 s63, v24")
    E("s_lshl_b32 s70, s46, 4"); E("s_add_u32 s70, s70, s47"); E("s_lshl_b32 s70, s70, 7"); E(f"s_add_u32 s70, s70, {WS_HF}")
    E("s_cmp_lg_u32 s63, 3"); E("s_cbranch_scc1 L_g_nosig")
    E(f"buffer_store_dword v26, off, {WS}, s70 sc1")
    L("L_g_nosig")
    E("s_mov_b64 exec, -1")

def g_down():
    L("L_gd")
    stamp(3)
    E("s_cmp_eq_u32 s49, 7"); E("s_cbranch_scc1 L_gend")
    HB = 64; WFR = 176; ACC = 192
    if XP & 8:
        lds_post(WL); E(f"ds_read_b64 v[22:23], v25 offset:{AD-4}"); E(f"ds_read_b32 v24, v25 offset:{WL}"); E("s_branch L_xp8")
    E("s_setprio 0")
    L("L_gd_wd")
    E("s_waitcnt vmcnt(6)")
    for l in wd_slot(): E(l)
    E("s_sub_u32 s19, s19, 1"); E("s_cmp_lg_u32 s19, 0"); E("s_cbranch_scc1 L_gd_wd")
    E("s_and_b32 s70, s48, 3"); E("s_mul_i32 s70, s70, 896")
    E("s_mul_i32 s71, s8, 100352"); E("s_add_u32 s70, s70, s71"); E("s_add_u32 s70, s70, s15")
    E("s_mov_b32 exec_lo, 0xfffffff"); E("s_mov_b32 exec_hi, 0")
    E(f"buffer_load_dword v10, v44, {WO}, s70 offen")
    E("s_mov_b64 exec, -1")
    E("s_lshl_b32 s70, s11, 7"); E(f"s_add_u32 s70, s70, {WS_G}")
    E(f"buffer_load_dword v9, v42, {WS}, s70 offen sc1")
    E("s_lshr_b32 s70, s48, 1"); E("s_lshl_b32 s70, s70, 11"); E(f"s_add_u32 s70, s70, {WS_HF}")
    E("s_setprio 3")
    lds_spin("L_gd_s1", QD, 4, 25, 24, 2)
    lds_spin("L_gd_s2", GC, 4, 25, 24, 2)
    for k in range(2):
        for l in wd_slot(): E(l)
    E(f"s_mov_b32 s62, {SPIN}")
    L("L_gd_poll")
    E(f"buffer_load_dword v18, v43, {WS}, s70 offen sc1"); E("s_waitcnt vmcnt(0)")
    E("v_cmp_ne_u32 vcc, 1, v18"); E("s_sub_u32 s62, s62, 1"); E("s_cmp_eq_u32 s62, 0"); E("s_cbranch_scc1 L_gd_go")
    E("s_cbranch_vccz L_gd_go"); E("s_sleep 6"); E("s_branch L_gd_poll")
    L("L_gd_go")
    stamp(4)
    E("s_setprio 0")
    NH = DD + 1
    ops = []
    E("s_mul_i32 s59, s13, 14336")
    E("s_mul_i32 s16, s14, 200704"); E("s_add_u32 s16, s16, s15")
    def hload(s):
        if s == 14: E("s_mul_i32 s59, s14, 14336")
        o = (s % 14) % 4
        r = HB + 8*(s % NH)
        E(f"buffer_load_dwordx4 {v(r,4)}, v40, {WS}, s59 offen offset:{1024*o} sc1"); E(f"buffer_load_dwordx4 {v(r+4,4)}, v41, {WS}, s59 offen offset:{1024*o} sc1")
        if o == 3: E("s_add_u32 s59, s59, 4096")
        ops.extend([("h", s)]*2)
    def younger(tags):
        idx = [k for k, t in enumerate(ops) if t in tags]
        return len(ops) - 1 - max(idx) if idx else None
    def wreads(s):
        st = s & 1; sl = s % 14
        return [f"ds_read_b64_tr_b16 {v(WFR+8*st+4*ct+2*q,2)}, v{34+ct+2*(sl>>3)} offset:{8192*(sl&7)+1024*q}" for ct in range(2) for q in range(2)]
    for s in range(DD): hload(s)
    for l in wreads(0): E(l)
    for s in range(28):
        st = s & 1
        n = younger({("h", s), ("w", s+1)})
        E(f"s_waitcnt vmcnt({n}) lgkmcnt(0)")
        if s == 22 + DD:
            assert n <= younger({("w", 35)})
            lds_post(WL)
        R = wreads(s+1) if s < 27 else [f"ds_read_b64 v[22:23], v25 offset:{AD-4}", f"ds_read_b32 v24, v25 offset:{WL}"]
        for a in range(2):
            for ct in range(2):
                d = ACC + 32*a + 16*ct
                if not (XP & 64): mfma(d, WFR+8*st+4*ct, HB+8*(s % NH)+4*a, None if s == 0 else d)
                if R: E(R.pop(0))
                if a == 0 and ct == 1 and s + DD < 28: hload(s + DD)
        if s == 14:
            E("s_mul_i32 s16, s8, 100352"); E("s_add_u32 s16, s16, s15")
        if s < 22:
            srd_ = WD if s < 14 else WO
            E(f"s_add_u32 m0, s12, {8192*(s % 14)}"); E("s_nop 0")
            E(f"buffer_load_dwordx4 v32, {srd_}, s16 offen lds"); E(f"buffer_load_dwordx4 v33, {srd_}, s16 offen offset:1024 lds")
            E(f"s_add_u32 s16, s16, {14336 if (s < 14 or s % 2 == 0) else 10752}")
            ops.extend([("w", s+14)]*2)
    if XP & 8: L("L_xp8")
    stamp(5)
    OF = 96
    def wo_reg(e): return (64 if (e >> 2) & 1 == 0 else 160) + 8*(e & 3)
    def oloads(g0):
        for g in range(g0, 4):
            for n in range(4): E(f"buffer_load_dwordx4 {v(OF+16*g+4*n,4)}, v45, {WS}, s{52+g} offen offset:{1024*n} sc1")
    def woread(e):
        hh, a = e >> 1, e & 1
        off = (hh >> 2)*2048 + (2*(hh & 3) + a)*8192
        return [f"ds_read_b64_tr_b16 {v(wo_reg(e)+4*ct+2*q,2)}, v{38+ct} offset:{off+1024*q}" for ct in (1, 0) for q in range(2)]
    E("s_setprio 2")
    for g in range(4): E(f"s_mov_b32 s{52+g}, {4096*g}")
    E("s_waitcnt lgkmcnt(0)")
    E("v_readfirstlane_b32 s67, v23"); E("v_readfirstlane_b32 s63, v24"); E("v_sub_f32 v9, 1.0, v9")
    E("s_cmp_lt_u32 s67, 4"); E("s_cbranch_scc1 L_ge_ne")
    oloads(0)
    L("L_ge_ne")
    E("s_cmp_ge_u32 s63, 4"); E("s_cbranch_scc1 L_ge_wl_x")
    lds_spin("L_ge_wl", WL, 4, 25, 24)
    for q in range(8): E(f"ds_write_b128 v47, {v(ACC+32+4*q,4)} offset:{8192*(q>>1)+1024*(q&1)}")
    lds_post(XC)
    for e in range(8):
        for l in woread(e): E(l)
    for r in range(32): E(f"v_mul_f32 v{ACC+r}, v9, v{ACC+r}")
    E("v_xor_b32 v46, 4096, v48")
    E("s_mul_i32 s66, s11, 28672"); E("s_add_u32 s66, s66, s15"); E("s_lshl_b32 s71, s10, 6"); E("s_add_u32 s66, s66, s71")
    E("s_cmp_ge_u32 s67, 4"); E("s_cbranch_scc1 L_ge_ld")
    if not (XP & 16): lds_spin("L_ge_ad", AD, 4, 25, 24, 1)
    if opt("osleep", 0): E(f"s_sleep {opt('osleep', 0)}")
    oloads(0)
    L("L_ge_ld")
    lds_spin("L_gx", XC, 4, 25, 24)
    for q in range(4): E(f"ds_read_b128 {v(ACC+32+4*q,4)}, v48 offset:{8192*(q>>1)+1024*(q&1)}")
    for q in range(4, 8): E(f"ds_read_b128 {v(ACC+32+4*q,4)}, v46 offset:{8192*(q>>1)+1024*(q&1)}")
    E("s_waitcnt lgkmcnt(0)")
    for r in range(16): E(f"v_add_f32 v{ACC+32+r}, v{ACC+32+r}, v{ACC+48+r}")
    for r in range(16): E(f"v_fmac_f32 v{ACC+r}, v9, v{ACC+32+r}")
    E(f"s_mov_b32 s62, {0 if XP & 16 else SPIN}")
    for g in range(4):
        L(f"L_ge_c{g}")
        E(f"s_waitcnt vmcnt({12-4*g})")
        E(f"v_max3_u32 v17, v{OF+16*g}, v{OF+16*g+1}, v{OF+16*g+2}"); E(f"v_max3_u32 v18, v{OF+16*g+3}, v{OF+16*g+4}, v{OF+16*g+5}")
        E(f"v_max3_u32 v17, v17, v{OF+16*g+6}, v{OF+16*g+7}"); E(f"v_max3_u32 v18, v18, v{OF+16*g+8}, v{OF+16*g+9}")
        E(f"v_max3_u32 v17, v17, v{OF+16*g+10}, v{OF+16*g+11}"); E(f"v_max3_u32 v18, v18, v{OF+16*g+12}, v{OF+16*g+13}")
        E(f"v_max3_u32 v17, v17, v{OF+16*g+14}, v{OF+16*g+15}")
        E("v_max_u32 v17, v17, v18")
        E("v_cmp_eq_u32 vcc, -1, v17"); E(f"s_cbranch_vccz L_ge_k{g}")
        E("s_cmp_eq_u32 s62, 0"); E(f"s_cbranch_scc1 L_ge_k{g}")
        E("s_sub_u32 s62, s62, 1")
        oloads(g)
        E(f"s_branch L_ge_c{g}")
        L(f"L_ge_k{g}")
        if g >= 2: E(f"s_waitcnt lgkmcnt({0 if g == 3 else 15})")
        for e in range(4*g, 4*g+4):
            mfma(ACC+16, wo_reg(e)+4, OF+4*e, ACC+16)
            if g < 2:
                for l in woread(e+8)[0:2]: E(l)
        if g < 2:
            for e in range(4*g, 4*g+4):
                mfma(ACC, wo_reg(e), OF+4*e, ACC)
                for l in woread(e+8)[2:4]: E(l)
    stamp(6)
    for e in range(8, 16):
        mfma(ACC, wo_reg(e), OF+4*e, ACC)
        if e == 8: nop(6)
        if e == 9:
            nop(4)
            for q in range(4): E(f"ds_write_b128 v47, {v(ACC+16+4*q,4)} offset:{8192*(4+(q>>1))+1024*(q&1)}")
        if e == 12:
            E("s_waitcnt lgkmcnt(0)"); E("s_barrier")
            for q in range(4): E(f"ds_read_b128 {v(ACC+16+4*q,4)}, v49 offset:{8192*(4+(q>>1))+1024*(q&1)}")
    nop(11)
    for p in range(2):
        E(f"s_waitcnt lgkmcnt({2-2*p})")
        for r in range(8*p, 8*p+8): E(f"v_add_f32 v{ACC+r}, v{ACC+r}, v{ACC+16+r}")
        for r in range(4*p, 4*p+4): E(f"v_cvt_pk_bf16_f32 v{56+r}, v{ACC+2*r}, v{ACC+2*r+1}")
        nop(1)
        E(f"v_permlane32_swap_b32 v{56+4*p}, v{58+4*p}"); E(f"v_permlane32_swap_b32 v{57+4*p}, v{59+4*p}")
        E(f"buffer_store_dwordx4 {v(56+4*p,4)}, v50, {OUT}, s66 offen offset:{32*p}" + ["", " sc1", " nt", " sc0 sc1"][opt("ost", 0)])
    stamp(7)
    L("L_gend")
    stamp_flush("g")
    L("L_end")
    E("s_endpgm")

loops = []
entry()
a_ffn()
a_kv()
attention()
g_entry()
g_ffn()
g_kv()
g_down()

errs = hazard.check(out, "main")
for k, b in enumerate(loops): errs += hazard.check(b + b, f"loop{k}")
for e in sorted(set(errs)): print("HAZARD", e, file=sys.stderr)

hdr = open("gated_mix__grouped_kv_mqa__glu_gated_bilinear__prompt.s.ref").read().split("; Override")[0]
print(hdr, end="")
print(f"; @launch grid=(256,1,1) block=(512,1,1) lds={LDS_SIZE}")
print('.amdgcn_target "amdgcn-amd-amdhsa--gfx950"')
print(".text"); print(f".globl {NAME}"); print(".p2align 8"); print(f".type {NAME},@function"); print(f"{NAME}:")
print("\n".join(l for l in out if l is not None))
print('.section .rodata,"a"'); print(".p2align 6"); print(f".amdhsa_kernel {NAME}")
print("  .amdhsa_next_free_vgpr 256\n  .amdhsa_next_free_sgpr 96\n  .amdhsa_accum_offset 256\n  .amdhsa_group_segment_fixed_size 0\n  .amdhsa_kernarg_size 104")
print("  .amdhsa_user_sgpr_count 2\n  .amdhsa_user_sgpr_kernarg_segment_ptr 1\n  .amdhsa_system_sgpr_workgroup_id_x 1\n.end_amdhsa_kernel")
```

```python
import sys, math, struct
import hazard

NAME = "gated_mix__grouped_kv_mqa__glu_gated_bilinear__prompt_kernel"
STAMPS = "--stamps" in sys.argv
def opt(name, default):
    for a in sys.argv:
        if a.startswith(f"--{name}="): return int(a.split("=")[1])
    return default
GROUPS = [int(c) for c in str(opt("groups", 2221))]
XP = opt("xp", 0)
PRE = opt("pre", 2)
EWS = [int(c) for c in str(opt("ews", 12)).replace("9", "0")]
DD = opt("D", 3); SPREAD = opt("spread", 0); YNOP = opt("ynop", 0)
CLK = "s_memrealtime" if "--rt" in sys.argv else "s_memtime"

WS_KV = 0x000000
WS_G = 0x040000
WS_HF = 0x048000
WS_O = 0x080000
WS_H = 0x300000
WS_END = 0xA00000
WS_ST = 0xA00000
LDS_SIZE = 163840
F_STAGE = 53248; F_NST = 3; F_G = 16384; F_U = 32768; F_Q = 49152
K_W = 122880; K_GW = 151552
L_CNT = 163840 - 48
QC, GC, KC, RC, XC, QD, AD, WL = 4, 8, 12, 20, 24, 28, 36, 40
L_QX = 98304
L_RED = 114688
SPIN = 1 << 17

def f32bits(x): return struct.unpack("<I", struct.pack("<f", x))[0]
QSCALE = f32bits(28 ** -0.5 * math.log2(math.e))
LOG2E = f32bits(math.log2(math.e))

out = []
def E(s): out.append("    " + s)
def L(s): out.append(s + ":")
def C(s): out.append("    ; " + s)
def v(a, n=1): return f"v{a}" if n == 1 else f"v[{a}:{a+n-1}]"
def mfma(d, a, b, c=None):
    E(f"v_mfma_f32_32x32x16_bf16 {v(d,16)}, {v(a,4)}, {v(b,4)}, " + ("0" if c is None else v(c,16)))
def add2(d, a, b):
    E(f"v_add_f32 v{d}, v{a}, v{b}"); E(f"v_add_f32 v{d+1}, v{a+1}, v{b+1}")
def nop(n):
    while n > 0:
        k = min(n, 16); E(f"s_nop {k-1}"); n -= k
nst = [0]
def stamp(n):
    if STAMPS and "--lite" not in sys.argv:
        E(f"{CLK} s[{72+2*n}:{73+2*n}]"); E("s_waitcnt lgkmcnt(0)")
def stamp_flush(tag):
    if STAMPS:
        E("s_memrealtime s[92:93]"); E("s_waitcnt lgkmcnt(0)")
        E("s_lshl_b32 s90, s2, 3"); E("s_add_u32 s90, s90, s44"); E("s_lshl_b32 s90, s90, 6"); E(f"s_add_u32 s90, s90, {WS_ST}")
        for q in range(2):
            for e in range(4): E(f"v_mov_b32 v{4+e}, s{72+2*(4*q+e)}")
            E(f"buffer_store_dwordx4 v[4:7], off, s[28:31], s90 offset:{16*q}"); nop(2)
        E("v_mov_b32 v4, s92"); E("v_mov_b32 v5, s88"); E("v_mov_b32 v6, s89"); E("v_mov_b32 v7, s94")
        E("buffer_store_dwordx4 v[4:7], off, s[28:31], s90 offset:32")
        E("s_waitcnt vmcnt(0)")

X, WQ, WG, WU, WD, WO, WS, OUT, DBG, KVW = "s[4:7]", "s[8:11]", "s[12:15]", "s[16:19]", "s[20:23]", "s[24:27]", "s[28:31]", "s[32:35]", "s[36:39]", "s[40:43]"

def srd(base, size):
    E(f"s_mov_b32 s{base+2}, {size}"); E(f"s_mov_b32 s{base+3}, 0x20000")
WS_SIZE = WS_END + (0x20000 if STAMPS else 0)

def entry():
    E("s_cmp_ge_u32 s2, 256"); E("s_cbranch_scc1 L_end")
    E("s_load_dwordx2 s[4:5], s[0:1], 0")
    E("s_load_dwordx2 s[28:29], s[0:1], 96")
    E("s_load_dwordx2 s[36:37], s[0:1], 88")
    if STAMPS:
        E("s_memrealtime s[88:89]"); E("s_getreg_b32 s94, hwreg(HW_REG_HW_ID)"); E(f"{CLK} s[72:73]")
    E("v_lshrrev_b32 v1, 6, v0"); E("v_and_b32 v0, 63, v0")
    E("v_readfirstlane_b32 s44, v1")
    E("s_and_b32 s68, s2, 7"); E("s_lshr_b32 s69, s2, 3")
    if opt("cpf", 0):
        E("s_getpc_b64 s[52:53]"); L("L_pc")
        E("s_lshl_b32 s70, s69, 3"); E("s_add_u32 s70, s70, s44"); E("s_lshl_b32 s70, s70, 7"); E(f"s_min_u32 s70, s70, L_end-L_pc")
        E("v_mov_b32 v1, s70")
        E("s_mov_b64 exec, 1"); E("global_load_dword v63, v1, s[52:53]"); E("s_mov_b64 exec, -1")
    E("s_and_b32 s46, s68, 1"); E("s_lshl_b32 s46, s46, 3"); E("s_and_b32 s70, s69, 7"); E("s_add_u32 s46, s46, s70")
    E("s_lshr_b32 s47, s68, 1"); E("s_lshl_b32 s47, s47, 2"); E("s_lshr_b32 s70, s69, 3"); E("s_add_u32 s47, s47, s70")
    E("s_xor_b32 s47, s47, 15")
    E("s_mov_b32 s50, s47")
    E("s_and_b32 s45, s44, 3")
    srd(4, 1835008); srd(28, WS_SIZE); srd(36, 256)
    E("v_lshlrev_b32 v29, 4, v0")
    E("v_lshrrev_b32 v31, 5, v0")
    E("s_cmp_ge_u32 s44, 4"); E("s_cbranch_scc1 L_g")
    E("s_load_dwordx2 s[8:9], s[0:1], 8")
    srd(8, 401408); srd(40, 65536)
    E("s_mov_b32 s15, 0x20000"); E("s_mov_b32 s19, 0x20000")
    E("s_cmp_ge_u32 s47, 14"); E("s_cbranch_scc1 L_ak")

def lane_pieces():
    E("v_and_b32 v24, 31, v0")
    E("v_bfe_u32 v25, v0, 1, 3")
    E("v_xor_b32 v25, v25, v31"); E("v_lshlrev_b32 v25, 4, v25")
    E("v_lshl_add_u32 v30, v24, 7, v25")
    E("v_bfe_u32 v28, v0, 2, 2")
    E("v_bfe_u32 v24, v0, 4, 1"); E("v_and_b32 v25, 3, v0"); E("v_lshlrev_b32 v25, 3, v25"); E("v_lshl_add_u32 v27, v24, 5, v25")

def g_entry():
    L("L_g")
    E("s_load_dwordx2 s[20:21], s[0:1], 64")
    E("s_load_dwordx2 s[24:25], s[0:1], 32")
    E("s_load_dwordx2 s[32:33], s[0:1], 80")
    srd(20, 1605632); srd(24, 401408); srd(32, 1835008)
    E("s_lshl_b32 s48, s68, 2"); E("s_and_b32 s70, s69, 3"); E("s_add_u32 s48, s48, s70")
    E("s_lshr_b32 s49, s69, 2"); E("s_xor_b32 s49, s49, 7")
    E("s_cmp_ge_u32 s47, 14"); E("s_cbranch_scc1 L_gk")

def x_dma_addrs(rg="s45"):
    E("v_lshrrev_b32 v24, 4, v0")
    E("v_and_b32 v25, 7, v0"); E("v_xor_b32 v25, v25, v24"); E("v_lshlrev_b32 v25, 4, v25")
    E("v_lshrrev_b32 v26, 3, v0"); E("v_mul_u32_u24 v26, 896, v26")
    E("v_add_u32 v1, v26, v25")
    E("v_xor_b32 v25, 64, v25"); E("v_add_u32 v2, v26, v25"); E("v_add_u32 v2, 6144, v2")
    E("v_add_u32 v3, 12288, v1"); E("v_add_u32 v4, 12288, v2")
    E("s_lshl_b32 s52, s46, 2"); E(f"s_add_u32 s52, s52, {rg}"); E("s_mul_i32 s52, s52, 28672")
    E("s_lshl_b32 s55, s45, 12")

def prefill():
    E("s_lshl_b32 s65, s46, 2"); E("s_add_u32 s65, s65, s45"); E("s_lshl_b32 s65, s65, 4"); E("s_add_u32 s65, s65, s50"); E("s_lshl_b32 s65, s65, 11"); E(f"s_add_u32 s65, s65, {WS_O}")
    for r in range(4): E(f"v_mov_b32 v{56+r}, -1")
    for n in range(2): E(f"buffer_store_dwordx4 v[56:59], v29, {WS}, s65 offen offset:{1024*n} sc1")

def go_poll(label, sleep):
    E(f"s_mov_b32 s62, {SPIN}")
    L(label)
    E(f"buffer_load_dword v24, off, {DBG}, 0 offset:128 sc1"); E("s_waitcnt vmcnt(0)")
    E("v_readfirstlane_b32 s63, v24"); E("s_sub_u32 s62, s62, 1"); E("s_cmp_eq_u32 s62, 0"); E(f"s_cbranch_scc1 {label}_x")
    E("s_cmp_lg_u32 s63, 0"); E(f"s_cbranch_scc1 {label}_x"); E(f"s_sleep {sleep}"); E(f"s_branch {label}")
    L(label + "_x")

ASET = (14, 19, 88)
QACC, XF, WF = 32, 48, 64
PREG = 80
QS = 96; OA = 128; KB = 192; VB = 224
S0, S1 = 48, 64
VG = 93
def a_addr(idx, off):
    return ASET[off >> 16] + idx, off & 0xffff

def q_setup(rg="s45"):
    E("v_lshrrev_b32 v25, 2, v0"); E("v_mul_u32_u24 v25, 896, v25"); E("v_and_b32 v26, 3, v0"); E("v_lshl_add_u32 v13, v26, 4, v25")
    E("s_mul_i32 s57, s50, 56"); E("s_and_b32 s54, s57, 0xfffffff0"); E(f"s_mul_i32 s70, {rg}, 14336"); E("s_add_u32 s54, s54, s70")
    E("s_and_b32 s57, s57, 8")
    E(f"s_lshl_b32 s56, {rg}, 10")

def a_setup2(sets):
    lane_pieces()
    E("v_add_u32 v14, s55, v30")
    for s in range(1, 4): E(f"v_xor_b32 v{14+s}, {32*s}, v14")
    E("v_lshl_add_u32 v25, v31, 3, v28"); E("v_lshl_add_u32 v18, v25, 6, v27"); E("v_add_u32 v18, s57, v18")
    if sets:
        for k in range(5):
            E(f"v_add_u32 v{19+k}, 0x10000, v{14+k}"); E(f"v_add_u32 v{88+k}, 0x20000, v{14+k}")
    E(f"v_mov_b32 v24, {L_CNT}")
    E("v_mov_b32 v94, 0"); E("v_mov_b32 v95, 0")
    for o in (0, 8, 16, 24, 32, 40): E(f"ds_write_b64 v24, v[94:95] offset:{o}")
    E("s_lshl_b32 s70, s45, 16"); E("s_add_u32 s40, s28, s70"); E("s_addc_u32 s41, s29, 0")

def a_inits():
    R = [f"v_mov_b32 v{r}, 0" for r in list(range(OA, OA+64)) + list(range(PREG, PREG+8)) + list(range(VB+24, VB+32))]
    R += ["v_and_b32 v94, 31, v0", "v_lshlrev_b32 v94, 2, v94"]
    return R

def kbsel(pos): return f"s_xor_b32 s64, s58, {pos}" if pos < 6 else "s_mov_b32 s64, 6"
def a_dma_group(a):
    pos = int(a[1]); st = ((pos + 2) % F_NST) * F_STAGE
    if a[0] == "X":
        return [kbsel(pos), f"s_add_u32 m0, s59, {st}", "s_lshl_b32 s65, s64, 7", "s_add_u32 s65, s65, s52"] + [f"buffer_load_dwordx4 v{1+n}, {X}, s65 offen offset:{1024*n} lds" for n in range(4)]
    if a[0] == "h":
        hf = int(a[2])
        return [kbsel(pos), f"s_add_u32 m0, s51, {st+F_G+8192*hf}", "s_mul_i32 s65, s64, 229376", "s_add_u32 s65, s65, s53"] + \
               ([f"s_add_u32 s65, s65, 114688"] if hf else []) + \
               [f"buffer_load_dwordx4 v{5+n}, {WG}, s65 offen offset:{1024*n} lds" for n in range(2)] + \
               [f"s_add_u32 m0, s51, {st+F_U+8192*hf}", "s_nop 0"] + [f"buffer_load_dwordx4 v{7+n}, {WU}, s65 offen offset:{1024*n} lds" for n in range(2)]
    return [kbsel(pos), f"s_add_u32 m0, s56, {st+F_Q}", "s_mul_i32 s65, s64, 57344", "s_add_u32 s65, s65, s54", f"buffer_load_dwordx4 v13, {WQ}, s65 offen lds"]

def lds_post(off, val=26):
    E("s_mov_b64 exec, 1"); E(f"ds_add_u32 v25, v{val} offset:{off}"); E("s_mov_b64 exec, -1")

def kv_prologue_loads():
    E("s_lshl_b32 s70, s69, 2"); E("s_add_u32 s70, s70, s45"); E("s_lshl_b32 s70, s70, 11"); E("v_lshlrev_b32 v24, 7, v0")
    E("s_mov_b32 exec_lo, 0xffff"); E("s_mov_b32 exec_hi, 0")
    E(f"buffer_load_dword v95, v24, {WS}, s70 offen sc1")
    E("s_mov_b64 exec, -1")
    E("s_lshl_b32 s70, s46, 2"); E("s_add_u32 s70, s70, s45"); E("s_lshl_b32 s70, s70, 7"); E(f"s_add_u32 s70, s70, {WS_G}")
    E(f"buffer_load_dword v{VG}, v94, {WS}, s70 offen sc1")
    E("s_mov_b32 s60, 0")
    for t in range(3):
        tile_loads(t)

def tile_loads(u):
    E(f"buffer_load_dwordx4 {v(KB+8*u,4)}, v29, {KVW}, s60 offen sc1")
    E(f"buffer_load_dwordx4 {v(KB+8*u+4,4)}, v29, {KVW}, s60 offen offset:1024 sc1")
    E(f"buffer_load_dwordx4 {v(VB+8*u,4)}, v29, {KVW}, s60 offen offset:2048 sc1")
    E(f"buffer_load_dwordx4 {v(VB+8*u+4,4)}, v29, {KVW}, s60 offen offset:3072 sc1")
    E("s_add_u32 s60, s60, 4096")

HALF = opt("half", 1)
def a_ffn():
    L("L_af")
    E("s_load_dwordx2 s[12:13], s[0:1], 48"); E("s_load_dwordx2 s[16:17], s[0:1], 56")
    E("s_mov_b32 s14, 1605632"); E("s_mov_b32 s18, 1605632")
    E("s_lshr_b32 s70, s69, 3"); E("s_add_u32 s58, s69, s70"); E("s_and_b32 s58, s58, 1")
    E("s_lshr_b32 s60, s69, 1"); E("s_add_u32 s60, s60, s45"); E("s_and_b32 s60, s60, 3")
    E("s_and_b32 s70, s70, 2"); E("s_add_u32 s61, s45, s70"); E("s_and_b32 s61, s61, 3")
    E("s_lshl_b32 s59, s61, 12"); E("s_lshl_b32 s51, s60, 11")
    x_dma_addrs("s61")
    E("v_and_b32 v25, 15, v0"); E("v_lshlrev_b32 v26, 1, v24"); E("v_xor_b32 v25, v25, v26"); E("v_lshlrev_b32 v25, 4, v25")
    E("v_mul_u32_u24 v26, 3584, v24"); E("v_add_u32 v5, v26, v25"); E("v_xor_b32 v7, 128, v5")
    E("v_add_u32 v6, 13312, v5"); E("v_add_u32 v8, 13312, v7")
    E("s_mul_i32 s53, s60, 28672"); E("s_lshl_b32 s70, s47, 8"); E("s_add_u32 s53, s53, s70")
    E("s_waitcnt lgkmcnt(0)")
    stamp(7)
    ops = []
    def after(*tags): return len(ops) - 1 - max(k for k, t in enumerate(ops) if t in tags)
    inits = a_inits()
    state = {"m": 0, "first": True}
    def run(script):
        for a in script.split():
            if a[0] in "XhQ":
                for l in a_dma_group(a): E(l)
                ops.extend([a] * (1 if a[0] == "Q" else 4))
            elif a[0] == "r":
                p = int(a[1]); st = ((p + 2) % F_NST) * F_STAGE
                for s in range(4):
                    r, o = a_addr(s, st); E(f"ds_read_b128 {v(XF+4*s,4)}, v{r} offset:{o}")
                    for q in range(2):
                        r, o = a_addr(4, st + F_Q + s*1024 + q*256); E(f"ds_read_b64_tr_b16 {v(WF+4*s+2*q,2)}, v{r} offset:{o}")
                state["m"] = 0
            elif a == "m":
                s = state["m"]; state["m"] += 1
                E(f"s_waitcnt lgkmcnt({9-3*s})")
                mfma(QACC, WF+4*s, XF+4*s, None if state["first"] else QACC); state["first"] = False
            elif a == "i":
                for _ in range(min(28, len(inits))): E(inits.pop(0))
            elif a[0] == "B":
                E(f"s_waitcnt vmcnt({after(*a[2:].split(','))})"); E("s_barrier")
            elif a == "p":
                E(f"buffer_load_dword v24, off, {DBG}, 0 offset:{0 if opt('kvc', 0) else 128} sc1"); ops.append("p")
    run("X0 h00")
    q_setup("s60")
    E("s_barrier")
    run("h01 Q0")
    a_setup2(True)
    E("s_waitcnt lgkmcnt(0)")
    if HALF == 0:
        run("X1 h10 B:Q0"); stamp(1)
        run("r0 h11 m Q1 m X2 m h20 m B:Q1")
        run("h21 r1 Q2 m X3 m h30 m h31 m B:Q2")
        run("Q3 r2 X4 m h40 m h41 m Q4 m i B:Q3")
        run("r3 X5 m h50 m h51 m Q5 m i B:Q4")
    elif HALF == 1:
        run("X1 B:h00"); stamp(1)
        run("h10 B:Q0")
        run("r0 h11 m Q1 m X2 m m B:Q1")
        run("h20 r1 h21 m Q2 m X3 m h30 m B:Q2")
        run("h31 r2 Q3 m X4 m h40 m h41 m i B:Q3")
        run("Q4 r3 X5 m h50 m h51 m Q5 m i B:Q4")
    else:
        run("X1 B:h00"); stamp(1)
        run("h10 B:Q0")
        run("r0 h11 m Q1 m m m B:h10")
        run("X2 h20 B:Q1")
        run("r1 h21 m Q2 m X3 m m B:Q2")
        run("h30 r2 h31 m Q3 m X4 m h40 m i B:Q3")
        run("h41 Q4 r3 X5 m h50 m h51 m Q5 m i B:Q4")
    run("r4 X6 m h60 m h61 m Q6 m i B:Q5")
    assert not inits
    run("p r5 m m m m")
    E("s_waitcnt vmcnt(0)")
    E("v_readfirstlane_b32 s63, v24"); E("s_mov_b32 s61, 0"); E(f"s_cmp_lt_u32 s63, {32 if opt('kvc', 0) else 1}"); E("s_cbranch_scc1 L_af_notyet")
    kv_prologue_loads(); E("s_mov_b32 s61, 1")
    L("L_af_notyet")
    E("s_barrier")
    E("s_setprio 3")
    E("s_cmp_eq_u32 s61, 1"); E("s_cbranch_scc1 L_af_rdy")
    go_poll("L_af_poll", 3)
    kv_prologue_loads()
    L("L_af_rdy")
    run("r6 m m m m")
    E(f"s_mov_b32 s58, {L_QX}")
    E("s_branch L_attn")

def a_kv():
    L("L_ak")
    E("s_load_dwordx2 s[16:17], s[0:1], 72")
    E("s_cmp_eq_u32 s47, 14"); E("s_cbranch_scc1 L_ak_k")
    E("s_load_dwordx2 s[12:13], s[0:1], 24"); E("s_branch L_ak_j")
    L("L_ak_k")
    E("s_load_dwordx2 s[12:13], s[0:1], 16")
    L("L_ak_j")
    E("s_mov_b32 s14, 25088"); E("s_mov_b32 s18, 896")
    E("s_lshl_b32 s55, s45, 12")
    q_setup()
    E("s_waitcnt lgkmcnt(0)")
    stamp(7)
    E(f"s_add_u32 s53, s56, {K_W}"); E("s_mov_b32 s70, s56")
    for n in range(7):
        E("s_mov_b32 m0, s53"); E("s_add_u32 s53, s53, 4096")
        E(f"buffer_load_dwordx4 v29, {WG}, s70 offen lds"); E("s_add_u32 s70, s70, 4096")
    E(f"s_mov_b32 m0, {K_GW}"); E("s_nop 0"); E(f"buffer_load_dwordx4 v29, {WU}, 0 offen lds")
    a_setup2(False)
    E(f"v_add_u32 v18, {K_W}, v18")
    E("s_waitcnt vmcnt(0) lgkmcnt(0)")
    E("s_barrier")
    stamp(1)
    for l in a_inits(): E(l)
    for r in range(QACC, QACC+16): E(f"v_mov_b32 v{r}, 0")
    E("s_barrier")
    E(f"s_add_u32 s53, s56, {K_W}")
    for n in range(7):
        E("s_mov_b32 m0, s53"); E("s_add_u32 s53, s53, 4096")
        E(f"buffer_load_dwordx4 v13, {WQ}, s54 offen lds"); E("s_add_u32 s54, s54, 57344")
    E("s_waitcnt vmcnt(0)")
    E("s_barrier")
    E("s_mov_b32 s59, 7")
    L("L_akloop")
    b0 = len(out)
    for s in range(4):
        E(f"ds_read_b128 {v(XF+4*s,4)}, v{14+s}")
        for q in range(2): E(f"ds_read_b64_tr_b16 {v(WF+4*s+2*q,2)}, v18 offset:{s*1024+q*256}")
    for s in range(4):
        E(f"s_waitcnt lgkmcnt({9-3*s})")
        mfma(QACC, WF+4*s, XF+4*s, QACC)
        E(f"v_add_u32 v{14+s}, 16384, v{14+s}")
    E("v_add_u32 v18, 4096, v18")
    E("s_sub_u32 s59, s59, 1"); E("s_cmp_lg_u32 s59, 0"); E("s_cbranch_scc1 L_akloop")
    loops.append(out[b0:])
    go_poll("L_ak_poll", 8)
    kv_prologue_loads()
    E(f"s_mov_b32 s58, {L_RED}")

def lds_spin(label, off, target, areg, treg, sleep=0):
    E(f"s_mov_b32 s62, {SPIN*8}")
    L(label)
    E(f"ds_read_b32 v{treg}, v{areg} offset:{off}"); E("s_waitcnt lgkmcnt(0)")
    E(f"v_readfirstlane_b32 s63, v{treg}"); E("s_sub_u32 s62, s62, 1"); E("s_cmp_eq_u32 s62, 0"); E(f"s_cbranch_scc1 {label}_x")
    if sleep:
        E(f"s_cmp_ge_u32 s63, {target}"); E(f"s_cbranch_scc1 {label}_x"); E(f"s_sleep {sleep}"); E(f"s_branch {label}")
    else:
        E(f"s_cmp_lt_u32 s63, {target}"); E(f"s_cbranch_scc1 {label}")
    L(label + "_x")

def owrites(s):
    R = []
    for q in range(4):
        if s == 2 and q == 3:
            R.append(f"ds_write_b32 v{1+s}, v{OA+16*s+12} offset:3072")
            R.append("s_mov_b32 exec_hi, 0")
        R.append(f"ds_write_b128 v{1+s}, {v(OA+16*s+4*q,4)} offset:{1024*q}")
    return R

def period(u, s):
    tau = 4*u + s
    Sc = (S0, S1)[tau & 1]; Sn = (S0, S1)[(tau+1) & 1]
    un, sn = ((tau+1)//4) % 4, (tau+1) % 4
    up, sp = ((tau-1)//4) % 4, (tau-1) % 4
    ul = (u + 3) % 4
    ex = [f"v_exp_f32 v{Sc+r}, v{Sc+r}" for r in range(16)]
    cv = [f"v_cvt_pk_bf16_f32 v{PREG+r}, v{Sc+2*r}, v{Sc+2*r+1}" for r in range(8)]
    if s == 0: Y = [[f"buffer_load_dwordx4 {v(KB+8*ul,4)}, v29, {KVW}, s60 offen sc1"], [f"buffer_load_dwordx4 {v(KB+8*ul+4,4)}, v29, {KVW}, s60 offen offset:1024 sc1"]]
    if s == 1: Y = [[f"buffer_load_dwordx4 {v(VB+8*ul,4)}, v29, {KVW}, s60 offen offset:2048 sc1"], [f"buffer_load_dwordx4 {v(VB+8*ul+4,4)}, v29, {KVW}, s60 offen offset:3072 sc1"]]
    if s == 2: Y = [["s_add_u32 s60, s60, 4096"], ["s_waitcnt vmcnt(8)"]]
    if s == 3: Y = [["s_nop 0"], ["s_nop 0"]]
    if not SPREAD:
        if s == 0: Y = [["s_nop 0"], ["s_nop 0"]]
        if s == 1: Y = [[f"buffer_load_dwordx4 {v(KB+8*ul,4)}, v29, {KVW}, s60 offen sc1", f"buffer_load_dwordx4 {v(KB+8*ul+4,4)}, v29, {KVW}, s60 offen offset:1024 sc1"] + Y[0] + Y[1], ["s_nop 0"]]
    if u == 2 and s == 3: Y = [["s_sub_u32 s59, s59, 1"], ["s_nop 0"]]
    if u == 3 and s == 2:
        Y = [["s_add_u32 s60, s60, 4096", "s_cmp_lg_u32 s59, 0"], ["s_waitcnt vmcnt(8)", "s_cbranch_scc1 L_ow2"] + owrites(0) + ["L_ow2:"]]
    if u == 3 and s == 3:
        Y = [["s_cbranch_scc1 L_ow3"] + owrites(1) + ["L_ow3:"], ["s_nop 0"]]
    def emit(ls):
        for l in ls:
            if l == "s_nop 0" and not YNOP: continue
            if l.endswith(":"): L(l[:-1])
            else: E(l)
    mfma(Sn, KB+8*un, QS+8*sn)
    emit(ex[0:3])
    mfma(Sn, KB+8*un+4, QS+8*sn+4, Sn)
    emit(ex[3:6])
    mfma(OA+16*sp, VB+8*up, PREG, OA+16*sp)
    emit(ex[6:9])
    mfma(OA+16*sp, VB+8*up+4, PREG+4, OA+16*sp)
    emit(ex[9:12]); emit(Y[0]); emit(ex[12:15]); emit(Y[1]); emit(ex[15:16]); emit(cv)

def attention():
    L("L_attn")
    stamp(2)
    E("s_setprio 3")
    C("Q epilogue -> slot 3")
    Q3 = QS + 24
    E(f"s_mov_b32 s64, {QSCALE}"); E("s_nop 0")
    E("v_cmp_eq_u32 vcc, 0, v31")
    E("s_lshl_b32 s66, s45, 11"); E("s_add_u32 s66, s66, s58"); E("v_add_u32 v24, s66, v29")
    E(f"v_mov_b32 v25, {L_CNT}"); E("v_mov_b32 v26, 1")
    nop(3)
    for r in range(16): E(f"v_mul_f32 v{QACC+r}, s64, v{QACC+r}")
    for r in range(8): E(f"v_cvt_pk_bf16_f32 v{Q3+r}, v{QACC+2*r}, v{QACC+2*r+1}")
    E(f"v_cndmask_b32 v{Q3+6}, 0, v{Q3+6}, vcc"); E(f"v_cndmask_b32 v{Q3+7}, 0, v{Q3+7}, vcc")
    E(f"ds_write_b128 v24, {v(Q3,4)}")
    E("s_waitcnt vmcnt(10)")
    mfma(S0, KB, Q3); mfma(S0, KB+4, Q3+4, S0)
    for s in range(3):
        E(f"s_add_u32 s65, s45, {1+s}"); E("s_and_b32 s65, s65, 3"); E("s_lshl_b32 s65, s65, 11"); E("s_add_u32 s65, s65, s58")
        E(f"v_add_u32 v{1+s}, s65, v29")
    E(f"v_max3_f32 v4, v{S0}, v{S0+1}, v{S0+2}"); E(f"v_max3_f32 v5, v{S0+3}, v{S0+4}, v{S0+5}")
    E(f"v_max3_f32 v4, v4, v{S0+6}, v{S0+7}"); E(f"v_max3_f32 v5, v5, v{S0+8}, v{S0+9}")
    E(f"v_max3_f32 v4, v4, v{S0+10}, v{S0+11}"); E(f"v_max3_f32 v5, v5, v{S0+12}, v{S0+13}")
    E(f"v_max3_f32 v4, v4, v{S0+14}, v{S0+15}")
    E("v_max_f32 v4, v4, v5")
    E("v_mov_b32 v5, v4"); nop(2)
    E("v_permlane32_swap_b32 v4, v5"); nop(1)
    E("v_max_f32 v4, v4, v5")
    E("v_cvt_pk_bf16_f32 v4, -v4, 0")
    E(f"v_cndmask_b32 v{Q3+6}, v4, v{Q3+6}, vcc")
    E(f"ds_write_b128 v24, {v(Q3+4,4)} offset:1024")
    E("s_mov_b64 exec, 1")
    E(f"ds_add_u32 v25, v26 offset:{QC}")
    E("s_mov_b64 exec, -1")
    lds_spin("L_qspin", QC, 4, 25, 5)
    for s in range(3):
        E(f"ds_read_b128 {v(QS+8*s,4)}, v{1+s}"); E(f"ds_read_b128 {v(QS+8*s+4,4)}, v{1+s} offset:1024")
    E("s_mov_b64 exec, 1")
    E(f"ds_add_u32 v25, v26 offset:{QD}")
    E("s_mov_b64 exec, -1")
    E("s_waitcnt lgkmcnt(5)")
    mfma(S0, KB, QS); mfma(S0, KB+4, QS+4, S0)
    for s in range(3):
        E(f"s_add_u32 s65, s45, {1+s}"); E("s_and_b32 s65, s65, 3"); E("s_mul_i32 s65, s65, 12288"); E(f"s_add_u32 s65, s65, {L_RED+4096*s}")
        E(f"v_add_u32 v{1+s}, s65, v29")
    E("s_mul_i32 s65, s45, 12288"); E(f"s_add_u32 s65, s65, {L_RED}"); E("v_add_u32 v4, s65, v29")
    E("s_lshl_b32 s65, s46, 2"); E("s_add_u32 s65, s65, s45"); E("s_lshl_b32 s65, s65, 4"); E("s_add_u32 s65, s65, s50"); E("s_lshl_b32 s65, s65, 11"); E(f"s_add_u32 s65, s65, {WS_O}")
    E(f"v_mov_b32 v7, {f32bits(2.0**100)}"); E(f"v_mov_b32 v8, {f32bits(2.0**-60)}"); E("v_mov_b32 v9, 0x7f800000")
    E("s_waitcnt vmcnt(8) lgkmcnt(0)")
    E(f"s_mov_b32 s59, {3 if XP & 32 else 4}")
    E("s_setprio 1")
    stamp(3)
    out.append(".p2align 6")
    L("L_aloop")
    b0 = len(out)
    for u in range(4):
        for s in range(4): period(u, s)
    E("s_cbranch_scc1 L_aloop")
    loops.append(out[b0:])
    stamp(4)
    E("s_setprio 3")
    O3 = OA + 48
    mfma(O3, VB+24, PREG, O3); mfma(O3, VB+28, PREG+4, O3)
    for l in owrites(2): E(l)
    E("s_mov_b32 exec_lo, 1")
    E(f"ds_add_u32 v25, v26 offset:{RC}"); E("s_mov_b64 exec, -1")
    E("s_waitcnt vmcnt(0)")
    lds_spin("L_rspin", RC, 4, 25, 5)
    stamp(5)
    for q in range(12): E(f"ds_read_b128 {v(KB+4*q,4)}, v4 offset:{1024*q}")
    E("v_cmp_eq_u32 vcc, 0, v31")
    for s in range(3):
        E(f"s_waitcnt lgkmcnt({8-4*s})")
        for r in range(16): E(f"v_add_f32 v{O3+r}, v{O3+r}, v{KB+16*s+r}")
    E(f"v_mov_b32 v4, v{O3+12}"); E(f"v_mov_b32 v5, v{O3+12}")
    for r in (13, 14, 15): E(f"v_cndmask_b32 v{O3+r}, 0, v{O3+r}, vcc")
    E("v_permlane32_swap_b32 v4, v5")
    E(f"v_add_f32 v10, v{O3}, v{O3+1}"); E(f"v_add_f32 v11, v{O3+2}, v{O3+3}")
    E("v_rcp_f32 v4, v5")
    for r in range(4, 16, 2): E(f"v_add_f32 v10, v10, v{O3+r}"); E(f"v_add_f32 v11, v11, v{O3+r+1}")
    E("v_cmp_ge_f32 s[66:67], v7, v5"); E("v_cmp_le_f32 s[68:69], v8, v5")
    E("v_add_f32 v6, v10, v11")
    E("v_cmp_gt_f32 s[70:71], v9, |v6|")
    E(f"v_mul_f32 v4, v{VG}, v4")
    E("s_and_b64 s[66:67], s[66:67], s[68:69]"); E("s_and_b64 s[66:67], s[66:67], s[70:71]")
    E("s_cmp_eq_u64 s[66:67], -1"); E("s_cbranch_scc0 L_fb")
    L("L_norm")
    for r in range(8): E(f"v_mul_f32 v{O3+r}, v4, v{O3+r}")
    for r in range(4): E(f"v_cvt_pk_bf16_f32 v{PREG+r}, v{O3+2*r}, v{O3+2*r+1}")
    for r in range(4): E(f"v_min_u32 v{PREG+r}, -2, v{PREG+r}")
    E(f"buffer_store_dwordx4 {v(PREG,4)}, v29, {WS}, s65 offen sc1")
    for r in range(8, 16): E(f"v_mul_f32 v{O3+r}, v4, v{O3+r}")
    for r in range(4, 8): E(f"v_cvt_pk_bf16_f32 v{PREG+r}, v{O3+2*r}, v{O3+2*r+1}")
    E(f"v_cndmask_b32 v{PREG+6}, 0, v{PREG+6}, vcc"); E(f"v_cndmask_b32 v{PREG+7}, 0, v{PREG+7}, vcc")
    for r in range(4, 8): E(f"v_min_u32 v{PREG+r}, -2, v{PREG+r}")
    E(f"buffer_store_dwordx4 {v(PREG+4,4)}, v29, {WS}, s65 offen offset:1024 sc1")
    E("s_mov_b64 exec, 1"); E(f"ds_add_u32 v25, v26 offset:{AD}"); E("s_mov_b64 exec, -1")
    stamp(6)
    stamp_flush("a")
    E("s_endpgm")
    L("L_fb")
    E("v_cmp_eq_u32 vcc, 0, v31"); E("v_mov_b32 v4, 0xff800000"); E("s_mov_b32 s60, 0")
    E(f"v_cndmask_b32 v{Q3+6}, 0, v{Q3+6}, vcc")
    L("L_fb1")
    E(f"buffer_load_dwordx4 {v(KB,4)}, v29, {WS}, s60 offen sc1"); E(f"buffer_load_dwordx4 {v(KB+4,4)}, v29, {WS}, s60 offen offset:1024 sc1")
    E("s_waitcnt vmcnt(0)")
    mfma(S0, KB, Q3); mfma(S0, KB+4, Q3+4, S0); nop(12)
    for r in range(0, 16, 2): E(f"v_max3_f32 v4, v4, v{S0+r}, v{S0+r+1}")
    E("s_add_u32 s60, s60, 4096"); E("s_cmp_lt_u32 s60, 0x40000"); E("s_cbranch_scc1 L_fb1")
    E("v_mov_b32 v5, v4"); nop(2); E("v_permlane32_swap_b32 v4, v5"); nop(1); E("v_max_f32 v4, v4, v5")
    for r in range(16): E(f"v_mov_b32 v{O3+r}, 0")
    E("s_mov_b32 s60, 0")
    L("L_fb2")
    E(f"buffer_load_dwordx4 {v(KB,4)}, v29, {WS}, s60 offen sc1"); E(f"buffer_load_dwordx4 {v(KB+4,4)}, v29, {WS}, s60 offen offset:1024 sc1")
    E(f"buffer_load_dwordx4 {v(VB,4)}, v29, {WS}, s60 offen offset:2048 sc1"); E(f"buffer_load_dwordx4 {v(VB+4,4)}, v29, {WS}, s60 offen offset:3072 sc1")
    E("s_waitcnt vmcnt(0)")
    mfma(S0, KB, Q3); mfma(S0, KB+4, Q3+4, S0); nop(12)
    for r in range(16): E(f"v_sub_f32 v{S0+r}, v{S0+r}, v4")
    for r in range(16): E(f"v_exp_f32 v{S0+r}, v{S0+r}")
    nop(1)
    for r in range(8): E(f"v_cvt_pk_bf16_f32 v{PREG+r}, v{S0+2*r}, v{S0+2*r+1}")
    nop(2)
    mfma(O3, VB, PREG, O3); mfma(O3, VB+4, PREG+4, O3)
    E("s_add_u32 s60, s60, 4096"); E("s_cmp_lt_u32 s60, 0x40000"); E("s_cbranch_scc1 L_fb2")
    nop(12)
    E(f"v_mov_b32 v4, v{O3+12}"); E(f"v_mov_b32 v5, v{O3+12}"); nop(2)
    E("v_permlane32_swap_b32 v4, v5"); nop(1)
    E("v_rcp_f32 v4, v5"); nop(1)
    E(f"v_mul_f32 v4, v{VG}, v4")
    E("s_branch L_norm")

def d_setup():
    E("s_add_u32 s13, s45, s49"); E("s_add_u32 s13, s13, s48"); E("s_and_b32 s13, s13, 3"); E("s_lshl_b32 s13, s13, 1")
    E("s_lshr_b32 s14, s49, 2"); E("s_lshr_b32 s70, s48, 1"); E("s_xor_b32 s14, s14, s70"); E("s_and_b32 s14, s14, 1")
    E("s_add_u32 s13, s13, s14"); E("s_xor_b32 s14, s13, 1")
    E("s_and_b32 s70, s49, 1"); E("s_lshl_b32 s70, s70, 1"); E("s_xor_b32 s8, s45, s70")
    E("s_and_b32 s9, s8, 1"); E("s_lshr_b32 s10, s8, 1"); E("s_lshl_b32 s12, s8, 11")
    E("v_lshrrev_b32 v17, 3, v0"); E("v_mul_u32_u24 v17, 896, v17")
    E("v_bfe_u32 v18, v0, 4, 1"); E("v_lshlrev_b32 v18, 2, v18"); E("v_and_b32 v19, 7, v0"); E("v_xor_b32 v18, v18, v19")
    E("v_lshl_add_u32 v32, v18, 4, v17"); E("v_add_u32 v33, 6144, v32")
    E("v_lshl_add_u32 v17, v31, 2, v28"); E("v_lshl_add_u32 v17, v17, 7, v27")
    E("v_lshrrev_b32 v18, 1, v28"); E("v_xor_b32 v18, s10, v18"); E("v_lshl_add_u32 v17, v18, 6, v17")
    E("v_add_u32 v34, s12, v17"); E("v_xor_b32 v35, 64, v34"); E("v_add_u32 v36, 0x10000, v34"); E("v_add_u32 v37, 0x10000, v35")
    E("s_lshl_b32 s70, s10, 12"); E("v_add_u32 v38, s70, v17"); E("v_xor_b32 v39, 64, v38")
    E("s_lshl_b32 s11, s48, 1"); E("s_add_u32 s11, s11, s9"); E("s_xor_b32 s70, s11, 1")
    E("s_mul_i32 s71, s11, 114688"); E(f"s_add_u32 s71, s71, {WS_H}"); E("v_add_u32 v40, s71, v29")
    E("s_mul_i32 s71, s70, 114688"); E(f"s_add_u32 s71, s71, {WS_H}"); E("v_add_u32 v41, s71, v29")
    E("s_lshl_b32 s15, s49, 7"); E("s_mul_i32 s16, s13, 200704"); E("s_add_u32 s16, s16, s15"); E("s_mov_b32 s17, s12")
    E("v_and_b32 v19, 31, v0"); E("v_lshlrev_b32 v42, 2, v19")
    E("v_min_u32 v43, 15, v0"); E("v_lshlrev_b32 v43, 7, v43")
    E("v_mul_u32_u24 v44, 3584, v0")
    E("s_lshl_b32 s70, s11, 4"); E("s_lshl_b32 s71, s10, 3"); E("s_add_u32 s70, s70, s71"); E("s_lshl_b32 s70, s70, 11"); E(f"s_add_u32 s70, s70, {WS_O}")
    E("v_add_u32 v45, s70, v29"); E("v_add_u32 v46, 1024, v45")
    E("v_add_u32 v47, s12, v29"); E("v_add_u32 v47, 0x10000, v47"); E("v_xor_b32 v48, 2048, v47"); E("v_xor_b32 v49, 4096, v47")
    E("v_mul_u32_u24 v50, 896, v19"); E("v_lshl_add_u32 v50, v31, 4, v50")
    E(f"v_mov_b32 v25, {L_CNT}"); E("v_mov_b32 v26, 1")

def wd_slot():
    return ["s_mov_b32 m0, s17", "s_add_u32 s17, s17, 8192", f"buffer_load_dwordx4 v32, {WD}, s16 offen lds",
            f"buffer_load_dwordx4 v33, {WD}, s16 offen offset:1024 lds", "s_add_u32 s16, s16, 14336"]

def g_ffn():
    L("L_gf")
    ACC = 128; GX = 64; GW_ = 80
    lane_pieces()
    E("s_and_b32 s52, s45, 1"); E("s_lshr_b32 s53, s45, 1")
    E("s_lshl_b32 s70, s52, 13"); E("v_add_u32 v1, s70, v30")
    for s in range(1, 4): E(f"v_xor_b32 v{1+s}, {32*s}, v1")
    E("v_bfe_u32 v17, v0, 4, 1")
    E("v_lshl_add_u32 v18, v17, 2, v28")
    E("s_lshl_b32 s70, s53, 2"); E("v_xor_b32 v18, s70, v18"); E("v_lshlrev_b32 v18, 5, v18")
    E("v_and_b32 v19, 3, v0"); E("v_lshl_add_u32 v18, v19, 3, v18")
    E("v_lshl_add_u32 v19, v31, 3, v28"); E("v_lshl_add_u32 v18, v19, 8, v18")
    E("v_lshl_add_u32 v18, v17, 14, v18"); E(f"v_add_u32 v5, {F_G}, v18")
    for t in range(1, 4): E(f"v_xor_b32 v{5+t}, {32*t}, v5")
    for k in range(8): E(f"v_add_u32 v{9+k}, {F_STAGE}, v{1+k}"); E(f"v_add_u32 v{112+k}, {2*F_STAGE}, v{1+k}")
    d_setup()
    E("s_lshl_b32 s56, s46, 2"); E("s_lshl_b32 s70, s52, 1"); E("s_add_u32 s56, s56, s70"); E("s_mul_i32 s56, s56, 114688")
    E("s_lshl_b32 s70, s47, 13"); E("s_add_u32 s56, s56, s70"); E("s_lshl_b32 s70, s53, 12"); E("s_add_u32 s56, s56, s70"); E(f"s_add_u32 s56, s56, {WS_H}")
    E("s_add_u32 s57, s56, 114688")
    E("s_waitcnt lgkmcnt(0)")
    E("s_barrier")
    prefill()
    E("s_barrier")
    stamp(1)
    def reads(p, s):
        st = s & 1; ab = (1, 9, 112)[(p + 2) % 3]
        R = []
        R.append(f"ds_read_b128 {v(GX+8*st,4)}, v{ab+s}")
        for q in range(2): R.append(f"ds_read_b64_tr_b16 {v(GW_+16*st+2*q,2)}, v{ab+4} offset:{4096*s+1024*q}")
        R.append(f"ds_read_b128 {v(GX+8*st+4,4)}, v{ab+s} offset:4096")
        for t in range(1, 4):
            for q in range(2): R.append(f"ds_read_b64_tr_b16 {v(GW_+16*st+4*t+2*q,2)}, v{ab+4+t} offset:{4096*s+1024*q}")
        return R
    def ep(n):
        t, a = n >> 1, n & 1
        d = ACC + 64*a + 16*t
        for r in range(8): E(f"v_mul_f32 v{d+r}, v{d+r}, v{d+8+r}")
        for r in range(4): E(f"v_cvt_pk_bf16_f32 v{d+8+r}, v{d+2*r}, v{d+2*r+1}")
        E(f"buffer_store_dwordx4 {v(d+8,4)}, v29, {WS}, s{56+a} offen offset:{1024*t} sc1")
    for l in reads(0, 0): E(l)
    for p in range(7):
        for s in range(4):
            st = s & 1
            last = (p == 6 and s == 3)
            E("s_waitcnt lgkmcnt(0)")
            R = [] if last else (reads(p, s+1) if s < 3 else reads(p+1, 0))
            if p == 6 and s == opt("gps", 3): E("s_setprio 3")
            n = 0
            for t in range(4):
                for a in range(2):
                    d = ACC + 64*a + 16*t
                    mfma(d, GW_+16*st+4*t, GX+8*st+4*a, None if (p == 0 and s == 0) else d)
                    if n == 0 and ((s == 3 and p < 6) or (s == 1 and p < HALF)): E("s_barrier")
                    for l in R[:2]: E(l)
                    R = R[2:]
                    if p == 6 and s in EWS and n == 4:
                        E("s_cmp_eq_u32 s49, 7"); E(f"s_cbranch_scc1 L_gf_nd{s}")
                        for l in wd_slot() + wd_slot(): E(l)
                        L(f"L_gf_nd{s}")
                    if last and n == 1: nop(11)
                    if last and n >= 1: ep(n-1)
                    n += 1
    stamp(2)
    ep(7)
    E(f"s_mov_b32 s19, {12-2*len(EWS)}")
    E("s_branch L_gpub")

def g_kv():
    L("L_gk")
    D1, D2, D3 = 128, 128, 160
    GX = 64; GWf = 80; GG = 96
    x_dma_addrs()
    E("s_mov_b32 s53, s55")
    E("s_waitcnt lgkmcnt(0)")
    def xblk():
        E("s_mov_b32 m0, s53"); E("s_add_u32 s53, s53, 16384")
        for n in range(4): E(f"buffer_load_dwordx4 v{1+n}, {X}, s52 offen offset:{1024*n} lds")
        E("s_add_u32 s52, s52, 128")
    for kb in range(3): xblk()
    lane_pieces()
    E("v_add_u32 v9, s55, v30")
    for s in range(1, 4): E(f"v_xor_b32 v{9+s}, {32*s}, v9")
    E("v_lshl_add_u32 v17, v31, 3, v28"); E("v_mul_u32_u24 v17, 56, v17"); E("v_add_u32 v13, v17, v27"); E(f"v_add_u32 v13, {K_W}, v13")
    E("v_lshlrev_b32 v6, 4, v31"); E(f"v_add_u32 v6, {K_GW}, v6")
    for r in range(16): E(f"v_mov_b32 v{D1+r}, 0"); E(f"v_mov_b32 v{D3+r}, 0")
    E("s_mov_b32 s54, 0"); E("s_mov_b32 s59, 0x10000000")
    E("s_barrier")
    stamp(1)
    L("L_gkloop")
    b0 = len(out)
    E("s_cmp_ge_u32 s54, 4"); E("s_cbranch_scc1 L_gk_dum")
    xblk()
    E("s_branch L_gk_rd")
    L("L_gk_dum")
    for n in range(4): E(f"buffer_load_dword v40, off, {X}, s59")
    L("L_gk_rd")
    E("s_waitcnt vmcnt(12)")
    for s in range(4):
        E(f"ds_read_b128 {v(GX+4*s,4)}, v{9+s}")
        for q in range(2): E(f"ds_read_b64_tr_b16 {v(GWf+4*s+2*q,2)}, v13 offset:{896*s+224*q}")
    E("s_cmp_eq_u32 s47, 15"); E("s_cbranch_scc1 L_gk_lv")
    for s in range(4):
        E(f"s_waitcnt lgkmcnt({9-2*s})")
        mfma(D1, GWf+4*s, GX+4*s, D1)
        E(f"ds_read_b128 {v(GG+4*s,4)}, v6 offset:{32*s}")
    for s in range(4):
        E(f"s_waitcnt lgkmcnt({3-s})")
        mfma(D3, GG+4*s, GX+4*s, D3)
    E("s_branch L_gk_le")
    L("L_gk_lv")
    for s in range(4):
        E(f"s_waitcnt lgkmcnt({9-3*s})")
        mfma(D2, GX+4*s, GWf+4*s, D2)
    L("L_gk_le")
    for s in range(4): E(f"v_add_u32 v{9+s}, 16384, v{9+s}")
    E("v_add_u32 v13, 3584, v13"); E("v_add_u32 v6, 128, v6")
    E("s_add_u32 s54, s54, 1"); E("s_cmp_lt_u32 s54, 7"); E("s_cbranch_scc1 L_gkloop")
    loops.append(out[b0:])
    E("s_barrier")
    stamp(2)
    E("s_lshl_b32 s56, s46, 2"); E("s_add_u32 s56, s56, s45"); E("s_lshl_b32 s57, s56, 7"); E("s_lshl_b32 s56, s56, 12"); E(f"s_add_u32 s57, s57, {WS_G}")
    E("v_and_b32 v17, 31, v0")
    nop(6)
    E("s_cmp_eq_u32 s47, 15"); E("s_cbranch_scc1 L_gk_v")
    E("v_cmp_eq_u32 vcc, 0, v31")
    for r in range(8): E(f"v_cvt_pk_bf16_f32 v{32+r}, v{D1+2*r}, v{D1+2*r+1}")
    E("v_mov_b32 v18, 0x3f80")
    E("v_cndmask_b32 v38, v18, v38, vcc"); E("v_cndmask_b32 v39, 0, v39, vcc")
    E(f"buffer_store_dwordx4 v[32:35], v29, {WS}, s56 offen sc1")
    E(f"buffer_store_dwordx4 v[36:39], v29, {WS}, s56 offen offset:1024 sc1")
    E(f"v_mul_f32 v18, {f32bits(-math.log2(math.e)):#x}, v{D3}")
    E("v_exp_f32 v18, v18"); E("v_lshlrev_b32 v17, 2, v17")
    E("v_add_f32 v18, 1.0, v18"); E("v_rcp_f32 v18, v18")
    E("s_mov_b32 exec_hi, 0")
    E(f"buffer_store_dword v18, v17, {WS}, s57 offen sc1")
    E("s_mov_b64 exec, -1")
    E("s_branch L_gk_pub")
    L("L_gk_v")
    E("v_cmp_gt_u32 vcc, 28, v17"); E("v_cmp_eq_u32 s[66:67], 28, v17")
    E("v_mov_b32 v18, 0x3f803f80"); E("v_mov_b32 v19, 0")
    E("v_cndmask_b32 v18, v19, v18, s[66:67]")
    for r in range(8): E(f"v_cvt_pk_bf16_f32 v{32+r}, v{D2+2*r}, v{D2+2*r+1}")
    for r in range(8): E(f"v_cndmask_b32 v{32+r}, v18, v{32+r}, vcc")
    E(f"buffer_store_dwordx4 v[32:35], v29, {WS}, s56 offen offset:2048 sc1")
    E(f"buffer_store_dwordx4 v[36:39], v29, {WS}, s56 offen offset:3072 sc1")
    L("L_gk_pub")
    E("s_lshl_b32 s70, s47, 2"); E("s_add_u32 s70, s70, s45"); E("s_cmp_lg_u32 s70, 56"); E("s_cbranch_scc1 L_gk_nz")
    E("v_lshlrev_b32 v41, 7, v0"); E("v_mov_b32 v42, 0"); E("s_lshl_b32 s70, s46, 11"); E(f"s_add_u32 s70, s70, {WS_HF}")
    E("s_mov_b32 exec_lo, 0xffff"); E("s_mov_b32 exec_hi, 0")
    E(f"buffer_store_dword v42, v41, {WS}, s70 offen sc1")
    E("s_mov_b64 exec, -1")
    L("L_gk_nz")
    E(f"v_mov_b32 v25, {L_CNT}"); E("v_mov_b32 v26, 1")
    E("s_waitcnt vmcnt(0)")
    E("s_mov_b64 exec, 1")
    E(f"ds_add_rtn_u32 v24, v25, v26 offset:{KC}"); E("s_waitcnt lgkmcnt(0)")
    E("v_readfirstlane_b32 s63, v24"); nop(1)
    E("s_cmp_lg_u32 s63, 3"); E("s_cbranch_scc1 L_gk_nosig")
    E("v_mov_b32 v24, 1")
    E(f"buffer_atomic_add v24, off, {DBG}, 0 sc0 sc1"); E("s_waitcnt vmcnt(0)")
    E("v_readfirstlane_b32 s63, v24"); nop(1)
    E("s_cmp_lg_u32 s63, 31"); E("s_cbranch_scc1 L_gk_nosig")
    E(f"buffer_store_dword v26, off, {DBG}, 0 offset:128 sc1")
    L("L_gk_nosig")
    E("s_mov_b64 exec, -1")
    stamp(5)
    prefill()
    d_setup()
    E("s_mov_b32 s19, 12")
    E("s_barrier")
    lds_spin("L_gk_s1", QD, 4, 25, 24, 4)
    L("L_gpub")
    E("s_setprio 3")
    lds_spin("L_g_go", QC, 1, 25, 24, 2)
    E("s_waitcnt vmcnt(0)")
    E("s_mov_b64 exec, 1")
    E(f"ds_add_rtn_u32 v24, v25, v26 offset:{GC}"); E("s_waitcnt lgkmcnt(0)")
    E("v_readfirstlane_b32 s63, v24")
    E("s_lshl_b32 s70, s46, 4"); E("s_add_u32 s70, s70, s47"); E("s_lshl_b32 s70, s70, 7"); E(f"s_add_u32 s70, s70, {WS_HF}")
    E("s_cmp_lg_u32 s63, 3"); E("s_cbranch_scc1 L_g_nosig")
    E(f"buffer_store_dword v26, off, {WS}, s70 sc1")
    L("L_g_nosig")
    E("s_mov_b64 exec, -1")

def g_down():
    L("L_gd")
    stamp(3)
    E("s_cmp_eq_u32 s49, 7"); E("s_cbranch_scc1 L_gend")
    HB = 64; WFR = 176; ACC = 192
    if XP & 8:
        lds_post(WL); E(f"ds_read_b64 v[22:23], v25 offset:{AD-4}"); E(f"ds_read_b32 v24, v25 offset:{WL}"); E("s_branch L_xp8")
    E("s_setprio 0")
    L("L_gd_wd")
    E("s_waitcnt vmcnt(6)")
    for l in wd_slot(): E(l)
    E("s_sub_u32 s19, s19, 1"); E("s_cmp_lg_u32 s19, 0"); E("s_cbranch_scc1 L_gd_wd")
    E("s_and_b32 s70, s48, 3"); E("s_mul_i32 s70, s70, 896")
    E("s_mul_i32 s71, s8, 100352"); E("s_add_u32 s70, s70, s71"); E("s_add_u32 s70, s70, s15")
    E("s_mov_b32 exec_lo, 0xfffffff"); E("s_mov_b32 exec_hi, 0")
    E(f"buffer_load_dword v10, v44, {WO}, s70 offen")
    E("s_mov_b64 exec, -1")
    E("s_lshl_b32 s70, s11, 7"); E(f"s_add_u32 s70, s70, {WS_G}")
    E(f"buffer_load_dword v9, v42, {WS}, s70 offen sc1")
    E("s_lshr_b32 s70, s48, 1"); E("s_lshl_b32 s70, s70, 11"); E(f"s_add_u32 s70, s70, {WS_HF}")
    E("s_setprio 3")
    lds_spin("L_gd_s1", QD, 4, 25, 24, 2)
    lds_spin("L_gd_s2", GC, 4, 25, 24, 2)
    for k in range(2):
        for l in wd_slot(): E(l)
    E(f"s_mov_b32 s62, {SPIN}")
    L("L_gd_poll")
    E(f"buffer_load_dword v18, v43, {WS}, s70 offen sc1"); E("s_waitcnt vmcnt(0)")
    E("v_cmp_ne_u32 vcc, 1, v18"); E("s_sub_u32 s62, s62, 1"); E("s_cmp_eq_u32 s62, 0"); E("s_cbranch_scc1 L_gd_go")
    E("s_cbranch_vccz L_gd_go"); E("s_sleep 6"); E("s_branch L_gd_poll")
    L("L_gd_go")
    stamp(4)
    E("s_setprio 0")
    NH = DD + 1
    ops = []
    E("s_mul_i32 s59, s13, 14336")
    E("s_mul_i32 s16, s14, 200704"); E("s_add_u32 s16, s16, s15")
    def hload(s):
        if s == 14: E("s_mul_i32 s59, s14, 14336")
        o = (s % 14) % 4
        r = HB + 8*(s % NH)
        E(f"buffer_load_dwordx4 {v(r,4)}, v40, {WS}, s59 offen offset:{1024*o} sc1"); E(f"buffer_load_dwordx4 {v(r+4,4)}, v41, {WS}, s59 offen offset:{1024*o} sc1")
        if o == 3: E("s_add_u32 s59, s59, 4096")
        ops.extend([("h", s)]*2)
    def younger(tags):
        idx = [k for k, t in enumerate(ops) if t in tags]
        return len(ops) - 1 - max(idx) if idx else None
    def wreads(s):
        st = s & 1; sl = s % 14
        return [f"ds_read_b64_tr_b16 {v(WFR+8*st+4*ct+2*q,2)}, v{34+ct+2*(sl>>3)} offset:{8192*(sl&7)+1024*q}" for ct in range(2) for q in range(2)]
    for s in range(DD): hload(s)
    for l in wreads(0): E(l)
    for s in range(28):
        st = s & 1
        n = younger({("h", s), ("w", s+1)})
        E(f"s_waitcnt vmcnt({n}) lgkmcnt(0)")
        if s == 22 + DD:
            assert n <= younger({("w", 35)})
            lds_post(WL)
        R = wreads(s+1) if s < 27 else [f"ds_read_b64 v[22:23], v25 offset:{AD-4}", f"ds_read_b32 v24, v25 offset:{WL}"]
        for a in range(2):
            for ct in range(2):
                d = ACC + 32*a + 16*ct
                if not (XP & 64): mfma(d, WFR+8*st+4*ct, HB+8*(s % NH)+4*a, None if s == 0 else d)
                if R: E(R.pop(0))
                if a == 0 and ct == 1 and s + DD < 28: hload(s + DD)
        if s == 14:
            E("s_mul_i32 s16, s8, 100352"); E("s_add_u32 s16, s16, s15")
        if s < 22:
            srd_ = WD if s < 14 else WO
            E(f"s_add_u32 m0, s12, {8192*(s % 14)}"); E("s_nop 0")
            E(f"buffer_load_dwordx4 v32, {srd_}, s16 offen lds"); E(f"buffer_load_dwordx4 v33, {srd_}, s16 offen offset:1024 lds")
            E(f"s_add_u32 s16, s16, {14336 if (s < 14 or s % 2 == 0) else 10752}")
            ops.extend([("w", s+14)]*2)
    if XP & 8: L("L_xp8")
    stamp(5)
    OF = 96
    def wo_reg(e): return (64 if (e >> 2) & 1 == 0 else 160) + 8*(e & 3)
    def oloads(g0):
        for g in range(g0, 4):
            for n in range(4): E(f"buffer_load_dwordx4 {v(OF+16*g+4*n,4)}, v45, {WS}, s{52+g} offen offset:{1024*n} sc1")
    def woread(e):
        hh, a = e >> 1, e & 1
        off = (hh >> 2)*2048 + (2*(hh & 3) + a)*8192
        return [f"ds_read_b64_tr_b16 {v(wo_reg(e)+4*ct+2*q,2)}, v{38+ct} offset:{off+1024*q}" for ct in (1, 0) for q in range(2)]
    E("s_setprio 2")
    for g in range(4): E(f"s_mov_b32 s{52+g}, {4096*g}")
    E("s_waitcnt lgkmcnt(0)")
    E("v_readfirstlane_b32 s67, v23"); E("v_readfirstlane_b32 s63, v24"); E("v_sub_f32 v9, 1.0, v9")
    E("s_cmp_lt_u32 s67, 4"); E("s_cbranch_scc1 L_ge_ne")
    oloads(0)
    L("L_ge_ne")
    E("s_cmp_ge_u32 s63, 4"); E("s_cbranch_scc1 L_ge_wl_x")
    lds_spin("L_ge_wl", WL, 4, 25, 24)
    for q in range(8): E(f"ds_write_b128 v47, {v(ACC+32+4*q,4)} offset:{8192*(q>>1)+1024*(q&1)}")
    lds_post(XC)
    for e in range(8):
        for l in woread(e): E(l)
    for r in range(32): E(f"v_mul_f32 v{ACC+r}, v9, v{ACC+r}")
    E("v_xor_b32 v46, 4096, v48")
    E("s_mul_i32 s66, s11, 28672"); E("s_add_u32 s66, s66, s15"); E("s_lshl_b32 s71, s10, 6"); E("s_add_u32 s66, s66, s71")
    E("s_cmp_ge_u32 s67, 4"); E("s_cbranch_scc1 L_ge_ld")
    if not (XP & 16): lds_spin("L_ge_ad", AD, 4, 25, 24, 1)
    if opt("osleep", 0): E(f"s_sleep {opt('osleep', 0)}")
    oloads(0)
    L("L_ge_ld")
    lds_spin("L_gx", XC, 4, 25, 24)
    for q in range(4): E(f"ds_read_b128 {v(ACC+32+4*q,4)}, v48 offset:{8192*(q>>1)+1024*(q&1)}")
    for q in range(4, 8): E(f"ds_read_b128 {v(ACC+32+4*q,4)}, v46 offset:{8192*(q>>1)+1024*(q&1)}")
    E("s_waitcnt lgkmcnt(0)")
    for r in range(16): E(f"v_add_f32 v{ACC+32+r}, v{ACC+32+r}, v{ACC+48+r}")
    for r in range(16): E(f"v_fmac_f32 v{ACC+r}, v9, v{ACC+32+r}")
    E(f"s_mov_b32 s62, {0 if XP & 16 else SPIN}")
    for g in range(4):
        L(f"L_ge_c{g}")
        E(f"s_waitcnt vmcnt({12-4*g})")
        E(f"v_max3_u32 v17, v{OF+16*g}, v{OF+16*g+1}, v{OF+16*g+2}"); E(f"v_max3_u32 v18, v{OF+16*g+3}, v{OF+16*g+4}, v{OF+16*g+5}")
        E(f"v_max3_u32 v17, v17, v{OF+16*g+6}, v{OF+16*g+7}"); E(f"v_max3_u32 v18, v18, v{OF+16*g+8}, v{OF+16*g+9}")
        E(f"v_max3_u32 v17, v17, v{OF+16*g+10}, v{OF+16*g+11}"); E(f"v_max3_u32 v18, v18, v{OF+16*g+12}, v{OF+16*g+13}")
        E(f"v_max3_u32 v17, v17, v{OF+16*g+14}, v{OF+16*g+15}")
        E("v_max_u32 v17, v17, v18")
        E("v_cmp_eq_u32 vcc, -1, v17"); E(f"s_cbranch_vccz L_ge_k{g}")
        E("s_cmp_eq_u32 s62, 0"); E(f"s_cbranch_scc1 L_ge_k{g}")
        E("s_sub_u32 s62, s62, 1")
        oloads(g)
        E(f"s_branch L_ge_c{g}")
        L(f"L_ge_k{g}")
        if g >= 2: E(f"s_waitcnt lgkmcnt({0 if g == 3 else 15})")
        for e in range(4*g, 4*g+4):
            mfma(ACC+16, wo_reg(e)+4, OF+4*e, ACC+16)
            if g < 2:
                for l in woread(e+8)[0:2]: E(l)
        if g < 2:
            for e in range(4*g, 4*g+4):
                mfma(ACC, wo_reg(e), OF+4*e, ACC)
                for l in woread(e+8)[2:4]: E(l)
    stamp(6)
    for e in range(8, 16):
        mfma(ACC, wo_reg(e), OF+4*e, ACC)
        if e == 8: nop(6)
        if e == 9:
            nop(4)
            for q in range(4): E(f"ds_write_b128 v47, {v(ACC+16+4*q,4)} offset:{8192*(4+(q>>1))+1024*(q&1)}")
        if e == 12:
            E("s_waitcnt lgkmcnt(0)"); E("s_barrier")
            for q in range(4): E(f"ds_read_b128 {v(ACC+16+4*q,4)}, v49 offset:{8192*(4+(q>>1))+1024*(q&1)}")
    nop(11)
    for p in range(2):
        E(f"s_waitcnt lgkmcnt({2-2*p})")
        for r in range(8*p, 8*p+8): E(f"v_add_f32 v{ACC+r}, v{ACC+r}, v{ACC+16+r}")
        for r in range(4*p, 4*p+4): E(f"v_cvt_pk_bf16_f32 v{56+r}, v{ACC+2*r}, v{ACC+2*r+1}")
        nop(1)
        E(f"v_permlane32_swap_b32 v{56+4*p}, v{58+4*p}"); E(f"v_permlane32_swap_b32 v{57+4*p}, v{59+4*p}")
        E(f"buffer_store_dwordx4 {v(56+4*p,4)}, v50, {OUT}, s66 offen offset:{32*p}" + ["", " sc1", " nt", " sc0 sc1"][opt("ost", 0)])
    stamp(7)
    L("L_gend")
    stamp_flush("g")
    L("L_end")
    E("s_endpgm")

loops = []
entry()
a_ffn()
a_kv()
attention()
g_entry()
g_ffn()
g_kv()
g_down()

errs = hazard.check(out, "main")
for k, b in enumerate(loops): errs += hazard.check(b + b, f"loop{k}")
for e in sorted(set(errs)): print("HAZARD", e, file=sys.stderr)

hdr = open("gated_mix__grouped_kv_mqa__glu_gated_bilinear__prompt.s.ref").read().split("; Override")[0]
print(hdr, end="")
print(f"; @launch grid=(256,1,1) block=(512,1,1) lds={LDS_SIZE}")
print('.amdgcn_target "amdgcn-amd-amdhsa--gfx950"')
print(".text"); print(f".globl {NAME}"); print(".p2align 8"); print(f".type {NAME},@function"); print(f"{NAME}:")
print("\n".join(l for l in out if l is not None))
print('.section .rodata,"a"'); print(".p2align 6"); print(f".amdhsa_kernel {NAME}")
print("  .amdhsa_next_free_vgpr 256\n  .amdhsa_next_free_sgpr 96\n  .amdhsa_accum_offset 256\n  .amdhsa_group_segment_fixed_size 0\n  .amdhsa_kernarg_size 104")
print("  .amdhsa_user_sgpr_count 2\n  .amdhsa_user_sgpr_kernarg_segment_ptr 1\n  .amdhsa_system_sgpr_workgroup_id_x 1\n.end_amdhsa_kernel")
```

```python
import sys, math, struct
import hazard

NAME = "gated_mix__grouped_kv_mqa__glu_gated_bilinear__prompt_kernel"
STAMPS = "--stamps" in sys.argv
def opt(name, default):
    for a in sys.argv:
        if a.startswith(f"--{name}="): return int(a.split("=")[1])
    return default
GROUPS = [int(c) for c in str(opt("groups", 2221))]
XP = opt("xp", 0)
PRE = opt("pre", 2)
EWS = [int(c) for c in str(opt("ews", 12)).replace("9", "0")]
MAP = opt("map", 1)
DD = opt("D", 3); SPREAD = opt("spread", 0); YNOP = opt("ynop", 0)
CLK = "s_memrealtime" if "--rt" in sys.argv else "s_memtime"

WS_KV = 0x000000
WS_G = 0x040000
WS_HF = 0x048000
WS_O = 0x080000
WS_H = 0x300000
WS_END = 0xA00000
WS_ST = 0xA00000
LDS_SIZE = 163840
F_STAGE = 53248; F_NST = 3; F_G = 16384; F_U = 32768; F_Q = 49152
K_W = 122880; K_GW = 151552
L_CNT = 163840 - 48
QC, GC, KC, RC, XC, QD, AD, WL = 4, 8, 12, 20, 24, 28, 36, 40
L_QX = 98304
L_RED = 114688
SPIN = 1 << 17

def f32bits(x): return struct.unpack("<I", struct.pack("<f", x))[0]
QSCALE = f32bits(28 ** -0.5 * math.log2(math.e))
LOG2E = f32bits(math.log2(math.e))

out = []
def E(s): out.append("    " + s)
def L(s): out.append(s + ":")
def C(s): out.append("    ; " + s)
def v(a, n=1): return f"v{a}" if n == 1 else f"v[{a}:{a+n-1}]"
def mfma(d, a, b, c=None):
    E(f"v_mfma_f32_32x32x16_bf16 {v(d,16)}, {v(a,4)}, {v(b,4)}, " + ("0" if c is None else v(c,16)))
def add2(d, a, b):
    E(f"v_add_f32 v{d}, v{a}, v{b}"); E(f"v_add_f32 v{d+1}, v{a+1}, v{b+1}")
def nop(n):
    while n > 0:
        k = min(n, 16); E(f"s_nop {k-1}"); n -= k
nst = [0]
def stamp(n):
    if STAMPS and "--lite" not in sys.argv:
        E(f"{CLK} s[{72+2*n}:{73+2*n}]"); E("s_waitcnt lgkmcnt(0)")
def stamp_flush(tag):
    if STAMPS:
        E("s_memrealtime s[92:93]"); E("s_waitcnt lgkmcnt(0)")
        E("s_lshl_b32 s90, s2, 3"); E("s_add_u32 s90, s90, s44"); E("s_lshl_b32 s90, s90, 6"); E(f"s_add_u32 s90, s90, {WS_ST}")
        for q in range(2):
            for e in range(4): E(f"v_mov_b32 v{4+e}, s{72+2*(4*q+e)}")
            E(f"buffer_store_dwordx4 v[4:7], off, s[28:31], s90 offset:{16*q}"); nop(2)
        E("v_mov_b32 v4, s92"); E("v_mov_b32 v5, s88"); E("v_mov_b32 v6, s89"); E("v_mov_b32 v7, s94")
        E("buffer_store_dwordx4 v[4:7], off, s[28:31], s90 offset:32")
        E("s_waitcnt vmcnt(0)")

X, WQ, WG, WU, WD, WO, WS, OUT, DBG, KVW = "s[4:7]", "s[8:11]", "s[12:15]", "s[16:19]", "s[20:23]", "s[24:27]", "s[28:31]", "s[32:35]", "s[36:39]", "s[40:43]"

def srd(base, size):
    E(f"s_mov_b32 s{base+2}, {size}"); E(f"s_mov_b32 s{base+3}, 0x20000")
WS_SIZE = WS_END + (0x20000 if STAMPS else 0)

def entry():
    E("s_cmp_ge_u32 s2, 256"); E("s_cbranch_scc1 L_end")
    E("s_load_dwordx2 s[4:5], s[0:1], 0")
    E("s_load_dwordx2 s[28:29], s[0:1], 96")
    E("s_load_dwordx2 s[36:37], s[0:1], 88")
    if STAMPS:
        E("s_memrealtime s[88:89]"); E("s_getreg_b32 s94, hwreg(HW_REG_HW_ID)"); E(f"{CLK} s[72:73]")
    E("v_lshrrev_b32 v1, 6, v0"); E("v_and_b32 v0, 63, v0")
    E("v_readfirstlane_b32 s44, v1")
    E("s_and_b32 s68, s2, 7"); E("s_lshr_b32 s69, s2, 3")
    if opt("cpf", 1):
        E("s_getpc_b64 s[52:53]"); L("L_pc")
        E("s_lshl_b32 s70, s69, 3"); E("s_add_u32 s70, s70, s44"); E("s_lshl_b32 s70, s70, 7"); E(f"s_min_u32 s70, s70, L_end-L_pc")
        E("v_mov_b32 v1, s70")
        E("s_mov_b64 exec, 1"); E("global_load_dword v63, v1, s[52:53]"); E("s_mov_b64 exec, -1")
    if MAP == 3:
        E("s_and_b32 s46, s68, 3"); E("s_lshl_b32 s46, s46, 2"); E("s_and_b32 s70, s69, 3"); E("s_add_u32 s46, s46, s70")
        E("s_lshr_b32 s49, s69, 2"); E("s_lshr_b32 s70, s68, 2"); E("s_mul_i32 s47, s70, 7"); E("s_add_u32 s47, s47, s49"); E("s_sub_u32 s47, s47, 1")
        E("s_add_u32 s71, s70, 14"); E("s_cmp_eq_u32 s49, 0"); E("s_cselect_b32 s47, s71, s47")
        E("s_cmp_eq_u32 s70, 0"); E("s_mov_b32 s50, 0x76543102"); E("s_cselect_b32 s50, s50, 0xfecba98d")
        E("s_and_b32 s70, s69, 28"); E("s_lshr_b32 s50, s50, s70"); E("s_and_b32 s50, s50, 15")
    else:
        E("s_and_b32 s46, s68, 1"); E("s_lshl_b32 s46, s46, 3"); E("s_and_b32 s70, s69, 7"); E("s_add_u32 s46, s46, s70")
        E("s_lshr_b32 s47, s68, 1"); E("s_lshl_b32 s47, s47, 2"); E("s_lshr_b32 s70, s69, 3"); E("s_add_u32 s47, s47, s70")
        E("s_xor_b32 s47, s47, 15")
        E("s_mov_b32 s50, s47")
        E("s_lshr_b32 s49, s69, 2")
    E("s_and_b32 s45, s44, 3")
    srd(4, 1835008); srd(28, WS_SIZE); srd(36, 256)
    E("v_lshlrev_b32 v29, 4, v0")
    E("v_lshrrev_b32 v31, 5, v0")
    E("s_cmp_ge_u32 s44, 4"); E("s_cbranch_scc1 L_g")
    E("s_load_dwordx2 s[8:9], s[0:1], 8")
    srd(8, 401408); srd(40, 65536)
    E("s_mov_b32 s15, 0x20000"); E("s_mov_b32 s19, 0x20000")
    E("s_cmp_ge_u32 s47, 14"); E("s_cbranch_scc1 L_ak")

def lane_pieces():
    E("v_and_b32 v24, 31, v0")
    E("v_bfe_u32 v25, v0, 1, 3")
    E("v_xor_b32 v25, v25, v31"); E("v_lshlrev_b32 v25, 4, v25")
    E("v_lshl_add_u32 v30, v24, 7, v25")
    E("v_bfe_u32 v28, v0, 2, 2")
    E("v_bfe_u32 v24, v0, 4, 1"); E("v_and_b32 v25, 3, v0"); E("v_lshlrev_b32 v25, 3, v25"); E("v_lshl_add_u32 v27, v24, 5, v25")

def g_entry():
    L("L_g")
    E("s_load_dwordx2 s[20:21], s[0:1], 64")
    E("s_load_dwordx2 s[24:25], s[0:1], 32")
    E("s_load_dwordx2 s[32:33], s[0:1], 80")
    srd(20, 1605632); srd(24, 401408); srd(32, 1835008)
    E("s_lshl_b32 s48, s68, 2"); E("s_and_b32 s70, s69, 3"); E("s_add_u32 s48, s48, s70")
    E("s_xor_b32 s49, s49, 7")
    E("s_cmp_ge_u32 s47, 14"); E("s_cbranch_scc1 L_gk")

def x_dma_addrs(rg="s45"):
    E("v_lshrrev_b32 v24, 4, v0")
    E("v_and_b32 v25, 7, v0"); E("v_xor_b32 v25, v25, v24"); E("v_lshlrev_b32 v25, 4, v25")
    E("v_lshrrev_b32 v26, 3, v0"); E("v_mul_u32_u24 v26, 896, v26")
    E("v_add_u32 v1, v26, v25")
    E("v_xor_b32 v25, 64, v25"); E("v_add_u32 v2, v26, v25"); E("v_add_u32 v2, 6144, v2")
    E("v_add_u32 v3, 12288, v1"); E("v_add_u32 v4, 12288, v2")
    E("s_lshl_b32 s52, s46, 2"); E(f"s_add_u32 s52, s52, {rg}"); E("s_mul_i32 s52, s52, 28672")
    E("s_lshl_b32 s55, s45, 12")

def prefill():
    E("s_lshl_b32 s65, s46, 2"); E("s_add_u32 s65, s65, s45"); E("s_lshl_b32 s65, s65, 4"); E("s_add_u32 s65, s65, s50"); E("s_lshl_b32 s65, s65, 11"); E(f"s_add_u32 s65, s65, {WS_O}")
    for r in range(4): E(f"v_mov_b32 v{56+r}, -1")
    for n in range(2): E(f"buffer_store_dwordx4 v[56:59], v29, {WS}, s65 offen offset:{1024*n} sc1")

def go_poll(label, sleep):
    E(f"s_mov_b32 s62, {SPIN}")
    L(label)
    E(f"buffer_load_dword v24, off, {DBG}, 0 offset:128 sc1"); E("s_waitcnt vmcnt(0)")
    E("v_readfirstlane_b32 s63, v24"); E("s_sub_u32 s62, s62, 1"); E("s_cmp_eq_u32 s62, 0"); E(f"s_cbranch_scc1 {label}_x")
    E("s_cmp_lg_u32 s63, 0"); E(f"s_cbranch_scc1 {label}_x"); E(f"s_sleep {sleep}"); E(f"s_branch {label}")
    L(label + "_x")

ASET = (14, 19, 88)
QACC, XF, WF = 32, 48, 64
PREG = 80
QS = 96; OA = 128; KB = 192; VB = 224
S0, S1 = 48, 64
VG = 93
def a_addr(idx, off):
    return ASET[off >> 16] + idx, off & 0xffff

def q_setup(rg="s45"):
    E("v_lshrrev_b32 v25, 2, v0"); E("v_mul_u32_u24 v25, 896, v25"); E("v_and_b32 v26, 3, v0"); E("v_lshl_add_u32 v13, v26, 4, v25")
    E("s_mul_i32 s57, s50, 56"); E("s_and_b32 s54, s57, 0xfffffff0"); E(f"s_mul_i32 s70, {rg}, 14336"); E("s_add_u32 s54, s54, s70")
    E("s_and_b32 s57, s57, 8")
    E(f"s_lshl_b32 s56, {rg}, 10")

def a_setup2(sets):
    lane_pieces()
    E("v_add_u32 v14, s55, v30")
    for s in range(1, 4): E(f"v_xor_b32 v{14+s}, {32*s}, v14")
    E("v_lshl_add_u32 v25, v31, 3, v28"); E("v_lshl_add_u32 v18, v25, 6, v27"); E("v_add_u32 v18, s57, v18")
    if sets:
        for k in range(5):
            E(f"v_add_u32 v{19+k}, 0x10000, v{14+k}"); E(f"v_add_u32 v{88+k}, 0x20000, v{14+k}")
    E(f"v_mov_b32 v24, {L_CNT}")
    E("v_mov_b32 v94, 0"); E("v_mov_b32 v95, 0")
    for o in (0, 8, 16, 24, 32, 40): E(f"ds_write_b64 v24, v[94:95] offset:{o}")
    E("s_lshl_b32 s70, s45, 16"); E("s_add_u32 s40, s28, s70"); E("s_addc_u32 s41, s29, 0")

def a_inits():
    R = [f"v_mov_b32 v{r}, 0" for r in list(range(OA, OA+64)) + list(range(PREG, PREG+8)) + list(range(VB+24, VB+32))]
    R += ["v_and_b32 v94, 31, v0", "v_lshlrev_b32 v94, 2, v94"]
    return R

def kbsel(pos): return f"s_xor_b32 s64, s58, {pos}" if pos < 6 else "s_mov_b32 s64, 6"
def a_dma_group(a):
    pos = int(a[1]); st = ((pos + 2) % F_NST) * F_STAGE
    if a[0] == "X":
        return [kbsel(pos), f"s_add_u32 m0, s59, {st}", "s_lshl_b32 s65, s64, 7", "s_add_u32 s65, s65, s52"] + [f"buffer_load_dwordx4 v{1+n}, {X}, s65 offen offset:{1024*n} lds" for n in range(4)]
    if a[0] == "h":
        hf = int(a[2])
        return [kbsel(pos), f"s_add_u32 m0, s51, {st+F_G+8192*hf}", "s_mul_i32 s65, s64, 229376", "s_add_u32 s65, s65, s53"] + \
               ([f"s_add_u32 s65, s65, 114688"] if hf else []) + \
               [f"buffer_load_dwordx4 v{5+n}, {WG}, s65 offen offset:{1024*n} lds" for n in range(2)] + \
               [f"s_add_u32 m0, s51, {st+F_U+8192*hf}", "s_nop 0"] + [f"buffer_load_dwordx4 v{7+n}, {WU}, s65 offen offset:{1024*n} lds" for n in range(2)]
    return [kbsel(pos), f"s_add_u32 m0, s56, {st+F_Q}", "s_mul_i32 s65, s64, 57344", "s_add_u32 s65, s65, s54", f"buffer_load_dwordx4 v13, {WQ}, s65 offen lds"]

def lds_post(off, val=26):
    E("s_mov_b64 exec, 1"); E(f"ds_add_u32 v25, v{val} offset:{off}"); E("s_mov_b64 exec, -1")

def kv_prologue_loads():
    E("s_lshl_b32 s70, s69, 2"); E("s_add_u32 s70, s70, s45"); E("s_lshl_b32 s70, s70, 11"); E("v_lshlrev_b32 v24, 7, v0")
    E("s_mov_b32 exec_lo, 0xffff"); E("s_mov_b32 exec_hi, 0")
    E(f"buffer_load_dword v95, v24, {WS}, s70 offen sc1")
    E("s_mov_b64 exec, -1")
    E("s_lshl_b32 s70, s46, 2"); E("s_add_u32 s70, s70, s45"); E("s_lshl_b32 s70, s70, 7"); E(f"s_add_u32 s70, s70, {WS_G}")
    E(f"buffer_load_dword v{VG}, v94, {WS}, s70 offen sc1")
    E("s_mov_b32 s60, 0")
    for t in range(3):
        tile_loads(t)

def tile_loads(u):
    E(f"buffer_load_dwordx4 {v(KB+8*u,4)}, v29, {KVW}, s60 offen sc1")
    E(f"buffer_load_dwordx4 {v(KB+8*u+4,4)}, v29, {KVW}, s60 offen offset:1024 sc1")
    E(f"buffer_load_dwordx4 {v(VB+8*u,4)}, v29, {KVW}, s60 offen offset:2048 sc1")
    E(f"buffer_load_dwordx4 {v(VB+8*u+4,4)}, v29, {KVW}, s60 offen offset:3072 sc1")
    E("s_add_u32 s60, s60, 4096")

HALF = opt("half", 1)
def a_ffn():
    L("L_af")
    E("s_load_dwordx2 s[12:13], s[0:1], 48"); E("s_load_dwordx2 s[16:17], s[0:1], 56")
    E("s_mov_b32 s14, 1605632"); E("s_mov_b32 s18, 1605632")
    if MAP == 3:
        E("s_xor_b32 s58, s69, s49"); E("s_and_b32 s58, s58, 1")
        E("s_and_b32 s60, s69, 2"); E("s_add_u32 s60, s60, s45"); E("s_and_b32 s60, s60, 3")
        E("s_lshr_b32 s70, s69, 3"); E("s_add_u32 s61, s45, s70"); E("s_and_b32 s61, s61, 3")
    else:
        E("s_lshr_b32 s70, s69, 3"); E("s_add_u32 s58, s69, s70"); E("s_and_b32 s58, s58, 1")
        E("s_lshr_b32 s60, s69, 1"); E("s_add_u32 s60, s60, s45"); E("s_and_b32 s60, s60, 3")
        E("s_and_b32 s70, s70, 2"); E("s_add_u32 s61, s45, s70"); E("s_and_b32 s61, s61, 3")
    E("s_lshl_b32 s59, s61, 12"); E("s_lshl_b32 s51, s60, 11")
    x_dma_addrs("s61")
    E("v_and_b32 v25, 15, v0"); E("v_lshlrev_b32 v26, 1, v24"); E("v_xor_b32 v25, v25, v26"); E("v_lshlrev_b32 v25, 4, v25")
    E("v_mul_u32_u24 v26, 3584, v24"); E("v_add_u32 v5, v26, v25"); E("v_xor_b32 v7, 128, v5")
    E("v_add_u32 v6, 13312, v5"); E("v_add_u32 v8, 13312, v7")
    E("s_mul_i32 s53, s60, 28672"); E("s_lshl_b32 s70, s47, 8"); E("s_add_u32 s53, s53, s70")
    E("s_waitcnt lgkmcnt(0)")
    stamp(7)
    ops = []
    def after(*tags): return len(ops) - 1 - max(k for k, t in enumerate(ops) if t in tags)
    inits = a_inits()
    state = {"m": 0, "first": True}
    def run(script):
        for a in script.split():
            if a[0] in "XhQ":
                for l in a_dma_group(a): E(l)
                ops.extend([a] * (1 if a[0] == "Q" else 4))
            elif a[0] == "r":
                p = int(a[1]); st = ((p + 2) % F_NST) * F_STAGE
                for s in range(4):
                    r, o = a_addr(s, st); E(f"ds_read_b128 {v(XF+4*s,4)}, v{r} offset:{o}")
                    for q in range(2):
                        r, o = a_addr(4, st + F_Q + s*1024 + q*256); E(f"ds_read_b64_tr_b16 {v(WF+4*s+2*q,2)}, v{r} offset:{o}")
                state["m"] = 0
            elif a == "m":
                s = state["m"]; state["m"] += 1
                E(f"s_waitcnt lgkmcnt({9-3*s})")
                mfma(QACC, WF+4*s, XF+4*s, None if state["first"] else QACC); state["first"] = False
            elif a == "i":
                for _ in range(min(28, len(inits))): E(inits.pop(0))
            elif a[0] == "B":
                E(f"s_waitcnt vmcnt({after(*a[2:].split(','))})"); E("s_barrier")
            elif a == "p":
                E(f"buffer_load_dword v24, off, {DBG}, 0 offset:{0 if opt('kvc', 0) else 128} sc1"); ops.append("p")
    run("X0 h00")
    q_setup("s60")
    E("s_barrier")
    run("h01 Q0")
    a_setup2(True)
    E("s_waitcnt lgkmcnt(0)")
    if HALF == 0:
        run("X1 h10 B:Q0"); stamp(1)
        run("r0 h11 m Q1 m X2 m h20 m B:Q1")
        run("h21 r1 Q2 m X3 m h30 m h31 m B:Q2")
        run("Q3 r2 X4 m h40 m h41 m Q4 m i B:Q3")
        run("r3 X5 m h50 m h51 m Q5 m i B:Q4")
    elif HALF == 1:
        run("X1 B:h00"); stamp(1)
        run("h10 B:Q0")
        run("r0 h11 m Q1 m X2 m m B:Q1")
        run("h20 r1 h21 m Q2 m X3 m h30 m B:Q2")
        run("h31 r2 Q3 m X4 m h40 m h41 m i B:Q3")
        run("Q4 r3 X5 m h50 m h51 m Q5 m i B:Q4")
    else:
        run("X1 B:h00"); stamp(1)
        run("h10 B:Q0")
        run("r0 h11 m Q1 m m m B:h10")
        run("X2 h20 B:Q1")
        run("r1 h21 m Q2 m X3 m m B:Q2")
        run("h30 r2 h31 m Q3 m X4 m h40 m i B:Q3")
        run("h41 Q4 r3 X5 m h50 m h51 m Q5 m i B:Q4")
    run("r4 X6 m h60 m h61 m Q6 m i B:Q5")
    assert not inits
    run("p r5 m m m m")
    E("s_waitcnt vmcnt(0)")
    E("v_readfirstlane_b32 s63, v24"); E("s_mov_b32 s61, 0"); E(f"s_cmp_lt_u32 s63, {32 if opt('kvc', 0) else 1}"); E("s_cbranch_scc1 L_af_notyet")
    kv_prologue_loads(); E("s_mov_b32 s61, 1")
    L("L_af_notyet")
    E("s_barrier")
    E("s_setprio 3")
    E("s_cmp_eq_u32 s61, 1"); E("s_cbranch_scc1 L_af_rdy")
    go_poll("L_af_poll", 3)
    kv_prologue_loads()
    L("L_af_rdy")
    run("r6 m m m m")
    E(f"s_mov_b32 s58, {L_QX}")
    E("s_branch L_attn")

def a_kv():
    L("L_ak")
    E("s_load_dwordx2 s[16:17], s[0:1], 72")
    E("s_cmp_eq_u32 s47, 14"); E("s_cbranch_scc1 L_ak_k")
    E("s_load_dwordx2 s[12:13], s[0:1], 24"); E("s_branch L_ak_j")
    L("L_ak_k")
    E("s_load_dwordx2 s[12:13], s[0:1], 16")
    L("L_ak_j")
    E("s_mov_b32 s14, 25088"); E("s_mov_b32 s18, 896")
    E("s_lshl_b32 s55, s45, 12")
    q_setup()
    E("s_waitcnt lgkmcnt(0)")
    stamp(7)
    E(f"s_add_u32 s53, s56, {K_W}"); E("s_mov_b32 s70, s56")
    for n in range(7):
        E("s_mov_b32 m0, s53"); E("s_add_u32 s53, s53, 4096")
        E(f"buffer_load_dwordx4 v29, {WG}, s70 offen lds"); E("s_add_u32 s70, s70, 4096")
    E(f"s_mov_b32 m0, {K_GW}"); E("s_nop 0"); E(f"buffer_load_dwordx4 v29, {WU}, 0 offen lds")
    E("s_lshl_b32 s70, s47, 2"); E("s_add_u32 s70, s70, s45"); E("s_cmp_lg_u32 s70, 56"); E("s_cbranch_scc1 L_ak_nz")
    E("v_lshlrev_b32 v41, 7, v0"); E("v_mov_b32 v42, 0"); E("s_lshl_b32 s70, s46, 11"); E(f"s_add_u32 s70, s70, {WS_HF}")
    E("s_mov_b32 exec_lo, 0xffff"); E("s_mov_b32 exec_hi, 0")
    E(f"buffer_store_dword v42, v41, {WS}, s70 offen sc1")
    E("s_mov_b64 exec, -1")
    L("L_ak_nz")
    a_setup2(False)
    E(f"v_add_u32 v18, {K_W}, v18")
    E("s_waitcnt vmcnt(0) lgkmcnt(0)")
    E("s_barrier")
    stamp(1)
    for l in a_inits(): E(l)
    for r in range(QACC, QACC+16): E(f"v_mov_b32 v{r}, 0")
    E("s_barrier")
    E(f"s_add_u32 s53, s56, {K_W}")
    for n in range(7):
        E("s_mov_b32 m0, s53"); E("s_add_u32 s53, s53, 4096")
        E(f"buffer_load_dwordx4 v13, {WQ}, s54 offen lds"); E("s_add_u32 s54, s54, 57344")
    E("s_waitcnt vmcnt(0)")
    E("s_barrier")
    E("s_mov_b32 s59, 7")
    def qrd(s):
        E(f"ds_read_b128 {v(XF+4*s,4)}, v{14+s}")
        for q in range(2): E(f"ds_read_b64_tr_b16 {v(WF+4*s+2*q,2)}, v18 offset:{s*1024+q*256}")
    for s in range(4): qrd(s)
    L("L_akloop")
    b0 = len(out)
    E("v_add_u32 v18, 4096, v18")
    for s in range(4):
        E(f"v_add_u32 v{14+s}, 16384, v{14+s}")
        E("s_waitcnt lgkmcnt(9)")
        mfma(QACC, WF+4*s, XF+4*s, QACC)
        qrd(s)
    E("s_sub_u32 s59, s59, 1"); E("s_cmp_lg_u32 s59, 0"); E("s_cbranch_scc1 L_akloop")
    loops.append(out[b0:])
    E("s_waitcnt lgkmcnt(0)")
    go_poll("L_ak_poll", 4)
    kv_prologue_loads()
    E(f"s_mov_b32 s58, {L_RED}")

def lds_spin(label, off, target, areg, treg, sleep=0):
    E(f"s_mov_b32 s62, {SPIN*8}")
    L(label)
    E(f"ds_read_b32 v{treg}, v{areg} offset:{off}"); E("s_waitcnt lgkmcnt(0)")
    E(f"v_readfirstlane_b32 s63, v{treg}"); E("s_sub_u32 s62, s62, 1"); E("s_cmp_eq_u32 s62, 0"); E(f"s_cbranch_scc1 {label}_x")
    if sleep:
        E(f"s_cmp_ge_u32 s63, {target}"); E(f"s_cbranch_scc1 {label}_x"); E(f"s_sleep {sleep}"); E(f"s_branch {label}")
    else:
        E(f"s_cmp_lt_u32 s63, {target}"); E(f"s_cbranch_scc1 {label}")
    L(label + "_x")

def owrites(s):
    R = []
    for q in range(4):
        if s == 2 and q == 3:
            R.append(f"ds_write_b32 v{1+s}, v{OA+16*s+12} offset:3072")
            R.append("s_mov_b32 exec_hi, 0")
        R.append(f"ds_write_b128 v{1+s}, {v(OA+16*s+4*q,4)} offset:{1024*q}")
    return R

def period(u, s):
    tau = 4*u + s
    Sc = (S0, S1)[tau & 1]; Sn = (S0, S1)[(tau+1) & 1]
    un, sn = ((tau+1)//4) % 4, (tau+1) % 4
    up, sp = ((tau-1)//4) % 4, (tau-1) % 4
    ul = (u + 3) % 4
    ex = [f"v_exp_f32 v{Sc+r}, v{Sc+r}" for r in range(16)]
    cv = [f"v_cvt_pk_bf16_f32 v{PREG+r}, v{Sc+2*r}, v{Sc+2*r+1}" for r in range(8)]
    if s == 0: Y = [[f"buffer_load_dwordx4 {v(KB+8*ul,4)}, v29, {KVW}, s60 offen sc1"], [f"buffer_load_dwordx4 {v(KB+8*ul+4,4)}, v29, {KVW}, s60 offen offset:1024 sc1"]]
    if s == 1: Y = [[f"buffer_load_dwordx4 {v(VB+8*ul,4)}, v29, {KVW}, s60 offen offset:2048 sc1"], [f"buffer_load_dwordx4 {v(VB+8*ul+4,4)}, v29, {KVW}, s60 offen offset:3072 sc1"]]
    if s == 2: Y = [["s_add_u32 s60, s60, 4096"], ["s_waitcnt vmcnt(8)"]]
    if s == 3: Y = [["s_nop 0"], ["s_nop 0"]]
    if not SPREAD:
        if s == 0: Y = [["s_nop 0"], ["s_nop 0"]]
        if s == 1: Y = [[f"buffer_load_dwordx4 {v(KB+8*ul,4)}, v29, {KVW}, s60 offen sc1", f"buffer_load_dwordx4 {v(KB+8*ul+4,4)}, v29, {KVW}, s60 offen offset:1024 sc1"] + Y[0] + Y[1], ["s_nop 0"]]
    if u == 2 and s == 3: Y = [["s_sub_u32 s59, s59, 1"], ["s_nop 0"]]
    if u == 3 and s == 2:
        Y = [["s_add_u32 s60, s60, 4096", "s_cmp_lg_u32 s59, 0"], ["s_waitcnt vmcnt(8)", "s_cbranch_scc1 L_ow2"] + owrites(0) + ["L_ow2:"]]
    if u == 3 and s == 3:
        Y = [["s_cbranch_scc1 L_ow3"] + owrites(1) + ["L_ow3:"], ["s_nop 0"]]
    def emit(ls):
        for l in ls:
            if l == "s_nop 0" and not YNOP: continue
            if l.endswith(":"): L(l[:-1])
            else: E(l)
    mfma(Sn, KB+8*un, QS+8*sn)
    emit(ex[0:3])
    mfma(Sn, KB+8*un+4, QS+8*sn+4, Sn)
    emit(ex[3:6])
    mfma(OA+16*sp, VB+8*up, PREG, OA+16*sp)
    emit(ex[6:9])
    mfma(OA+16*sp, VB+8*up+4, PREG+4, OA+16*sp)
    emit(ex[9:12]); emit(Y[0]); emit(ex[12:15]); emit(Y[1]); emit(ex[15:16]); emit(cv)

def attention():
    L("L_attn")
    stamp(2)
    E("s_setprio 3")
    C("Q epilogue -> slot 3")
    Q3 = QS + 24
    E(f"s_mov_b32 s64, {QSCALE}"); E("s_nop 0")
    E("v_cmp_eq_u32 vcc, 0, v31")
    E("s_lshl_b32 s66, s45, 11"); E("s_add_u32 s66, s66, s58"); E("v_add_u32 v24, s66, v29")
    E(f"v_mov_b32 v25, {L_CNT}"); E("v_mov_b32 v26, 1")
    nop(3)
    for r in range(16): E(f"v_mul_f32 v{QACC+r}, s64, v{QACC+r}")
    for r in range(8): E(f"v_cvt_pk_bf16_f32 v{Q3+r}, v{QACC+2*r}, v{QACC+2*r+1}")
    E(f"v_cndmask_b32 v{Q3+6}, 0, v{Q3+6}, vcc"); E(f"v_cndmask_b32 v{Q3+7}, 0, v{Q3+7}, vcc")
    E(f"ds_write_b128 v24, {v(Q3,4)}")
    E("s_waitcnt vmcnt(10)")
    mfma(S0, KB, Q3); mfma(S0, KB+4, Q3+4, S0)
    for s in range(3):
        E(f"s_add_u32 s65, s45, {1+s}"); E("s_and_b32 s65, s65, 3"); E("s_lshl_b32 s65, s65, 11"); E("s_add_u32 s65, s65, s58")
        E(f"v_add_u32 v{1+s}, s65, v29")
    E(f"v_max3_f32 v4, v{S0}, v{S0+1}, v{S0+2}"); E(f"v_max3_f32 v5, v{S0+3}, v{S0+4}, v{S0+5}")
    E(f"v_max3_f32 v4, v4, v{S0+6}, v{S0+7}"); E(f"v_max3_f32 v5, v5, v{S0+8}, v{S0+9}")
    E(f"v_max3_f32 v4, v4, v{S0+10}, v{S0+11}"); E(f"v_max3_f32 v5, v5, v{S0+12}, v{S0+13}")
    E(f"v_max3_f32 v4, v4, v{S0+14}, v{S0+15}")
    E("v_max_f32 v4, v4, v5")
    E("v_mov_b32 v5, v4"); nop(2)
    E("v_permlane32_swap_b32 v4, v5"); nop(1)
    E("v_max_f32 v4, v4, v5")
    E("v_cvt_pk_bf16_f32 v4, -v4, 0")
    E(f"v_cndmask_b32 v{Q3+6}, v4, v{Q3+6}, vcc")
    E(f"ds_write_b128 v24, {v(Q3+4,4)} offset:1024")
    E("s_mov_b64 exec, 1")
    E(f"ds_add_u32 v25, v26 offset:{QC}")
    E("s_mov_b64 exec, -1")
    lds_spin("L_qspin", QC, 4, 25, 5)
    for s in range(3):
        E(f"ds_read_b128 {v(QS+8*s,4)}, v{1+s}"); E(f"ds_read_b128 {v(QS+8*s+4,4)}, v{1+s} offset:1024")
    E("s_mov_b64 exec, 1")
    E(f"ds_add_u32 v25, v26 offset:{QD}")
    E("s_mov_b64 exec, -1")
    E("s_waitcnt lgkmcnt(5)")
    mfma(S0, KB, QS); mfma(S0, KB+4, QS+4, S0)
    for s in range(3):
        E(f"s_add_u32 s65, s45, {1+s}"); E("s_and_b32 s65, s65, 3"); E("s_mul_i32 s65, s65, 12288"); E(f"s_add_u32 s65, s65, {L_RED+4096*s}")
        E(f"v_add_u32 v{1+s}, s65, v29")
    E("s_mul_i32 s65, s45, 12288"); E(f"s_add_u32 s65, s65, {L_RED}"); E("v_add_u32 v4, s65, v29")
    E("s_lshl_b32 s65, s46, 2"); E("s_add_u32 s65, s65, s45"); E("s_lshl_b32 s65, s65, 4"); E("s_add_u32 s65, s65, s50"); E("s_lshl_b32 s65, s65, 11"); E(f"s_add_u32 s65, s65, {WS_O}")
    E(f"v_mov_b32 v7, {f32bits(2.0**100)}"); E(f"v_mov_b32 v8, {f32bits(2.0**-60)}"); E("v_mov_b32 v9, 0x7f800000")
    E("s_waitcnt vmcnt(8) lgkmcnt(0)")
    E(f"s_mov_b32 s59, {3 if XP & 32 else 4}")
    E("s_setprio 1")
    stamp(3)
    out.append(".p2align 6")
    L("L_aloop")
    b0 = len(out)
    for u in range(4):
        for s in range(4): period(u, s)
    E("s_cbranch_scc1 L_aloop")
    loops.append(out[b0:])
    stamp(4)
    E("s_setprio 3")
    O3 = OA + 48
    mfma(O3, VB+24, PREG, O3); mfma(O3, VB+28, PREG+4, O3)
    for l in owrites(2): E(l)
    E("s_mov_b32 exec_lo, 1")
    E(f"ds_add_u32 v25, v26 offset:{RC}"); E("s_mov_b64 exec, -1")
    E("s_waitcnt vmcnt(0)")
    lds_spin("L_rspin", RC, 4, 25, 5)
    stamp(5)
    for q in range(12): E(f"ds_read_b128 {v(KB+4*q,4)}, v4 offset:{1024*q}")
    E("v_cmp_eq_u32 vcc, 0, v31")
    for s in range(3):
        E(f"s_waitcnt lgkmcnt({8-4*s})")
        for r in range(16): E(f"v_add_f32 v{O3+r}, v{O3+r}, v{KB+16*s+r}")
    E(f"v_mov_b32 v4, v{O3+12}"); E(f"v_mov_b32 v5, v{O3+12}")
    for r in (13, 14, 15): E(f"v_cndmask_b32 v{O3+r}, 0, v{O3+r}, vcc")
    E("v_permlane32_swap_b32 v4, v5")
    E(f"v_add_f32 v10, v{O3}, v{O3+1}"); E(f"v_add_f32 v11, v{O3+2}, v{O3+3}")
    E("v_rcp_f32 v4, v5")
    for r in range(4, 16, 2): E(f"v_add_f32 v10, v10, v{O3+r}"); E(f"v_add_f32 v11, v11, v{O3+r+1}")
    E("v_cmp_ge_f32 s[66:67], v7, v5"); E("v_cmp_le_f32 s[68:69], v8, v5")
    E("v_add_f32 v6, v10, v11")
    E("v_cmp_gt_f32 s[70:71], v9, |v6|")
    E(f"v_mul_f32 v4, v{VG}, v4")
    E("s_and_b64 s[66:67], s[66:67], s[68:69]"); E("s_and_b64 s[66:67], s[66:67], s[70:71]")
    E("s_cmp_eq_u64 s[66:67], -1"); E("s_cbranch_scc0 L_fb")
    L("L_norm")
    for r in range(8): E(f"v_mul_f32 v{O3+r}, v4, v{O3+r}")
    for r in range(4): E(f"v_cvt_pk_bf16_f32 v{PREG+r}, v{O3+2*r}, v{O3+2*r+1}")
    for r in range(4): E(f"v_min_u32 v{PREG+r}, -2, v{PREG+r}")
    E(f"buffer_store_dwordx4 {v(PREG,4)}, v29, {WS}, s65 offen sc1")
    for r in range(8, 16): E(f"v_mul_f32 v{O3+r}, v4, v{O3+r}")
    for r in range(4, 8): E(f"v_cvt_pk_bf16_f32 v{PREG+r}, v{O3+2*r}, v{O3+2*r+1}")
    E(f"v_cndmask_b32 v{PREG+6}, 0, v{PREG+6}, vcc"); E(f"v_cndmask_b32 v{PREG+7}, 0, v{PREG+7}, vcc")
    for r in range(4, 8): E(f"v_min_u32 v{PREG+r}, -2, v{PREG+r}")
    E(f"buffer_store_dwordx4 {v(PREG+4,4)}, v29, {WS}, s65 offen offset:1024 sc1")
    E("s_mov_b64 exec, 1"); E(f"ds_add_u32 v25, v26 offset:{AD}"); E("s_mov_b64 exec, -1")
    stamp(6)
    stamp_flush("a")
    E("s_endpgm")
    L("L_fb")
    E("v_cmp_eq_u32 vcc, 0, v31"); E("v_mov_b32 v4, 0xff800000"); E("s_mov_b32 s60, 0")
    E(f"v_cndmask_b32 v{Q3+6}, 0, v{Q3+6}, vcc")
    L("L_fb1")
    E(f"buffer_load_dwordx4 {v(KB,4)}, v29, {WS}, s60 offen sc1"); E(f"buffer_load_dwordx4 {v(KB+4,4)}, v29, {WS}, s60 offen offset:1024 sc1")
    E("s_waitcnt vmcnt(0)")
    mfma(S0, KB, Q3); mfma(S0, KB+4, Q3+4, S0); nop(12)
    for r in range(0, 16, 2): E(f"v_max3_f32 v4, v4, v{S0+r}, v{S0+r+1}")
    E("s_add_u32 s60, s60, 4096"); E("s_cmp_lt_u32 s60, 0x40000"); E("s_cbranch_scc1 L_fb1")
    E("v_mov_b32 v5, v4"); nop(2); E("v_permlane32_swap_b32 v4, v5"); nop(1); E("v_max_f32 v4, v4, v5")
    for r in range(16): E(f"v_mov_b32 v{O3+r}, 0")
    E("s_mov_b32 s60, 0")
    L("L_fb2")
    E(f"buffer_load_dwordx4 {v(KB,4)}, v29, {WS}, s60 offen sc1"); E(f"buffer_load_dwordx4 {v(KB+4,4)}, v29, {WS}, s60 offen offset:1024 sc1")
    E(f"buffer_load_dwordx4 {v(VB,4)}, v29, {WS}, s60 offen offset:2048 sc1"); E(f"buffer_load_dwordx4 {v(VB+4,4)}, v29, {WS}, s60 offen offset:3072 sc1")
    E("s_waitcnt vmcnt(0)")
    mfma(S0, KB, Q3); mfma(S0, KB+4, Q3+4, S0); nop(12)
    for r in range(16): E(f"v_sub_f32 v{S0+r}, v{S0+r}, v4")
    for r in range(16): E(f"v_exp_f32 v{S0+r}, v{S0+r}")
    nop(1)
    for r in range(8): E(f"v_cvt_pk_bf16_f32 v{PREG+r}, v{S0+2*r}, v{S0+2*r+1}")
    nop(2)
    mfma(O3, VB, PREG, O3); mfma(O3, VB+4, PREG+4, O3)
    E("s_add_u32 s60, s60, 4096"); E("s_cmp_lt_u32 s60, 0x40000"); E("s_cbranch_scc1 L_fb2")
    nop(12)
    E(f"v_mov_b32 v4, v{O3+12}"); E(f"v_mov_b32 v5, v{O3+12}"); nop(2)
    E("v_permlane32_swap_b32 v4, v5"); nop(1)
    E("v_rcp_f32 v4, v5"); nop(1)
    E(f"v_mul_f32 v4, v{VG}, v4")
    E("s_branch L_norm")

def d_setup():
    E("s_add_u32 s13, s45, s49"); E("s_add_u32 s13, s13, s48"); E("s_and_b32 s13, s13, 3"); E("s_lshl_b32 s13, s13, 1")
    E("s_lshr_b32 s14, s49, 2"); E("s_lshr_b32 s70, s48, 1"); E("s_xor_b32 s14, s14, s70"); E("s_and_b32 s14, s14, 1")
    E("s_add_u32 s13, s13, s14"); E("s_xor_b32 s14, s13, 1")
    E("s_and_b32 s70, s49, 1"); E("s_lshl_b32 s70, s70, 1"); E("s_xor_b32 s8, s45, s70")
    E("s_and_b32 s9, s8, 1"); E("s_lshr_b32 s10, s8, 1"); E("s_lshl_b32 s12, s8, 11")
    E("v_lshrrev_b32 v17, 3, v0"); E("v_mul_u32_u24 v17, 896, v17")
    E("v_bfe_u32 v18, v0, 4, 1"); E("v_lshlrev_b32 v18, 2, v18"); E("v_and_b32 v19, 7, v0"); E("v_xor_b32 v18, v18, v19")
    E("v_lshl_add_u32 v32, v18, 4, v17"); E("v_add_u32 v33, 6144, v32")
    E("v_lshl_add_u32 v17, v31, 2, v28"); E("v_lshl_add_u32 v17, v17, 7, v27")
    E("v_lshrrev_b32 v18, 1, v28"); E("v_xor_b32 v18, s10, v18"); E("v_lshl_add_u32 v17, v18, 6, v17")
    E("v_add_u32 v34, s12, v17"); E("v_xor_b32 v35, 64, v34"); E("v_add_u32 v36, 0x10000, v34"); E("v_add_u32 v37, 0x10000, v35")
    E("s_lshl_b32 s70, s10, 12"); E("v_add_u32 v38, s70, v17"); E("v_xor_b32 v39, 64, v38")
    E("s_lshl_b32 s11, s48, 1"); E("s_add_u32 s11, s11, s9"); E("s_xor_b32 s70, s11, 1")
    E("s_mul_i32 s71, s11, 114688"); E(f"s_add_u32 s71, s71, {WS_H}"); E("v_add_u32 v40, s71, v29")
    E("s_mul_i32 s71, s70, 114688"); E(f"s_add_u32 s71, s71, {WS_H}"); E("v_add_u32 v41, s71, v29")
    E("s_lshl_b32 s15, s49, 7"); E("s_mul_i32 s16, s13, 200704"); E("s_add_u32 s16, s16, s15"); E("s_mov_b32 s17, s12")
    E("v_and_b32 v19, 31, v0"); E("v_lshlrev_b32 v42, 2, v19")
    E("v_min_u32 v43, 15, v0"); E("v_lshlrev_b32 v43, 7, v43")
    E("v_mul_u32_u24 v44, 3584, v0")
    E("s_lshl_b32 s70, s11, 4"); E("s_lshl_b32 s71, s10, 3"); E("s_add_u32 s70, s70, s71"); E("s_lshl_b32 s70, s70, 11"); E(f"s_add_u32 s70, s70, {WS_O}")
    E("v_add_u32 v45, s70, v29"); E("v_add_u32 v46, 1024, v45")
    E("v_add_u32 v47, s12, v29"); E("v_add_u32 v47, 0x10000, v47"); E("v_xor_b32 v48, 2048, v47"); E("v_xor_b32 v49, 4096, v47")
    E("v_mul_u32_u24 v50, 896, v19"); E("v_lshl_add_u32 v50, v31, 4, v50")
    E(f"v_mov_b32 v25, {L_CNT}"); E("v_mov_b32 v26, 1")

def wd_slot():
    return ["s_mov_b32 m0, s17", "s_add_u32 s17, s17, 8192", f"buffer_load_dwordx4 v32, {WD}, s16 offen lds",
            f"buffer_load_dwordx4 v33, {WD}, s16 offen offset:1024 lds", "s_add_u32 s16, s16, 14336"]

def g_ffn():
    L("L_gf")
    ACC = 128; GX = 64; GW_ = 80
    if opt("pf", 0) >= 2:
        E("s_load_dwordx2 s[40:41], s[0:1], 48"); E("s_load_dwordx2 s[96:97], s[0:1], 56"); srd(40, 1605632); srd(96, 1605632)
    lane_pieces()
    E("s_and_b32 s52, s45, 1"); E("s_lshr_b32 s53, s45, 1")
    E("s_lshl_b32 s70, s52, 13"); E("v_add_u32 v1, s70, v30")
    for s in range(1, 4): E(f"v_xor_b32 v{1+s}, {32*s}, v1")
    E("v_bfe_u32 v17, v0, 4, 1")
    E("v_lshl_add_u32 v18, v17, 2, v28")
    E("s_lshl_b32 s70, s53, 2"); E("v_xor_b32 v18, s70, v18"); E("v_lshlrev_b32 v18, 5, v18")
    E("v_and_b32 v19, 3, v0"); E("v_lshl_add_u32 v18, v19, 3, v18")
    E("v_lshl_add_u32 v19, v31, 3, v28"); E("v_lshl_add_u32 v18, v19, 8, v18")
    E("v_lshl_add_u32 v18, v17, 14, v18"); E(f"v_add_u32 v5, {F_G}, v18")
    for t in range(1, 4): E(f"v_xor_b32 v{5+t}, {32*t}, v5")
    for k in range(8): E(f"v_add_u32 v{9+k}, {F_STAGE}, v{1+k}"); E(f"v_add_u32 v{112+k}, {2*F_STAGE}, v{1+k}")
    d_setup()
    E("s_lshl_b32 s56, s46, 2"); E("s_lshl_b32 s70, s52, 1"); E("s_add_u32 s56, s56, s70"); E("s_mul_i32 s56, s56, 114688")
    E("s_lshl_b32 s70, s47, 13"); E("s_add_u32 s56, s56, s70"); E("s_lshl_b32 s70, s53, 12"); E("s_add_u32 s56, s56, s70"); E(f"s_add_u32 s56, s56, {WS_H}")
    E("s_add_u32 s57, s56, 114688")
    PF = opt("pf", 0)
    if PF:
        E("s_mul_i32 s62, s46, 14"); E("s_add_u32 s62, s62, s47"); E("s_lshl_b32 s62, s62, 2"); E("s_add_u32 s62, s62, s45")
        E("s_mul_i32 s63, s62, 1792"); E("s_lshl_b32 s64, s62, 11"); E("s_lshl_b32 s62, s62, 9"); E("v_lshlrev_b32 v60, 7, v0")
    E("s_waitcnt lgkmcnt(0)")
    E("s_barrier")
    if PF:
        E("s_mov_b32 exec_hi, 0")
        if PF >= 2:
            E("s_mov_b32 exec_lo, 0xffff"); E(f"buffer_load_dword v61, v60, {X}, s64 offen")
            E("s_mov_b32 exec_lo, 0x3fff"); E("buffer_load_dword v61, v60, s[40:43], s63 offen"); E("buffer_load_dword v61, v60, s[96:99], s63 offen")
        E("s_mov_b32 exec_lo, 0x3fff"); E(f"buffer_load_dword v61, v60, {WD}, s63 offen")
        E("s_mov_b32 exec_lo, 0xf"); E(f"buffer_load_dword v61, v60, {WO}, s62 offen")
        E("s_mov_b64 exec, -1")
    prefill()
    E("s_barrier")
    stamp(1)
    def reads(p, s):
        st = s & 1; ab = (1, 9, 112)[(p + 2) % 3]
        R = []
        R.append(f"ds_read_b128 {v(GX+8*st,4)}, v{ab+s}")
        for q in range(2): R.append(f"ds_read_b64_tr_b16 {v(GW_+16*st+2*q,2)}, v{ab+4} offset:{4096*s+1024*q}")
        R.append(f"ds_read_b128 {v(GX+8*st+4,4)}, v{ab+s} offset:4096")
        for t in range(1, 4):
            for q in range(2): R.append(f"ds_read_b64_tr_b16 {v(GW_+16*st+4*t+2*q,2)}, v{ab+4+t} offset:{4096*s+1024*q}")
        return R
    def ep(n):
        t, a = n >> 1, n & 1
        d = ACC + 64*a + 16*t
        for r in range(8): E(f"v_mul_f32 v{d+r}, v{d+r}, v{d+8+r}")
        for r in range(4): E(f"v_cvt_pk_bf16_f32 v{d+8+r}, v{d+2*r}, v{d+2*r+1}")
        E(f"buffer_store_dwordx4 {v(d+8,4)}, v29, {WS}, s{56+a} offen offset:{1024*t} sc1")
    for l in reads(0, 0): E(l)
    for p in range(7):
        for s in range(4):
            st = s & 1
            last = (p == 6 and s == 3)
            E("s_waitcnt lgkmcnt(0)")
            R = [] if last else (reads(p, s+1) if s < 3 else reads(p+1, 0))
            if p == 6 and s == opt("gps", 3): E("s_setprio 3")
            n = 0
            for t in range(4):
                for a in range(2):
                    d = ACC + 64*a + 16*t
                    mfma(d, GW_+16*st+4*t, GX+8*st+4*a, None if (p == 0 and s == 0) else d)
                    if n == 0 and ((s == 3 and p < 6) or (s == 1 and p < HALF)): E("s_barrier")
                    for l in R[:2]: E(l)
                    R = R[2:]
                    if p == 6 and s in EWS and n == 4:
                        E("s_cmp_eq_u32 s49, 7"); E(f"s_cbranch_scc1 L_gf_nd{s}")
                        for l in wd_slot() + wd_slot(): E(l)
                        L(f"L_gf_nd{s}")
                    if last and n == 1: nop(11)
                    if last and n >= 1: ep(n-1)
                    n += 1
    stamp(2)
    ep(7)
    E(f"s_mov_b32 s19, {12-2*len(EWS)}")
    E("s_branch L_gpub")

def g_kv():
    L("L_gk")
    D1, D2, D3 = 128, 128, 160
    GX = 64; GWf = 80; GG = 96
    x_dma_addrs()
    E("s_mov_b32 s53, s55")
    E("s_waitcnt lgkmcnt(0)")
    def xblk():
        E("s_mov_b32 m0, s53"); E("s_add_u32 s53, s53, 16384")
        for n in range(4): E(f"buffer_load_dwordx4 v{1+n}, {X}, s52 offen offset:{1024*n} lds")
        E("s_add_u32 s52, s52, 128")
    for kb in range(4): xblk()
    lane_pieces()
    E("v_add_u32 v9, s55, v30")
    for s in range(1, 4): E(f"v_xor_b32 v{9+s}, {32*s}, v9")
    for s in range(4): E(f"v_add_u32 v{14+s}, 0x10000, v{9+s}")
    E("v_lshl_add_u32 v18, v31, 3, v28"); E("v_mul_u32_u24 v18, 56, v18"); E("v_add_u32 v13, v18, v27"); E(f"v_add_u32 v13, {K_W}, v13")
    E("v_lshlrev_b32 v6, 4, v31"); E(f"v_add_u32 v6, {K_GW}, v6")
    E("s_barrier")
    stamp(1)
    for kb in range(4, 7): xblk()
    E("s_cmp_eq_u32 s47, 15"); E("s_cbranch_scc1 L_gk_lv")
    for kind in "KV":
        if kind == "V": L("L_gk_lv")
        nr = 4 if kind == "K" else 3
        def rd(n):
            kb, s = n >> 2, n & 3; k = n & 3
            if s == 0: E(f"s_waitcnt vmcnt({24-4*kb})")
            o = 16384*kb
            E(f"ds_read_b128 {v(GX+4*k,4)}, v{(9 if o < 65536 else 14)+s} offset:{o & 0xffff}")
            for q in range(2): E(f"ds_read_b64_tr_b16 {v(GWf+4*k+2*q,2)}, v13 offset:{3584*kb+896*s+224*q}")
            if kind == "K": E(f"ds_read_b128 {v(GG+4*k,4)}, v6 offset:{128*kb+32*s}")
        for n in range(3): rd(n)
        for n in range(28):
            k = n & 3
            E(f"s_waitcnt lgkmcnt({nr*min(2, 27-n)})")
            if kind == "K":
                mfma(D1, GWf+4*k, GX+4*k, D1 if n else None); mfma(D3, GG+4*k, GX+4*k, D3 if n else None)
            else:
                mfma(D2, GX+4*k, GWf+4*k, D2 if n else None)
            if n + 3 < 28: rd(n + 3)
        if kind == "K": E("s_branch L_gk_le")
    L("L_gk_le")
    stamp(2)
    E("s_lshl_b32 s56, s46, 2"); E("s_add_u32 s56, s56, s45"); E("s_lshl_b32 s57, s56, 7"); E("s_lshl_b32 s56, s56, 12"); E(f"s_add_u32 s57, s57, {WS_G}")
    E("v_and_b32 v17, 31, v0")
    nop(4)
    E("s_cmp_eq_u32 s47, 15"); E("s_cbranch_scc1 L_gk_v")
    E("v_cmp_eq_u32 vcc, 0, v31")
    for r in range(8): E(f"v_cvt_pk_bf16_f32 v{32+r}, v{D1+2*r}, v{D1+2*r+1}")
    E("v_mov_b32 v18, 0x3f80")
    E("v_cndmask_b32 v38, v18, v38, vcc"); E("v_cndmask_b32 v39, 0, v39, vcc")
    E(f"buffer_store_dwordx4 v[32:35], v29, {WS}, s56 offen sc1")
    E(f"buffer_store_dwordx4 v[36:39], v29, {WS}, s56 offen offset:1024 sc1")
    E(f"v_mul_f32 v18, {f32bits(-math.log2(math.e)):#x}, v{D3}")
    E("v_exp_f32 v18, v18"); E("v_lshlrev_b32 v17, 2, v17")
    E("v_add_f32 v18, 1.0, v18"); E("v_rcp_f32 v18, v18")
    E("s_mov_b32 exec_hi, 0")
    E(f"buffer_store_dword v18, v17, {WS}, s57 offen sc1")
    E("s_mov_b64 exec, -1")
    E("s_branch L_gk_pub")
    L("L_gk_v")
    E("v_cmp_gt_u32 vcc, 28, v17"); E("v_cmp_eq_u32 s[66:67], 28, v17")
    E("v_mov_b32 v18, 0x3f803f80"); E("v_mov_b32 v19, 0")
    E("v_cndmask_b32 v18, v19, v18, s[66:67]")
    for r in range(8): E(f"v_cvt_pk_bf16_f32 v{32+r}, v{D2+2*r}, v{D2+2*r+1}")
    for r in range(8): E(f"v_cndmask_b32 v{32+r}, v18, v{32+r}, vcc")
    E(f"buffer_store_dwordx4 v[32:35], v29, {WS}, s56 offen offset:2048 sc1")
    E(f"buffer_store_dwordx4 v[36:39], v29, {WS}, s56 offen offset:3072 sc1")
    L("L_gk_pub")
    E(f"v_mov_b32 v25, {L_CNT}"); E("v_mov_b32 v26, 1")
    E("s_waitcnt vmcnt(0)")
    E("s_mov_b64 exec, 1")
    E(f"ds_add_rtn_u32 v24, v25, v26 offset:{KC}"); E("s_waitcnt lgkmcnt(0)")
    E("v_readfirstlane_b32 s63, v24"); nop(1)
    E("s_cmp_lg_u32 s63, 3"); E("s_cbranch_scc1 L_gk_nosig")
    E("v_mov_b32 v24, 1")
    E(f"buffer_atomic_add v24, off, {DBG}, 0 sc0 sc1"); E("s_waitcnt vmcnt(0)")
    E("v_readfirstlane_b32 s63, v24"); nop(1)
    E("s_cmp_lg_u32 s63, 31"); E("s_cbranch_scc1 L_gk_nosig")
    E(f"buffer_store_dword v26, off, {DBG}, 0 offset:128 sc1")
    L("L_gk_nosig")
    E("s_mov_b64 exec, -1")
    stamp(5)
    E("s_barrier")
    prefill()
    d_setup()
    E("s_mov_b32 s19, 12")
    KPF = opt("kpf", 0)
    def kpf():
        E("s_lshl_b32 s62, s46, 1"); E("s_add_u32 s62, s62, s47"); E("s_sub_u32 s62, s62, 14"); E("s_lshl_b32 s62, s62, 2"); E("s_add_u32 s62, s62, s45")
        E("s_mul_i32 s63, s62, 12544"); E("s_mul_i32 s62, s62, 3200"); E("v_lshlrev_b32 v60, 7, v0"); E("s_add_u32 s64, s63, 6272")
        E("s_mov_b32 exec_hi, 0x1ffff")
        E(f"buffer_load_dword v61, v60, {WD}, s63 offen"); E(f"buffer_load_dword v61, v60, {WD}, s64 offen")
        E("s_mov_b32 exec_hi, 0"); E("s_mov_b32 exec_lo, 0x1ffffff")
        E(f"buffer_load_dword v61, v60, {WO}, s62 offen")
        E("s_mov_b64 exec, -1")
    if KPF == 1: kpf()
    E("s_barrier")
    if KPF == 2: kpf()
    lds_spin("L_gk_s1", QD, 4, 25, 24, 4)
    L("L_gpub")
    E("s_setprio 3")
    lds_spin("L_g_go", QC, 1, 25, 24, 2)
    E("s_waitcnt vmcnt(0)")
    E("s_mov_b64 exec, 1")
    E(f"ds_add_rtn_u32 v24, v25, v26 offset:{GC}"); E("s_waitcnt lgkmcnt(0)")
    E("v_readfirstlane_b32 s63, v24")
    E("s_lshl_b32 s70, s46, 4"); E("s_add_u32 s70, s70, s47"); E("s_lshl_b32 s70, s70, 7"); E(f"s_add_u32 s70, s70, {WS_HF}")
    E("s_cmp_lg_u32 s63, 3"); E("s_cbranch_scc1 L_g_nosig")
    E(f"buffer_store_dword v26, off, {WS}, s70 sc1")
    L("L_g_nosig")
    E("s_mov_b64 exec, -1")

def g_down():
    L("L_gd")
    stamp(3)
    E("s_cmp_eq_u32 s49, 7"); E("s_cbranch_scc1 L_gend")
    HB = 64; WFR = 176; ACC = 192
    if XP & 8:
        lds_post(WL); E(f"ds_read_b64 v[22:23], v25 offset:{AD-4}"); E(f"ds_read_b32 v24, v25 offset:{WL}"); E("s_branch L_xp8")
    E("s_setprio 0")
    L("L_gd_wd")
    E("s_waitcnt vmcnt(6)")
    for l in wd_slot(): E(l)
    E("s_sub_u32 s19, s19, 1"); E("s_cmp_lg_u32 s19, 0"); E("s_cbranch_scc1 L_gd_wd")
    E("s_and_b32 s70, s48, 3"); E("s_mul_i32 s70, s70, 896")
    E("s_mul_i32 s71, s8, 100352"); E("s_add_u32 s70, s70, s71"); E("s_add_u32 s70, s70, s15")
    E("s_mov_b32 exec_lo, 0xfffffff"); E("s_mov_b32 exec_hi, 0")
    E(f"buffer_load_dword v10, v44, {WO}, s70 offen")
    E("s_mov_b64 exec, -1")
    E("s_lshl_b32 s70, s11, 7"); E(f"s_add_u32 s70, s70, {WS_G}")
    E(f"buffer_load_dword v9, v42, {WS}, s70 offen sc1")
    E("s_lshr_b32 s70, s48, 1"); E("s_lshl_b32 s70, s70, 11"); E(f"s_add_u32 s70, s70, {WS_HF}")
    E("s_setprio 3")
    lds_spin("L_gd_s1", QD, 4, 25, 24, 2)
    lds_spin("L_gd_s2", GC, 4, 25, 24, 2)
    for k in range(2):
        for l in wd_slot(): E(l)
    E(f"s_mov_b32 s62, {SPIN}")
    L("L_gd_poll")
    E(f"buffer_load_dword v18, v43, {WS}, s70 offen sc1"); E("s_waitcnt vmcnt(0)")
    E("v_cmp_ne_u32 vcc, 1, v18"); E("s_sub_u32 s62, s62, 1"); E("s_cmp_eq_u32 s62, 0"); E("s_cbranch_scc1 L_gd_go")
    E("s_cbranch_vccz L_gd_go"); E("s_sleep 6"); E("s_branch L_gd_poll")
    L("L_gd_go")
    stamp(4)
    E("s_setprio 0")
    NH = DD + 1
    ops = []
    E("s_mul_i32 s59, s13, 14336")
    E("s_mul_i32 s16, s14, 200704"); E("s_add_u32 s16, s16, s15")
    def hload(s):
        if s == 14: E("s_mul_i32 s59, s14, 14336")
        o = (s % 14) % 4
        r = HB + 8*(s % NH)
        E(f"buffer_load_dwordx4 {v(r,4)}, v40, {WS}, s59 offen offset:{1024*o} sc1"); E(f"buffer_load_dwordx4 {v(r+4,4)}, v41, {WS}, s59 offen offset:{1024*o} sc1")
        if o == 3: E("s_add_u32 s59, s59, 4096")
        ops.extend([("h", s)]*2)
    def younger(tags):
        idx = [k for k, t in enumerate(ops) if t in tags]
        return len(ops) - 1 - max(idx) if idx else None
    def wreads(s):
        st = s & 1; sl = s % 14
        return [f"ds_read_b64_tr_b16 {v(WFR+8*st+4*ct+2*q,2)}, v{34+ct+2*(sl>>3)} offset:{8192*(sl&7)+1024*q}" for ct in range(2) for q in range(2)]
    for s in range(DD): hload(s)
    for l in wreads(0): E(l)
    for s in range(28):
        st = s & 1
        n = younger({("h", s), ("w", s+1)})
        E(f"s_waitcnt vmcnt({n}) lgkmcnt(0)")
        if s == 22 + DD:
            assert n <= younger({("w", 35)})
            lds_post(WL)
        R = wreads(s+1) if s < 27 else [f"ds_read_b64 v[22:23], v25 offset:{AD-4}", f"ds_read_b32 v24, v25 offset:{WL}"]
        for a in range(2):
            for ct in range(2):
                d = ACC + 32*a + 16*ct
                if not (XP & 64): mfma(d, WFR+8*st+4*ct, HB+8*(s % NH)+4*a, None if s == 0 else d)
                if R: E(R.pop(0))
                if a == 0 and ct == 1 and s + DD < 28: hload(s + DD)
        if s == 14:
            E("s_mul_i32 s16, s8, 100352"); E("s_add_u32 s16, s16, s15")
        if s < 22:
            srd_ = WD if s < 14 else WO
            E(f"s_add_u32 m0, s12, {8192*(s % 14)}"); E("s_nop 0")
            E(f"buffer_load_dwordx4 v32, {srd_}, s16 offen lds"); E(f"buffer_load_dwordx4 v33, {srd_}, s16 offen offset:1024 lds")
            E(f"s_add_u32 s16, s16, {14336 if (s < 14 or s % 2 == 0) else 10752}")
            ops.extend([("w", s+14)]*2)
    if XP & 8: L("L_xp8")
    stamp(5)
    OF = 96
    def wo_reg(e): return (64 if (e >> 2) & 1 == 0 else 160) + 8*(e & 3)
    def oloads(g0):
        for g in range(g0, 4):
            for n in range(4): E(f"buffer_load_dwordx4 {v(OF+16*g+4*n,4)}, v45, {WS}, s{52+g} offen offset:{1024*n} sc1")
    def woread(e):
        hh, a = e >> 1, e & 1
        off = (hh >> 2)*2048 + (2*(hh & 3) + a)*8192
        return [f"ds_read_b64_tr_b16 {v(wo_reg(e)+4*ct+2*q,2)}, v{38+ct} offset:{off+1024*q}" for ct in (1, 0) for q in range(2)]
    E("s_setprio 2")
    for g in range(4): E(f"s_mov_b32 s{52+g}, {4096*g}")
    E("s_waitcnt lgkmcnt(0)")
    E("v_readfirstlane_b32 s67, v23"); E("v_readfirstlane_b32 s63, v24"); E("v_sub_f32 v9, 1.0, v9")
    E("s_cmp_lt_u32 s67, 4"); E("s_cbranch_scc1 L_ge_ne")
    oloads(0)
    L("L_ge_ne")
    E("s_cmp_ge_u32 s63, 4"); E("s_cbranch_scc1 L_ge_wl_x")
    lds_spin("L_ge_wl", WL, 4, 25, 24)
    for q in range(8): E(f"ds_write_b128 v47, {v(ACC+32+4*q,4)} offset:{8192*(q>>1)+1024*(q&1)}")
    lds_post(XC)
    for e in range(8):
        for l in woread(e): E(l)
    for r in range(32): E(f"v_mul_f32 v{ACC+r}, v9, v{ACC+r}")
    E("v_xor_b32 v46, 4096, v48")
    E("s_mul_i32 s66, s11, 28672"); E("s_add_u32 s66, s66, s15"); E("s_lshl_b32 s71, s10, 6"); E("s_add_u32 s66, s66, s71")
    E("s_cmp_ge_u32 s67, 4"); E("s_cbranch_scc1 L_ge_ld")
    if not (XP & 16): lds_spin("L_ge_ad", AD, 4, 25, 24, 1)
    if opt("osleep", 0): E(f"s_sleep {opt('osleep', 0)}")
    oloads(0)
    L("L_ge_ld")
    lds_spin("L_gx", XC, 4, 25, 24)
    for q in range(4): E(f"ds_read_b128 {v(ACC+32+4*q,4)}, v48 offset:{8192*(q>>1)+1024*(q&1)}")
    for q in range(4, 8): E(f"ds_read_b128 {v(ACC+32+4*q,4)}, v46 offset:{8192*(q>>1)+1024*(q&1)}")
    E("s_waitcnt lgkmcnt(0)")
    for r in range(16): E(f"v_add_f32 v{ACC+32+r}, v{ACC+32+r}, v{ACC+48+r}")
    for r in range(16): E(f"v_fmac_f32 v{ACC+r}, v9, v{ACC+32+r}")
    E(f"s_mov_b32 s62, {0 if XP & 16 else SPIN}")
    for g in range(4):
        L(f"L_ge_c{g}")
        E(f"s_waitcnt vmcnt({12-4*g})")
        E(f"v_max3_u32 v17, v{OF+16*g}, v{OF+16*g+1}, v{OF+16*g+2}"); E(f"v_max3_u32 v18, v{OF+16*g+3}, v{OF+16*g+4}, v{OF+16*g+5}")
        E(f"v_max3_u32 v17, v17, v{OF+16*g+6}, v{OF+16*g+7}"); E(f"v_max3_u32 v18, v18, v{OF+16*g+8}, v{OF+16*g+9}")
        E(f"v_max3_u32 v17, v17, v{OF+16*g+10}, v{OF+16*g+11}"); E(f"v_max3_u32 v18, v18, v{OF+16*g+12}, v{OF+16*g+13}")
        E(f"v_max3_u32 v17, v17, v{OF+16*g+14}, v{OF+16*g+15}")
        E("v_max_u32 v17, v17, v18")
        E("v_cmp_eq_u32 vcc, -1, v17"); E(f"s_cbranch_vccz L_ge_k{g}")
        E("s_cmp_eq_u32 s62, 0"); E(f"s_cbranch_scc1 L_ge_k{g}")
        E("s_sub_u32 s62, s62, 1")
        oloads(g)
        E(f"s_branch L_ge_c{g}")
        L(f"L_ge_k{g}")
        if g >= 2: E(f"s_waitcnt lgkmcnt({0 if g == 3 else 15})")
        for e in range(4*g, 4*g+4):
            mfma(ACC+16, wo_reg(e)+4, OF+4*e, ACC+16)
            if g < 2:
                for l in woread(e+8)[0:2]: E(l)
        if g < 2:
            for e in range(4*g, 4*g+4):
                mfma(ACC, wo_reg(e), OF+4*e, ACC)
                for l in woread(e+8)[2:4]: E(l)
    stamp(6)
    for e in range(8, 16):
        mfma(ACC, wo_reg(e), OF+4*e, ACC)
        if e == 8: nop(6)
        if e == 9:
            nop(4)
            for q in range(4): E(f"ds_write_b128 v47, {v(ACC+16+4*q,4)} offset:{8192*(4+(q>>1))+1024*(q&1)}")
        if e == 12:
            E("s_waitcnt lgkmcnt(0)"); E("s_barrier")
            for q in range(4): E(f"ds_read_b128 {v(ACC+16+4*q,4)}, v49 offset:{8192*(4+(q>>1))+1024*(q&1)}")
    nop(11)
    for p in range(2):
        E(f"s_waitcnt lgkmcnt({2-2*p})")
        for r in range(8*p, 8*p+8): E(f"v_add_f32 v{ACC+r}, v{ACC+r}, v{ACC+16+r}")
        for r in range(4*p, 4*p+4): E(f"v_cvt_pk_bf16_f32 v{56+r}, v{ACC+2*r}, v{ACC+2*r+1}")
        nop(1)
        E(f"v_permlane32_swap_b32 v{56+4*p}, v{58+4*p}"); E(f"v_permlane32_swap_b32 v{57+4*p}, v{59+4*p}")
        E(f"buffer_store_dwordx4 {v(56+4*p,4)}, v50, {OUT}, s66 offen offset:{32*p}" + ["", " sc1", " nt", " sc0 sc1"][opt("ost", 0)])
    stamp(7)
    L("L_gend")
    stamp_flush("g")
    L("L_end")
    E("s_endpgm")

loops = []
entry()
a_ffn()
a_kv()
attention()
g_entry()
g_ffn()
g_kv()
g_down()

errs = hazard.check(out, "main")
for k, b in enumerate(loops): errs += hazard.check(b + b, f"loop{k}")
for e in sorted(set(errs)): print("HAZARD", e, file=sys.stderr)

hdr = open("gated_mix__grouped_kv_mqa__glu_gated_bilinear__prompt.s.ref").read().split("; Override")[0]
print(hdr, end="")
print(f"; @launch grid=(256,1,1) block=(512,1,1) lds={LDS_SIZE}")
print('.amdgcn_target "amdgcn-amd-amdhsa--gfx950"')
print(".text"); print(f".globl {NAME}"); print(".p2align 8"); print(f".type {NAME},@function"); print(f"{NAME}:")
print("\n".join(l for l in out if l is not None))
print('.section .rodata,"a"'); print(".p2align 6"); print(f".amdhsa_kernel {NAME}")
print("  .amdhsa_next_free_vgpr 256\n  .amdhsa_next_free_sgpr 102\n  .amdhsa_accum_offset 256\n  .amdhsa_group_segment_fixed_size 0\n  .amdhsa_kernarg_size 104")
print("  .amdhsa_user_sgpr_count 2\n  .amdhsa_user_sgpr_kernarg_segment_ptr 1\n  .amdhsa_system_sgpr_workgroup_id_x 1\n.end_amdhsa_kernel")
```

```python
import sys, math, struct
import hazard

NAME = "gated_mix__grouped_kv_mqa__glu_gated_bilinear__prompt_kernel"
STAMPS = "--stamps" in sys.argv
def opt(name, default):
    for a in sys.argv:
        if a.startswith(f"--{name}="): return int(a.split("=")[1])
    return default
GROUPS = [int(c) for c in str(opt("groups", 2221))]
XP = opt("xp", 0)
PRE = opt("pre", 2)
EWS = [int(c) for c in str(opt("ews", 12)).replace("9", "0")]
MAP = opt("map", 3)
XROT = opt("xrot", 0)
DD = opt("D", 3); SPREAD = opt("spread", 0); YNOP = opt("ynop", 0)
CLK = "s_memrealtime" if "--rt" in sys.argv else "s_memtime"

WS_KV = 0x000000
WS_G = 0x040000
WS_HF = 0x048000
WS_O = 0x080000
WS_H = 0x300000
WS_END = 0xA00000
WS_ST = 0xA00000
LDS_SIZE = 163840
F_STAGE = 53248; F_NST = 3; F_G = 16384; F_U = 32768; F_Q = 49152
K_W = 122880; K_GW = 151552
L_CNT = 163840 - 48
QC, GC, KC, RC, XC, QD, AD, WL = 4, 8, 12, 20, 24, 28, 36, 40
L_QX = 98304
L_RED = 114688
SPIN = 1 << 17

def f32bits(x): return struct.unpack("<I", struct.pack("<f", x))[0]
QSCALE = f32bits(28 ** -0.5 * math.log2(math.e))
LOG2E = f32bits(math.log2(math.e))

out = []
def E(s): out.append("    " + s)
def L(s): out.append(s + ":")
def C(s): out.append("    ; " + s)
def v(a, n=1): return f"v{a}" if n == 1 else f"v[{a}:{a+n-1}]"
def mfma(d, a, b, c=None):
    E(f"v_mfma_f32_32x32x16_bf16 {v(d,16)}, {v(a,4)}, {v(b,4)}, " + ("0" if c is None else v(c,16)))
def add2(d, a, b):
    E(f"v_add_f32 v{d}, v{a}, v{b}"); E(f"v_add_f32 v{d+1}, v{a+1}, v{b+1}")
def nop(n):
    while n > 0:
        k = min(n, 16); E(f"s_nop {k-1}"); n -= k
nst = [0]
def stamp(n):
    if STAMPS and "--lite" not in sys.argv:
        E(f"{CLK} s[{72+2*n}:{73+2*n}]"); E("s_waitcnt lgkmcnt(0)")
def stamp_flush(tag):
    if STAMPS:
        E("s_memrealtime s[92:93]"); E("s_waitcnt lgkmcnt(0)")
        E("s_lshl_b32 s90, s2, 3"); E("s_add_u32 s90, s90, s44"); E("s_lshl_b32 s90, s90, 6"); E(f"s_add_u32 s90, s90, {WS_ST}")
        for q in range(2):
            for e in range(4): E(f"v_mov_b32 v{4+e}, s{72+2*(4*q+e)}")
            E(f"buffer_store_dwordx4 v[4:7], off, s[28:31], s90 offset:{16*q}"); nop(2)
        E("v_mov_b32 v4, s92"); E("v_mov_b32 v5, s88"); E("v_mov_b32 v6, s89"); E("v_mov_b32 v7, s94")
        E("buffer_store_dwordx4 v[4:7], off, s[28:31], s90 offset:32")
        E("s_waitcnt vmcnt(0)")

X, WQ, WG, WU, WD, WO, WS, OUT, DBG, KVW = "s[4:7]", "s[8:11]", "s[12:15]", "s[16:19]", "s[20:23]", "s[24:27]", "s[28:31]", "s[32:35]", "s[36:39]", "s[40:43]"

def srd(base, size):
    E(f"s_mov_b32 s{base+2}, {size}"); E(f"s_mov_b32 s{base+3}, 0x20000")
WS_SIZE = WS_END + (0x20000 if STAMPS else 0)

def entry():
    E("s_cmp_ge_u32 s2, 256"); E("s_cbranch_scc1 L_end")
    E("s_load_dwordx2 s[4:5], s[0:1], 0")
    E("s_load_dwordx2 s[28:29], s[0:1], 96")
    E("s_load_dwordx2 s[36:37], s[0:1], 88")
    if STAMPS:
        E("s_memrealtime s[88:89]"); E("s_getreg_b32 s94, hwreg(HW_REG_HW_ID)"); E(f"{CLK} s[72:73]")
    E("v_lshrrev_b32 v1, 6, v0"); E("v_and_b32 v0, 63, v0")
    E("v_readfirstlane_b32 s44, v1")
    E("s_and_b32 s68, s2, 7"); E("s_lshr_b32 s69, s2, 3")
    if opt("cpf", 1):
        E("s_getpc_b64 s[52:53]"); L("L_pc")
        E("s_lshl_b32 s70, s69, 3"); E("s_add_u32 s70, s70, s44"); E("s_lshl_b32 s70, s70, 7"); E(f"s_min_u32 s70, s70, L_end-L_pc")
        E("v_mov_b32 v1, s70")
        E("s_mov_b64 exec, 1"); E("global_load_dword v63, v1, s[52:53]"); E("s_mov_b64 exec, -1")
    if MAP == 3:
        E("s_and_b32 s46, s68, 3"); E("s_lshl_b32 s46, s46, 2"); E("s_and_b32 s70, s69, 3"); E("s_add_u32 s46, s46, s70")
        E("s_lshr_b32 s49, s69, 2"); E("s_lshr_b32 s70, s68, 2"); E("s_mul_i32 s47, s70, 7"); E("s_add_u32 s47, s47, s49"); E("s_sub_u32 s47, s47, 1")
        E("s_add_u32 s71, s70, 14"); E("s_cmp_eq_u32 s49, 0"); E("s_cselect_b32 s47, s71, s47")
        E("s_cmp_eq_u32 s70, 0"); E(f"s_mov_b32 s50, {0x76543102 if opt('kvh', 1) else 0x76543210:#x}"); E(f"s_cselect_b32 s50, s50, {0xfecba98d if opt('kvh', 1) else 0xfedcba98:#x}")
        E("s_and_b32 s70, s69, 28"); E("s_lshr_b32 s50, s50, s70"); E("s_and_b32 s50, s50, 15")
    elif MAP == 4:
        E("s_lshr_b32 s49, s69, 2"); E("s_lshr_b32 s71, s68, 1")
        E("s_xor_b32 s46, s49, s71"); E("s_not_b32 s46, s46"); E("s_and_b32 s46, s46, 1"); E("s_lshl_b32 s46, s46, 2")
        E("s_and_b32 s70, s69, 3"); E("s_add_u32 s46, s46, s70"); E("s_and_b32 s70, s68, 1"); E("s_lshl_b32 s70, s70, 3"); E("s_add_u32 s46, s46, s70")
        E("s_lshr_b32 s70, s69, 3"); E("s_lshl_b32 s50, s71, 2"); E("s_add_u32 s50, s50, s70")
        E("s_mul_i32 s47, s71, 3"); E("s_add_u32 s47, s47, s70"); E("s_sub_u32 s47, s47, 1")
        E("s_lshr_b32 s71, s71, 1"); E("s_cmp_eq_u32 s49, 0"); E("s_cselect_b32 s51, 14, 12"); E("s_add_u32 s71, s71, s51")
        E("s_cmp_eq_u32 s70, 0"); E("s_cselect_b32 s47, s71, s47")
    else:
        E("s_and_b32 s46, s68, 1"); E("s_lshl_b32 s46, s46, 3"); E("s_and_b32 s70, s69, 7"); E("s_add_u32 s46, s46, s70")
        E("s_lshr_b32 s47, s68, 1"); E("s_lshl_b32 s47, s47, 2"); E("s_lshr_b32 s70, s69, 3"); E("s_add_u32 s47, s47, s70")
        E("s_xor_b32 s47, s47, 15")
        E("s_mov_b32 s50, s47")
        E("s_lshr_b32 s49, s69, 2")
    E("s_and_b32 s45, s44, 3")
    srd(4, 1835008); srd(28, WS_SIZE); srd(36, 256)
    E("v_lshlrev_b32 v29, 4, v0")
    E("v_lshrrev_b32 v31, 5, v0")
    E("s_cmp_ge_u32 s44, 4"); E("s_cbranch_scc1 L_g")
    E("s_load_dwordx2 s[8:9], s[0:1], 8")
    srd(8, 401408)
    E("s_mov_b32 s15, 0x20000"); E("s_mov_b32 s19, 0x20000")
    E("s_cmp_ge_u32 s47, 14"); E("s_cbranch_scc1 L_ak")

def lane_pieces():
    E("v_and_b32 v24, 31, v0")
    E("v_bfe_u32 v25, v0, 1, 3")
    E("v_xor_b32 v25, v25, v31"); E("v_lshlrev_b32 v25, 4, v25")
    E("v_lshl_add_u32 v30, v24, 7, v25")
    E("v_bfe_u32 v28, v0, 2, 2")
    E("v_bfe_u32 v24, v0, 4, 1"); E("v_and_b32 v25, 3, v0"); E("v_lshlrev_b32 v25, 3, v25"); E("v_lshl_add_u32 v27, v24, 5, v25")

def g_entry():
    L("L_g")
    E("s_load_dwordx2 s[20:21], s[0:1], 64")
    E("s_load_dwordx2 s[24:25], s[0:1], 32")
    E("s_load_dwordx2 s[32:33], s[0:1], 80")
    srd(20, 1605632); srd(24, 401408); srd(32, 1835008)
    E("s_lshl_b32 s48, s68, 2"); E("s_and_b32 s70, s69, 3"); E("s_add_u32 s48, s48, s70")
    E("s_xor_b32 s49, s49, 7")
    E("s_cmp_ge_u32 s47, 14"); E("s_cbranch_scc1 L_gk")

def x_dma_addrs(rg="s45"):
    E("v_lshrrev_b32 v24, 4, v0")
    E("v_and_b32 v25, 7, v0"); E("v_xor_b32 v25, v25, v24"); E("v_lshlrev_b32 v25, 4, v25")
    E("v_lshrrev_b32 v26, 3, v0"); E("v_mul_u32_u24 v26, 896, v26")
    E("v_add_u32 v1, v26, v25")
    E("v_xor_b32 v25, 64, v25"); E("v_add_u32 v2, v26, v25"); E("v_add_u32 v2, 6144, v2")
    E("v_add_u32 v3, 12288, v1"); E("v_add_u32 v4, 12288, v2")
    E("s_lshl_b32 s52, s46, 2"); E(f"s_add_u32 s52, s52, {rg}"); E("s_mul_i32 s52, s52, 28672")
    E("s_lshl_b32 s55, s45, 12")

def prefill():
    E("s_lshl_b32 s65, s46, 2"); E("s_add_u32 s65, s65, s45"); E("s_lshl_b32 s65, s65, 4"); E("s_add_u32 s65, s65, s50"); E("s_lshl_b32 s65, s65, 11"); E(f"s_add_u32 s65, s65, {WS_O}")
    for r in range(4): E(f"v_mov_b32 v{56+r}, -1")
    for n in range(2): E(f"buffer_store_dwordx4 v[56:59], v29, {WS}, s65 offen offset:{1024*n} sc1")

def go_poll(label, sleep):
    E(f"s_mov_b32 s62, {SPIN}")
    L(label)
    E(f"buffer_load_dword v24, off, {DBG}, 0 offset:128 sc1"); E("s_waitcnt vmcnt(0)")
    E("v_readfirstlane_b32 s63, v24"); E("s_sub_u32 s62, s62, 1"); E("s_cmp_eq_u32 s62, 0"); E(f"s_cbranch_scc1 {label}_x")
    E("s_cmp_lg_u32 s63, 0"); E(f"s_cbranch_scc1 {label}_x"); E(f"s_sleep {sleep}"); E(f"s_branch {label}")
    L(label + "_x")

ASET = (14, 19, 88)
QACC, XF, WF = 32, 48, 64
PREG = 80
QS = 96; OA = 128; KB = 192; VB = 224
S0, S1 = 48, 64
VG = 93
def a_addr(idx, off):
    return ASET[off >> 16] + idx, off & 0xffff

def q_setup(rg="s45"):
    E("v_lshrrev_b32 v25, 2, v0"); E("v_mul_u32_u24 v25, 896, v25"); E("v_and_b32 v26, 3, v0"); E("v_lshl_add_u32 v13, v26, 4, v25")
    E("s_mul_i32 s57, s50, 56"); E("s_and_b32 s54, s57, 0xfffffff0"); E(f"s_mul_i32 s70, {rg}, 14336"); E("s_add_u32 s54, s54, s70")
    E("s_and_b32 s57, s57, 8")
    E(f"s_lshl_b32 s56, {rg}, 10")

def a_setup2(sets):
    lane_pieces()
    E("v_add_u32 v14, s55, v30")
    for s in range(1, 4): E(f"v_xor_b32 v{14+s}, {32*s}, v14")
    E("v_lshl_add_u32 v25, v31, 3, v28"); E("v_lshl_add_u32 v18, v25, 6, v27"); E("v_add_u32 v18, s57, v18")
    if sets:
        for k in range(5):
            E(f"v_add_u32 v{19+k}, 0x10000, v{14+k}"); E(f"v_add_u32 v{88+k}, 0x20000, v{14+k}")
    E(f"v_mov_b32 v24, {L_CNT}")
    E("v_mov_b32 v94, 0"); E("v_mov_b32 v95, 0")
    for o in (0, 8, 16, 24, 32, 40): E(f"ds_write_b64 v24, v[94:95] offset:{o}")
    E("s_lshl_b32 s70, s45, 16"); E("s_add_u32 s40, s28, s70"); E("s_addc_u32 s41, s29, 0")

def a_inits():
    R = [f"v_mov_b32 v{r}, 0" for r in list(range(OA, OA+64)) + list(range(PREG, PREG+8)) + list(range(VB+24, VB+32))]
    R += ["v_and_b32 v94, 31, v0", "v_lshlrev_b32 v94, 2, v94"]
    return R

def kbsel(pos):
    if XROT: return f"s_bfe_u32 s64, s58, {0x40000 + 4*pos:#x}"
    return f"s_xor_b32 s64, s58, {pos}" if pos < 6 else "s_mov_b32 s64, 6"
def a_dma_group(a):
    pos = int(a[1]); st = ((pos + 2) % F_NST) * F_STAGE
    if a[0] == "X":
        return [kbsel(pos), f"s_add_u32 m0, s59, {st}", "s_lshl_b32 s65, s64, 7", "s_add_u32 s65, s65, s52"] + [f"buffer_load_dwordx4 v{1+n}, {X}, s65 offen offset:{1024*n} lds" for n in range(4)]
    if a[0] == "h":
        hf = int(a[2])
        return [kbsel(pos), f"s_add_u32 m0, s51, {st+F_G+8192*hf}", "s_mul_i32 s65, s64, 229376", "s_add_u32 s65, s65, s53"] + \
               ([f"s_add_u32 s65, s65, 114688"] if hf else []) + \
               [f"buffer_load_dwordx4 v{5+n}, {WG}, s65 offen offset:{1024*n} lds" for n in range(2)] + \
               [f"s_add_u32 m0, s51, {st+F_U+8192*hf}", "s_nop 0"] + [f"buffer_load_dwordx4 v{7+n}, {WU}, s65 offen offset:{1024*n} lds" for n in range(2)]
    return [kbsel(pos), f"s_add_u32 m0, s56, {st+F_Q}", "s_mul_i32 s65, s64, 57344", "s_add_u32 s65, s65, s54", f"buffer_load_dwordx4 v13, {WQ}, s65 offen lds"]

def lds_post(off, val=26):
    E("s_mov_b64 exec, 1"); E(f"ds_add_u32 v25, v{val} offset:{off}"); E("s_mov_b64 exec, -1")

def kv_prologue_loads(nt=3):
    E("s_lshl_b32 s70, s69, 2"); E("s_add_u32 s70, s70, s45"); E("s_lshl_b32 s70, s70, 11"); E("v_lshlrev_b32 v24, 7, v0")
    E("s_mov_b32 exec_lo, 0xffff"); E("s_mov_b32 exec_hi, 0")
    E(f"buffer_load_dword v95, v24, {WS}, s70 offen sc1")
    E("s_mov_b64 exec, -1")
    E("s_lshl_b32 s70, s46, 2"); E("s_add_u32 s70, s70, s45"); E("s_lshl_b32 s70, s70, 7"); E(f"s_add_u32 s70, s70, {WS_G}")
    E(f"buffer_load_dword v{VG}, v94, {WS}, s70 offen sc1")
    E("v_add_u32 v30, 4096, v29")
    for t in range(nt):
        tile_loads(t)

def tile_lines(u):
    b = -4096 if u % 2 == 0 else 0
    R = [f"global_load_dwordx4 {v(KB+8*u,4)}, v30, s[40:41] offset:{b} sc1", f"global_load_dwordx4 {v(KB+8*u+4,4)}, v30, s[40:41] offset:{b+1024} sc1",
         f"global_load_dwordx4 {v(VB+8*u,4)}, v30, s[40:41] offset:{b+2048} sc1", f"global_load_dwordx4 {v(VB+8*u+4,4)}, v30, s[40:41] offset:{b+3072} sc1"]
    if u % 2 == 1: R.append("v_add_u32 v30, 8192, v30")
    return R
def tile_loads(u):
    for l in tile_lines(u): E(l)

HALF = opt("half", 1)
def a_ffn():
    L("L_af")
    E("s_load_dwordx2 s[12:13], s[0:1], 48"); E("s_load_dwordx2 s[16:17], s[0:1], 56")
    E("s_mov_b32 s14, 1605632"); E("s_mov_b32 s18, 1605632")
    if MAP == 3:
        E("s_xor_b32 s58, s69, s49"); E("s_and_b32 s58, s58, 1")
        E("s_and_b32 s60, s69, 2"); E("s_add_u32 s60, s60, s45"); E("s_and_b32 s60, s60, 3")
        E("s_lshr_b32 s70, s69, 3"); E("s_add_u32 s61, s45, s70"); E("s_and_b32 s61, s61, 3")
    else:
        E("s_lshr_b32 s70, s69, 3"); E("s_add_u32 s58, s69, s70"); E("s_and_b32 s58, s58, 1")
        E("s_lshr_b32 s60, s69, 1"); E("s_add_u32 s60, s60, s45"); E("s_and_b32 s60, s60, 3")
        E("s_and_b32 s70, s70, 2"); E("s_add_u32 s61, s45, s70"); E("s_and_b32 s61, s61, 3")
    if XROT == 9:
        E("s_and_b32 s71, s69, 3"); E("s_add_u32 s71, s71, s49"); E("s_and_b32 s71, s71, 7"); E("s_lshl_b32 s71, s71, 2")
        E("s_mov_b32 s58, 0")
        b = 0
        for n in GROUPS:
            if n == 1:
                E(f"s_or_b32 s58, s58, {b << (4*b):#x}")
            else:
                tab = sum(((u % n)) << (4*u) for u in range(8))
                seq = sum((b + (k % n)) << (4*k) for k in range(2*n-1))
                E(f"s_lshr_b32 s64, {tab:#x}, s71"); E("s_and_b32 s64, s64, 15"); E("s_lshl_b32 s64, s64, 2")
                E(f"s_mov_b32 s66, {seq & 0xffffffff:#x}"); E(f"s_mov_b32 s67, {seq >> 32:#x}"); E("s_lshr_b64 s[66:67], s[66:67], s64")
                E(f"s_and_b32 s66, s66, {(1 << (4*n)) - 1:#x}"); E(f"s_lshl_b32 s66, s66, {4*b}"); E("s_or_b32 s58, s58, s66")
            b += n
    elif XROT:
        E("s_cmp_eq_u32 s58, 0")
        E("s_mov_b32 s66, 0x06543210"); E("s_cselect_b32 s66, s66, 0x16452301"); E("s_mov_b32 s67, 0x654321"); E("s_cselect_b32 s67, s67, 0x645230")
        if XROT == 1:
            E("s_lshr_b32 s70, s68, 1"); E("s_and_b32 s70, s70, 2"); E("s_add_u32 s70, s70, s68"); E("s_and_b32 s70, s70, 3"); E("s_lshl_b32 s70, s70, 3")
        elif XROT == 2:
            E("s_and_b32 s70, s69, 24")
        elif XROT == 4:
            E("s_and_b32 s70, s47, 1"); E("s_mul_i32 s70, s70, 24")
        else:
            E("s_lshl_b32 s70, s68, 3"); E("s_add_u32 s70, s70, s69"); E("s_and_b32 s70, s70, 24")
        E("s_lshr_b64 s[66:67], s[66:67], s70"); E("s_mov_b32 s58, s66")
    E("s_lshl_b32 s59, s61, 12"); E("s_lshl_b32 s51, s60, 11")
    x_dma_addrs("s61")
    E("v_and_b32 v25, 15, v0"); E("v_lshlrev_b32 v26, 1, v24"); E("v_xor_b32 v25, v25, v26"); E("v_lshlrev_b32 v25, 4, v25")
    E("v_mul_u32_u24 v26, 3584, v24"); E("v_add_u32 v5, v26, v25"); E("v_xor_b32 v7, 128, v5")
    E("v_add_u32 v6, 13312, v5"); E("v_add_u32 v8, 13312, v7")
    E("s_mul_i32 s53, s60, 28672"); E("s_lshl_b32 s70, s47, 8"); E("s_add_u32 s53, s53, s70")
    E("s_waitcnt lgkmcnt(0)")
    stamp(7)
    ops = []
    def after(*tags): return len(ops) - 1 - max(k for k, t in enumerate(ops) if t in tags)
    inits = a_inits()
    state = {"m": 0, "first": True}
    def run(script):
        for a in script.split():
            if a[0] in "XhQ":
                for l in a_dma_group(a):
                    if (XP & 1) and a[0] == "Q" and "buffer_load" in l: l = l.replace("v13", "v29").replace("s65", "0")
                    if (XP & 4) and int(a[1]) >= 2 and "buffer_load" in l: l = "s_nop 0"
                    E(l)
                ops.extend([a] * (1 if a[0] == "Q" else 4))
            elif a[0] == "r":
                p = int(a[1]); st = ((p + 2) % F_NST) * F_STAGE
                for s in range(4):
                    r, o = a_addr(s, st); E(f"ds_read_b128 {v(XF+4*s,4)}, v{r} offset:{o}")
                    for q in range(2):
                        r, o = a_addr(4, st + F_Q + s*1024 + q*256); E(f"ds_read_b64_tr_b16 {v(WF+4*s+2*q,2)}, v{r} offset:{o}")
                state["m"] = 0
            elif a == "m":
                s = state["m"]; state["m"] += 1
                E(f"s_waitcnt lgkmcnt({9-3*s})")
                mfma(QACC, WF+4*s, XF+4*s, None if state["first"] else QACC); state["first"] = False
            elif a == "i":
                for _ in range(min(28, len(inits))): E(inits.pop(0))
            elif a[0] == "B":
                E(f"s_waitcnt vmcnt({after(*a[2:].split(','))})"); E("s_barrier")
            elif a == "p":
                E(f"buffer_load_dword v24, off, {DBG}, 0 offset:{0 if opt('kvc', 0) else 128} sc1"); ops.append("p")
    run("X0 h00")
    q_setup("s60")
    E("s_barrier")
    run("h01 Q0")
    a_setup2(True)
    E("s_waitcnt lgkmcnt(0)")
    if HALF == 0:
        run("X1 h10 B:Q0"); stamp(1)
        run("r0 h11 m Q1 m X2 m h20 m B:Q1")
        run("h21 r1 Q2 m X3 m h30 m h31 m B:Q2")
        run("Q3 r2 X4 m h40 m h41 m Q4 m i B:Q3")
        run("r3 X5 m h50 m h51 m Q5 m i B:Q4")
    elif HALF == 1:
        run("X1 B:h00"); stamp(1)
        run("h10 B:Q0")
        run("r0 h11 m Q1 m X2 m m B:Q1")
        run("h20 r1 h21 m Q2 m X3 m h30 m B:Q2")
        run("h31 r2 Q3 m X4 m h40 m h41 m i B:Q3")
        run("Q4 r3 X5 m h50 m h51 m Q5 m i B:Q4")
    else:
        run("X1 B:h00"); stamp(1)
        run("h10 B:Q0")
        run("r0 h11 m Q1 m m m B:h10")
        run("X2 h20 B:Q1")
        run("r1 h21 m Q2 m X3 m m B:Q2")
        run("h30 r2 h31 m Q3 m X4 m h40 m i B:Q3")
        run("h41 Q4 r3 X5 m h50 m h51 m Q5 m i B:Q4")
    run("r4 X6 m h60 m h61 m Q6 m i B:Q5")
    assert not inits
    run("p r5 m m m m" if opt("pp", 0) == 0 else "r5 m m m m p")
    E("s_waitcnt vmcnt(0)")
    E("v_readfirstlane_b32 s63, v24"); E("s_mov_b32 s61, 0"); E(f"s_cmp_lt_u32 s63, {32 if opt('kvc', 0) else 1}"); E("s_cbranch_scc1 L_af_notyet")
    NT = opt("nt", 1)
    kv_prologue_loads(NT); E("s_mov_b32 s61, 1")
    L("L_af_notyet")
    if STAMPS: E("s_mov_b32 s94, s61")
    E("s_barrier")
    stamp(7)
    E("s_setprio 3")
    E("s_cmp_eq_u32 s61, 1"); E("s_cbranch_scc1 L_af_rdy")
    go_poll("L_af_poll", 3)
    kv_prologue_loads(NT)
    L("L_af_rdy")
    run("r6")
    for t in range(NT, 3):
        if t == 2: run("m m")
        tile_loads(t)
    run("m m" if NT < 3 else "m m m m")
    E(f"s_mov_b32 s58, {L_QX}")
    E("s_branch L_attn")

def a_kv():
    L("L_ak")
    E("s_load_dwordx2 s[16:17], s[0:1], 72")
    E("s_cmp_eq_u32 s47, 14"); E("s_cbranch_scc1 L_ak_k")
    E("s_load_dwordx2 s[12:13], s[0:1], 24"); E("s_branch L_ak_j")
    L("L_ak_k")
    E("s_load_dwordx2 s[12:13], s[0:1], 16")
    L("L_ak_j")
    E("s_mov_b32 s14, 25088"); E("s_mov_b32 s18, 896")
    E("s_lshl_b32 s55, s45, 12")
    q_setup()
    E("s_waitcnt lgkmcnt(0)")
    stamp(7)
    E(f"s_add_u32 s53, s56, {K_W}"); E("s_mov_b32 s70, s56")
    for n in range(7):
        E("s_mov_b32 m0, s53"); E("s_add_u32 s53, s53, 4096")
        E(f"buffer_load_dwordx4 v29, {WG}, s70 offen lds"); E("s_add_u32 s70, s70, 4096")
    E(f"s_mov_b32 m0, {K_GW}"); E("s_nop 0"); E(f"buffer_load_dwordx4 v29, {WU}, 0 offen lds")
    E("s_lshl_b32 s70, s47, 2"); E("s_add_u32 s70, s70, s45"); E("s_cmp_lg_u32 s70, 56"); E("s_cbranch_scc1 L_ak_nz")
    E("v_lshlrev_b32 v41, 7, v0"); E("v_mov_b32 v42, 0"); E("s_lshl_b32 s70, s46, 11"); E(f"s_add_u32 s70, s70, {WS_HF}")
    E("s_mov_b32 exec_lo, 0xffff"); E("s_mov_b32 exec_hi, 0")
    E(f"buffer_store_dword v42, v41, {WS}, s70 offen sc1")
    E("s_mov_b64 exec, -1")
    L("L_ak_nz")
    a_setup2(True)
    E("v_add_u32 v23, 0x10000, v18")
    E("s_waitcnt vmcnt(0) lgkmcnt(0)")
    E("s_barrier")
    stamp(1)
    KQ = (114688, 118784, 152576, 156672, K_W, K_W + 4096, K_W + 8192)
    def qdma(n):
        E(f"s_add_u32 m0, s56, {KQ[n]}"); E("s_nop 0")
        E(f"buffer_load_dwordx4 v13, {WQ}, s54 offen lds"); E("s_add_u32 s54, s54, 57344")
    for l in a_inits(): E(l)
    for n in range(4): qdma(n)
    E("s_waitcnt vmcnt(0)")
    E("s_barrier")
    for n in range(4, 7): qdma(n)
    def qrd(n):
        p, s = n >> 2, n & 3
        if n == 16: E("s_waitcnt vmcnt(0)"); E("s_barrier")
        r, o = a_addr(s, 16384*p); E(f"ds_read_b128 {v(XF+4*s,4)}, v{r} offset:{o}")
        for q in range(2):
            r, o = a_addr(4, KQ[p] + s*1024 + q*256); E(f"ds_read_b64_tr_b16 {v(WF+4*s+2*q,2)}, v{r} offset:{o}")
    for n in range(3): qrd(n)
    for n in range(28):
        E(f"s_waitcnt lgkmcnt({3*min(2, 27-n)})")
        mfma(QACC, WF+4*(n & 3), XF+4*(n & 3), QACC if n else None)
        if n + 3 < 28: qrd(n + 3)
    go_poll("L_ak_poll", 4)
    kv_prologue_loads()
    E(f"s_mov_b32 s58, {K_W + 16384}")

def lds_spin(label, off, target, areg, treg, sleep=0):
    E(f"s_mov_b32 s62, {SPIN*8}")
    L(label)
    E(f"ds_read_b32 v{treg}, v{areg} offset:{off}"); E("s_waitcnt lgkmcnt(0)")
    E(f"v_readfirstlane_b32 s63, v{treg}"); E("s_sub_u32 s62, s62, 1"); E("s_cmp_eq_u32 s62, 0"); E(f"s_cbranch_scc1 {label}_x")
    if sleep:
        E(f"s_cmp_ge_u32 s63, {target}"); E(f"s_cbranch_scc1 {label}_x"); E(f"s_sleep {sleep}"); E(f"s_branch {label}")
    else:
        E(f"s_cmp_lt_u32 s63, {target}"); E(f"s_cbranch_scc1 {label}")
    L(label + "_x")

def owrites(s):
    R = []
    for q in range(4):
        if s == 2 and q == 3:
            R.append(f"ds_write_b32 v{1+s}, v{OA+16*s+12} offset:3072")
            R.append("s_mov_b32 exec_hi, 0")
        R.append(f"ds_write_b128 v{1+s}, {v(OA+16*s+4*q,4)} offset:{1024*q}")
    return R

def period(par, nxt, prv, Y0=(), Y1=(), Y2=()):
    Sc = (S0, S1)[par]; Sn = (S0, S1)[1-par]
    ex = [f"v_exp_f32 v{Sc+r}, v{Sc+r}" for r in range(16)]
    cv = [f"v_cvt_pk_bf16_f32 v{PREG+r}, v{Sc+2*r}, v{Sc+2*r+1}" for r in range(8)]
    def emit(ls):
        for l in ls:
            if l.endswith(":"): L(l[:-1])
            else: E(l)
    up, sp = prv
    if nxt: mfma(Sn, KB+8*nxt[0], QS+8*nxt[1])
    emit(ex[0:3])
    if nxt: mfma(Sn, KB+8*nxt[0]+4, QS+8*nxt[1]+4, Sn)
    emit(ex[3:6])
    mfma(OA+16*sp, VB+8*up, PREG, OA+16*sp)
    emit(ex[6:9])
    mfma(OA+16*sp, VB+8*up+4, PREG+4, OA+16*sp)
    emit(ex[9:12]); emit(Y0); emit(ex[12:15]); emit(Y1); emit(ex[15:16]); emit(cv); emit(Y2)

def attention():
    L("L_attn")
    stamp(2)
    if XP & 256:
        E(f"v_mov_b32 v25, {L_CNT}"); E("v_mov_b32 v26, 1")
        lds_post(QC); stamp(3); stamp(4); stamp_flush("a"); E("s_endpgm")
    E("s_setprio 3")
    C("Q epilogue -> slot 3")
    Q3 = QS + 24
    E(f"s_mov_b32 s64, {QSCALE}"); E("s_nop 0")
    E("v_cmp_eq_u32 vcc, 0, v31")
    E("s_lshl_b32 s66, s45, 11"); E("s_add_u32 s66, s66, s58"); E("v_add_u32 v24, s66, v29")
    E(f"v_mov_b32 v25, {L_CNT}"); E("v_mov_b32 v26, 1")
    nop(3)
    for r in range(16): E(f"v_mul_f32 v{QACC+r}, s64, v{QACC+r}")
    for r in range(8): E(f"v_cvt_pk_bf16_f32 v{Q3+r}, v{QACC+2*r}, v{QACC+2*r+1}")
    E(f"v_cndmask_b32 v{Q3+6}, 0, v{Q3+6}, vcc"); E(f"v_cndmask_b32 v{Q3+7}, 0, v{Q3+7}, vcc")
    E(f"ds_write_b128 v24, {v(Q3,4)}")
    E("s_waitcnt vmcnt(10)")
    mfma(S0, KB, Q3); mfma(S0, KB+4, Q3+4, S0)
    for s in range(3):
        E(f"s_add_u32 s65, s45, {1+s}"); E("s_and_b32 s65, s65, 3"); E("s_lshl_b32 s65, s65, 11"); E("s_add_u32 s65, s65, s58")
        E(f"v_add_u32 v{1+s}, s65, v29")
    E(f"v_max3_f32 v4, v{S0}, v{S0+1}, v{S0+2}"); E(f"v_max3_f32 v5, v{S0+3}, v{S0+4}, v{S0+5}")
    E(f"v_max3_f32 v4, v4, v{S0+6}, v{S0+7}"); E(f"v_max3_f32 v5, v5, v{S0+8}, v{S0+9}")
    E(f"v_max3_f32 v4, v4, v{S0+10}, v{S0+11}"); E(f"v_max3_f32 v5, v5, v{S0+12}, v{S0+13}")
    E(f"v_max3_f32 v4, v4, v{S0+14}, v{S0+15}")
    E("v_max_f32 v4, v4, v5")
    E("v_mov_b32 v5, v4"); nop(2)
    E("v_permlane32_swap_b32 v4, v5"); nop(1)
    E("v_max_f32 v4, v4, v5")
    E("v_cvt_pk_bf16_f32 v4, -v4, 0")
    E(f"v_cndmask_b32 v{Q3+6}, v4, v{Q3+6}, vcc")
    E(f"ds_write_b128 v24, {v(Q3+4,4)} offset:1024")
    E("s_mov_b64 exec, 1")
    E(f"ds_add_u32 v25, v26 offset:{QC}")
    E("s_mov_b64 exec, -1")
    lds_spin("L_qspin", QC, 4, 25, 5)
    for s in range(3):
        E(f"ds_read_b128 {v(QS+8*s,4)}, v{1+s}"); E(f"ds_read_b128 {v(QS+8*s+4,4)}, v{1+s} offset:1024")
    E("s_mov_b64 exec, 1")
    E(f"ds_add_u32 v25, v26 offset:{QD}")
    E("s_mov_b64 exec, -1")
    E("s_waitcnt lgkmcnt(5)")
    mfma(S0, KB, QS); mfma(S0, KB+4, QS+4, S0)
    for s in range(3):
        E(f"s_add_u32 s65, s45, {1+s}"); E("s_and_b32 s65, s65, 3"); E("s_mul_i32 s65, s65, 12288"); E(f"s_add_u32 s65, s65, {L_RED+4096*s}")
        E(f"v_add_u32 v{1+s}, s65, v29")
    E("s_mul_i32 s65, s45, 12288"); E(f"s_add_u32 s65, s65, {L_RED}"); E("v_add_u32 v4, s65, v29")
    E("s_lshl_b32 s65, s46, 2"); E("s_add_u32 s65, s65, s45"); E("s_lshl_b32 s65, s65, 4"); E("s_add_u32 s65, s65, s50"); E("s_lshl_b32 s65, s65, 11"); E(f"s_add_u32 s65, s65, {WS_O}")
    E(f"v_mov_b32 v7, {f32bits(2.0**100)}"); E(f"v_mov_b32 v8, {f32bits(2.0**-60)}"); E("v_mov_b32 v9, 0x7f800000")
    E("s_waitcnt vmcnt(8) lgkmcnt(0)")
    E(f"s_mov_b32 s59, {2 if XP & 32 else 3}"); E("v_mov_b32 v6, 0x100")
    E("s_setprio 1")
    stamp(3)
    out.append(".p2align 6")
    L("L_aloop")
    b0 = len(out)
    for u in range(4):
        for s in range(4):
            tau = 4*u + s
            Y0 = tile_lines((u+3) % 4) if s == 1 else []
            Y1 = ["s_waitcnt vmcnt(8)"] if s == 2 else []
            if tau == 15: Y0 = ["s_sub_u32 s59, s59, 1"]
            period(tau & 1, (((tau+1)//4) % 4, (tau+1) % 4), (((tau-1)//4) % 4, (tau-1) % 4), Y0, Y1)
    E("s_cbranch_scc0 L_aloop") if False else None
    E("s_cmp_lg_u32 s59, 0"); E("s_cbranch_scc1 L_aloop")
    loops.append(out[b0:])
    O3 = OA + 48
    SEQ = [(0,0),(0,1),(0,2),(1,0),(1,1),(2,0),(2,1),(3,0),(3,1),(1,2),(2,2),(3,2),(0,3),(1,3),(2,3),(3,3)]
    def post(val): return ["s_mov_b64 exec, 1", f"ds_add_u32 v25, v{val} offset:{RC}", "s_mov_b64 exec, -1"]
    def check(tag, bit):
        return ["s_waitcnt lgkmcnt(0)", "v_readfirstlane_b32 s63, v5", f"s_mov_b32 s62, {SPIN*8}", f"s_bitcmp1_b32 s63, {bit}", f"s_cbranch_scc1 L_rc{tag}_x",
                f"L_rc{tag}:", f"ds_read_b32 v5, v25 offset:{RC}", "s_waitcnt lgkmcnt(0)", "v_readfirstlane_b32 s63, v5", "s_sub_u32 s62, s62, 1",
                "s_cmp_eq_u32 s62, 0", f"s_cbranch_scc1 L_rc{tag}_x", f"s_bitcmp0_b32 s63, {bit}", f"s_cbranch_scc1 L_rc{tag}", f"L_rc{tag}_x:"]
    rdc = [f"ds_read_b32 v5, v25 offset:{RC}"]
    for k in range(16):
        Y0, Y1, Y2 = [], [], []
        if k == 0: Y0 = tile_lines(3)[:4]
        if k == 1: Y1 = ["s_waitcnt vmcnt(8)"]
        if k == 3: Y1 = ["s_waitcnt vmcnt(4)"]
        if k == 5: Y1 = ["s_waitcnt vmcnt(0)"]
        if k == 9: Y0 = owrites(0)
        if k == 10: Y0 = owrites(1) + post(26)
        if k == 11: Y2 = rdc
        if k == 12:
            Y0 = check("a", 2) + [f"ds_read_b128 {v(OA+4*q,4)}, v4 offset:{1024*q}" for q in range(8)]
            Y2 = ["s_waitcnt lgkmcnt(0)"] + [f"v_add_f32 v{O3+r}, v{O3+r}, v{OA+16*s+r}" for s in range(2) for r in range(16)]
        if k == 13: Y0 = owrites(2) + ["s_mov_b32 exec_lo, 1", f"ds_add_u32 v25, v6 offset:{RC}", "s_mov_b64 exec, -1"]
        if k == 15:
            Y0 = rdc
            Y2 = check("b", 10) + [f"ds_read_b128 {v(OA+4*q,4)}, v4 offset:{1024*(8+q)}" for q in range(4)]
        period(k & 1, SEQ[k+1] if k < 15 else None, SEQ[k-1] if k else (3, 3), Y0, Y1, Y2)
    stamp(4)
    E("s_setprio 3")
    mfma(O3, VB+24, PREG, O3); mfma(O3, VB+28, PREG+4, O3)
    E("v_cmp_eq_u32 vcc, 0, v31")
    E("s_waitcnt lgkmcnt(0)")
    stamp(5)
    nop(10)
    for r in range(16): E(f"v_add_f32 v{O3+r}, v{O3+r}, v{OA+r}")
    E(f"v_mov_b32 v4, v{O3+12}"); E(f"v_mov_b32 v5, v{O3+12}")
    for r in (13, 14, 15): E(f"v_cndmask_b32 v{O3+r}, 0, v{O3+r}, vcc")
    E("v_permlane32_swap_b32 v4, v5")
    E(f"v_add_f32 v10, v{O3}, v{O3+1}"); E(f"v_add_f32 v11, v{O3+2}, v{O3+3}")
    E("v_rcp_f32 v4, v5")
    for r in range(4, 16, 2): E(f"v_add_f32 v10, v10, v{O3+r}"); E(f"v_add_f32 v11, v11, v{O3+r+1}")
    E("v_cmp_ge_f32 s[66:67], v7, v5"); E("v_cmp_le_f32 s[68:69], v8, v5")
    E("v_add_f32 v6, v10, v11")
    E("v_cmp_gt_f32 s[70:71], v9, |v6|")
    E(f"v_mul_f32 v4, v{VG}, v4")
    E("s_and_b64 s[66:67], s[66:67], s[68:69]"); E("s_and_b64 s[66:67], s[66:67], s[70:71]")
    E("s_cmp_eq_u64 s[66:67], -1"); E("s_cbranch_scc0 L_fb")
    L("L_norm")
    for r in range(8): E(f"v_mul_f32 v{O3+r}, v4, v{O3+r}")
    for r in range(4): E(f"v_cvt_pk_bf16_f32 v{PREG+r}, v{O3+2*r}, v{O3+2*r+1}")
    for r in range(4): E(f"v_min_u32 v{PREG+r}, -2, v{PREG+r}")
    E(f"buffer_store_dwordx4 {v(PREG,4)}, v29, {WS}, s65 offen sc1")
    for r in range(8, 16): E(f"v_mul_f32 v{O3+r}, v4, v{O3+r}")
    for r in range(4, 8): E(f"v_cvt_pk_bf16_f32 v{PREG+r}, v{O3+2*r}, v{O3+2*r+1}")
    E(f"v_cndmask_b32 v{PREG+6}, 0, v{PREG+6}, vcc"); E(f"v_cndmask_b32 v{PREG+7}, 0, v{PREG+7}, vcc")
    for r in range(4, 8): E(f"v_min_u32 v{PREG+r}, -2, v{PREG+r}")
    E(f"buffer_store_dwordx4 {v(PREG+4,4)}, v29, {WS}, s65 offen offset:1024 sc1")
    E("s_mov_b64 exec, 1"); E(f"ds_add_u32 v25, v26 offset:{AD}"); E("s_mov_b64 exec, -1")
    stamp(6)
    stamp_flush("a")
    E("s_endpgm")
    L("L_fb")
    E("v_cmp_eq_u32 vcc, 0, v31"); E("v_mov_b32 v4, 0xff800000"); E("s_mov_b32 s60, 0")
    E(f"v_cndmask_b32 v{Q3+6}, 0, v{Q3+6}, vcc")
    L("L_fb1")
    E(f"buffer_load_dwordx4 {v(KB,4)}, v29, {WS}, s60 offen sc1"); E(f"buffer_load_dwordx4 {v(KB+4,4)}, v29, {WS}, s60 offen offset:1024 sc1")
    E("s_waitcnt vmcnt(0)")
    mfma(S0, KB, Q3); mfma(S0, KB+4, Q3+4, S0); nop(12)
    for r in range(0, 16, 2): E(f"v_max3_f32 v4, v4, v{S0+r}, v{S0+r+1}")
    E("s_add_u32 s60, s60, 4096"); E("s_cmp_lt_u32 s60, 0x40000"); E("s_cbranch_scc1 L_fb1")
    E("v_mov_b32 v5, v4"); nop(2); E("v_permlane32_swap_b32 v4, v5"); nop(1); E("v_max_f32 v4, v4, v5")
    for r in range(16): E(f"v_mov_b32 v{O3+r}, 0")
    E("s_mov_b32 s60, 0")
    L("L_fb2")
    E(f"buffer_load_dwordx4 {v(KB,4)}, v29, {WS}, s60 offen sc1"); E(f"buffer_load_dwordx4 {v(KB+4,4)}, v29, {WS}, s60 offen offset:1024 sc1")
    E(f"buffer_load_dwordx4 {v(VB,4)}, v29, {WS}, s60 offen offset:2048 sc1"); E(f"buffer_load_dwordx4 {v(VB+4,4)}, v29, {WS}, s60 offen offset:3072 sc1")
    E("s_waitcnt vmcnt(0)")
    mfma(S0, KB, Q3); mfma(S0, KB+4, Q3+4, S0); nop(12)
    for r in range(16): E(f"v_sub_f32 v{S0+r}, v{S0+r}, v4")
    for r in range(16): E(f"v_exp_f32 v{S0+r}, v{S0+r}")
    nop(1)
    for r in range(8): E(f"v_cvt_pk_bf16_f32 v{PREG+r}, v{S0+2*r}, v{S0+2*r+1}")
    nop(2)
    mfma(O3, VB, PREG, O3); mfma(O3, VB+4, PREG+4, O3)
    E("s_add_u32 s60, s60, 4096"); E("s_cmp_lt_u32 s60, 0x40000"); E("s_cbranch_scc1 L_fb2")
    nop(12)
    E(f"v_mov_b32 v4, v{O3+12}"); E(f"v_mov_b32 v5, v{O3+12}"); nop(2)
    E("v_permlane32_swap_b32 v4, v5"); nop(1)
    E("v_rcp_f32 v4, v5"); nop(1)
    E(f"v_mul_f32 v4, v{VG}, v4")
    E("s_branch L_norm")

def d_setup():
    E("s_add_u32 s13, s45, s49"); E("s_add_u32 s13, s13, s48"); E("s_and_b32 s13, s13, 3"); E("s_lshl_b32 s13, s13, 1")
    E("s_lshr_b32 s14, s49, 2"); E("s_lshr_b32 s70, s48, 1"); E("s_xor_b32 s14, s14, s70"); E("s_and_b32 s14, s14, 1")
    E("s_add_u32 s13, s13, s14"); E("s_xor_b32 s14, s13, 1")
    E("s_and_b32 s70, s49, 1"); E("s_lshl_b32 s70, s70, 1"); E("s_xor_b32 s8, s45, s70")
    E("s_and_b32 s9, s8, 1"); E("s_lshr_b32 s10, s8, 1"); E("s_lshl_b32 s12, s8, 11")
    E("v_lshrrev_b32 v17, 3, v0"); E("v_mul_u32_u24 v17, 896, v17")
    E("v_bfe_u32 v18, v0, 4, 1"); E("v_lshlrev_b32 v18, 2, v18"); E("v_and_b32 v19, 7, v0"); E("v_xor_b32 v18, v18, v19")
    E("v_lshl_add_u32 v32, v18, 4, v17"); E("v_add_u32 v33, 6144, v32")
    E("v_lshl_add_u32 v17, v31, 2, v28"); E("v_lshl_add_u32 v17, v17, 7, v27")
    E("v_lshrrev_b32 v18, 1, v28"); E("v_xor_b32 v18, s10, v18"); E("v_lshl_add_u32 v17, v18, 6, v17")
    E("v_add_u32 v34, s12, v17"); E("v_xor_b32 v35, 64, v34"); E("v_add_u32 v36, 0x10000, v34"); E("v_add_u32 v37, 0x10000, v35")
    E("s_lshl_b32 s70, s10, 12"); E("v_add_u32 v38, s70, v17"); E("v_xor_b32 v39, 64, v38")
    E("s_lshl_b32 s11, s48, 1"); E("s_add_u32 s11, s11, s9"); E("s_xor_b32 s70, s11, 1")
    E("s_mul_i32 s71, s11, 114688"); E(f"s_add_u32 s71, s71, {WS_H}"); E("v_add_u32 v40, s71, v29")
    E("s_mul_i32 s71, s70, 114688"); E(f"s_add_u32 s71, s71, {WS_H}"); E("v_add_u32 v41, s71, v29")
    E("s_lshl_b32 s15, s49, 7"); E("s_mul_i32 s16, s13, 200704"); E("s_add_u32 s16, s16, s15"); E("s_mov_b32 s17, s12")
    E("v_and_b32 v19, 31, v0"); E("v_lshlrev_b32 v42, 2, v19")
    E("v_min_u32 v43, 15, v0"); E("v_lshlrev_b32 v43, 7, v43")
    E("v_mul_u32_u24 v44, 3584, v0")
    E("s_lshl_b32 s70, s11, 4"); E("s_lshl_b32 s71, s10, 3"); E("s_add_u32 s70, s70, s71"); E("s_lshl_b32 s70, s70, 11"); E(f"s_add_u32 s70, s70, {WS_O}")
    E("v_add_u32 v45, s70, v29"); E("v_add_u32 v46, 1024, v45")
    E("v_add_u32 v47, s12, v29"); E("v_add_u32 v47, 0x10000, v47"); E("v_xor_b32 v48, 2048, v47"); E("v_xor_b32 v49, 4096, v47")
    E("v_mul_u32_u24 v50, 896, v19"); E("v_lshl_add_u32 v50, v31, 4, v50")
    E(f"v_mov_b32 v25, {L_CNT}"); E("v_mov_b32 v26, 1")

def wd_slot():
    return ["s_mov_b32 m0, s17", "s_add_u32 s17, s17, 8192", f"buffer_load_dwordx4 v32, {WD}, s16 offen lds",
            f"buffer_load_dwordx4 v33, {WD}, s16 offen offset:1024 lds", "s_add_u32 s16, s16, 14336"]

def hf_publish(tag):
    E("s_setprio 3")
    lds_spin(f"L_g_go{tag}", QC, 1, 25, 24, 2)
    E("s_waitcnt vmcnt(0)")
    E("s_mov_b64 exec, 1")
    E(f"ds_add_rtn_u32 v24, v25, v26 offset:{GC}"); E("s_waitcnt lgkmcnt(0)")
    E("v_readfirstlane_b32 s63, v24")
    E("s_lshl_b32 s70, s46, 4"); E("s_add_u32 s70, s70, s47"); E("s_lshl_b32 s70, s70, 7"); E(f"s_add_u32 s70, s70, {WS_HF}")
    E("s_cmp_lg_u32 s63, 3"); E(f"s_cbranch_scc1 L_g_nosig{tag}")
    E(f"buffer_store_dword v26, off, {WS}, s70 sc1")
    L(f"L_g_nosig{tag}")
    E("s_mov_b64 exec, -1")

def g_ffn():
    L("L_gf")
    ACC = 128; GX = 64; GW_ = 80
    if opt("pf", 0) >= 2:
        E("s_load_dwordx2 s[40:41], s[0:1], 48"); E("s_load_dwordx2 s[96:97], s[0:1], 56"); srd(40, 1605632); srd(96, 1605632)
    lane_pieces()
    E("s_and_b32 s52, s45, 1"); E("s_lshr_b32 s53, s45, 1")
    E("s_lshl_b32 s70, s52, 13"); E("v_add_u32 v1, s70, v30")
    for s in range(1, 4): E(f"v_xor_b32 v{1+s}, {32*s}, v1")
    E("v_bfe_u32 v17, v0, 4, 1")
    E("v_lshl_add_u32 v18, v17, 2, v28")
    E("s_lshl_b32 s70, s53, 2"); E("v_xor_b32 v18, s70, v18"); E("v_lshlrev_b32 v18, 5, v18")
    E("v_and_b32 v19, 3, v0"); E("v_lshl_add_u32 v18, v19, 3, v18")
    E("v_lshl_add_u32 v19, v31, 3, v28"); E("v_lshl_add_u32 v18, v19, 8, v18")
    E("v_lshl_add_u32 v18, v17, 14, v18"); E(f"v_add_u32 v5, {F_G}, v18")
    for t in range(1, 4): E(f"v_xor_b32 v{5+t}, {32*t}, v5")
    for k in range(8): E(f"v_add_u32 v{9+k}, {F_STAGE}, v{1+k}"); E(f"v_add_u32 v{112+k}, {2*F_STAGE}, v{1+k}")
    d_setup()
    E("s_lshl_b32 s56, s46, 2"); E("s_lshl_b32 s70, s52, 1"); E("s_add_u32 s56, s56, s70"); E("s_mul_i32 s56, s56, 114688")
    E("s_lshl_b32 s70, s47, 13"); E("s_add_u32 s56, s56, s70"); E("s_lshl_b32 s70, s53, 12"); E("s_add_u32 s56, s56, s70"); E(f"s_add_u32 s56, s56, {WS_H}")
    E("s_add_u32 s57, s56, 114688")
    PF = opt("pf", 0)
    if PF:
        E("s_mul_i32 s62, s46, 14"); E("s_add_u32 s62, s62, s47"); E("s_lshl_b32 s62, s62, 2"); E("s_add_u32 s62, s62, s45")
        E("s_mul_i32 s63, s62, 1792"); E("s_lshl_b32 s64, s62, 11"); E("s_lshl_b32 s62, s62, 9"); E("v_lshlrev_b32 v60, 7, v0")
    E("s_waitcnt lgkmcnt(0)")
    E("s_barrier")
    if PF:
        E("s_mov_b32 exec_hi, 0")
        if PF >= 2:
            E("s_mov_b32 exec_lo, 0xffff"); E(f"buffer_load_dword v61, v60, {X}, s64 offen")
            E("s_mov_b32 exec_lo, 0x3fff"); E("buffer_load_dword v61, v60, s[40:43], s63 offen"); E("buffer_load_dword v61, v60, s[96:99], s63 offen")
        E("s_mov_b32 exec_lo, 0x3fff"); E(f"buffer_load_dword v61, v60, {WD}, s63 offen")
        E("s_mov_b32 exec_lo, 0xf"); E(f"buffer_load_dword v61, v60, {WO}, s62 offen")
        E("s_mov_b64 exec, -1")
    prefill()
    E("s_barrier")
    stamp(1)
    def reads(p, s):
        st = s & 1; ab = (1, 9, 112)[(p + 2) % 3]
        R = []
        R.append(f"ds_read_b128 {v(GX+8*st,4)}, v{ab+s}")
        for q in range(2): R.append(f"ds_read_b64_tr_b16 {v(GW_+16*st+2*q,2)}, v{ab+4} offset:{4096*s+1024*q}")
        R.append(f"ds_read_b128 {v(GX+8*st+4,4)}, v{ab+s} offset:4096")
        for t in range(1, 4):
            for q in range(2): R.append(f"ds_read_b64_tr_b16 {v(GW_+16*st+4*t+2*q,2)}, v{ab+4+t} offset:{4096*s+1024*q}")
        return R
    def ep(n):
        t, a = n >> 1, n & 1
        d = ACC + 64*a + 16*t
        for r in range(8): E(f"v_mul_f32 v{d+r}, v{d+r}, v{d+8+r}")
        for r in range(4): E(f"v_cvt_pk_bf16_f32 v{d+8+r}, v{d+2*r}, v{d+2*r+1}")
        E(f"buffer_store_dwordx4 {v(d+8,4)}, v29, {WS}, s{56+a} offen offset:{1024*t} sc1")
    for l in reads(0, 0): E(l)
    for p in range(7):
        for s in range(4):
            st = s & 1
            last = (p == 6 and s == 3)
            E("s_waitcnt lgkmcnt(0)")
            R = [] if (last or XP & 128) else (reads(p, s+1) if s < 3 else reads(p+1, 0))
            if p == 6 and s == opt("gps", 3): E("s_setprio 3")
            n = 0
            for t in range(4):
                for a in range(2):
                    d = ACC + 64*a + 16*t
                    if not (XP & 2) or p == 0: mfma(d, GW_+16*st+4*t, GX+8*st+4*a, None if (p == 0 and s == 0) else d)
                    if n == 0 and ((s == 3 and p < 6) or (s == 1 and p < HALF)): E("s_barrier")
                    for l in R[:2]: E(l)
                    R = R[2:]
                    if p == 6 and s in EWS and n == 4:
                        for l in wd_slot() + wd_slot(): E(l)
                    if last and n == 1: nop(11)
                    if last and n >= 1: ep(n-1)
                    n += 1
    stamp(2)
    ep(7)
    E(f"s_mov_b32 s19, {12-2*len(EWS)}")
    hf_publish("f")

def g_kv():
    L("L_gk")
    D1, D2, D3 = 128, 128, 160
    GX = 64; GWf = 80; GG = 96
    x_dma_addrs()
    E("s_mov_b32 s53, s55")
    E("s_waitcnt lgkmcnt(0)")
    def xblk():
        E("s_mov_b32 m0, s53"); E("s_add_u32 s53, s53, 16384")
        for n in range(4): E(f"buffer_load_dwordx4 v{1+n}, {X}, s52 offen offset:{1024*n} lds")
        E("s_add_u32 s52, s52, 128")
    for kb in range(4): xblk()
    lane_pieces()
    E("v_add_u32 v9, s55, v30")
    for s in range(1, 4): E(f"v_xor_b32 v{9+s}, {32*s}, v9")
    for s in range(4): E(f"v_add_u32 v{14+s}, 0x10000, v{9+s}")
    E("v_lshl_add_u32 v18, v31, 3, v28"); E("v_mul_u32_u24 v18, 56, v18"); E("v_add_u32 v13, v18, v27"); E(f"v_add_u32 v13, {K_W}, v13")
    E("v_lshlrev_b32 v6, 4, v31"); E(f"v_add_u32 v6, {K_GW}, v6")
    E("s_barrier")
    stamp(1)
    E("s_setprio 1")
    for kb in range(4, 7): xblk()
    E("s_cmp_eq_u32 s47, 15"); E("s_cbranch_scc1 L_gk_lv")
    for kind in "KV":
        if kind == "V": L("L_gk_lv")
        nr = 4 if kind == "K" else 3
        def rd(n):
            kb, s = n >> 2, n & 3; k = n & 3
            if s == 0: E(f"s_waitcnt vmcnt({24-4*kb})")
            o = 16384*kb
            E(f"ds_read_b128 {v(GX+4*k,4)}, v{(9 if o < 65536 else 14)+s} offset:{o & 0xffff}")
            for q in range(2): E(f"ds_read_b64_tr_b16 {v(GWf+4*k+2*q,2)}, v13 offset:{3584*kb+896*s+224*q}")
            if kind == "K": E(f"ds_read_b128 {v(GG+4*k,4)}, v6 offset:{128*kb+32*s}")
        for n in range(3): rd(n)
        for n in range(28):
            k = n & 3
            E(f"s_waitcnt lgkmcnt({nr*min(2, 27-n)})")
            if kind == "K":
                mfma(D1, GWf+4*k, GX+4*k, D1 if n else None); mfma(D3, GG+4*k, GX+4*k, D3 if n else None)
            else:
                mfma(D2, GX+4*k, GWf+4*k, D2 if n else None)
            if n + 3 < 28: rd(n + 3)
        if kind == "K": E("s_branch L_gk_le")
    L("L_gk_le")
    stamp(2)
    E("s_lshl_b32 s56, s46, 2"); E("s_add_u32 s56, s56, s45"); E("s_lshl_b32 s57, s56, 7"); E("s_lshl_b32 s56, s56, 12"); E(f"s_add_u32 s57, s57, {WS_G}")
    E("v_and_b32 v17, 31, v0")
    nop(4)
    E("s_cmp_eq_u32 s47, 15"); E("s_cbranch_scc1 L_gk_v")
    E("v_cmp_eq_u32 vcc, 0, v31")
    for r in range(8): E(f"v_cvt_pk_bf16_f32 v{32+r}, v{D1+2*r}, v{D1+2*r+1}")
    E("v_mov_b32 v18, 0x3f80")
    E("v_cndmask_b32 v38, v18, v38, vcc"); E("v_cndmask_b32 v39, 0, v39, vcc")
    E(f"buffer_store_dwordx4 v[32:35], v29, {WS}, s56 offen sc1")
    E(f"buffer_store_dwordx4 v[36:39], v29, {WS}, s56 offen offset:1024 sc1")
    E(f"v_mul_f32 v18, {f32bits(-math.log2(math.e)):#x}, v{D3}")
    E("v_exp_f32 v18, v18"); E("v_lshlrev_b32 v17, 2, v17")
    E("v_add_f32 v18, 1.0, v18"); E("v_rcp_f32 v18, v18")
    E("s_mov_b32 exec_hi, 0")
    E(f"buffer_store_dword v18, v17, {WS}, s57 offen sc1")
    E("s_mov_b64 exec, -1")
    E("s_branch L_gk_pub")
    L("L_gk_v")
    E("v_cmp_gt_u32 vcc, 28, v17"); E("v_cmp_eq_u32 s[66:67], 28, v17")
    E("v_mov_b32 v18, 0x3f803f80"); E("v_mov_b32 v19, 0")
    E("v_cndmask_b32 v18, v19, v18, s[66:67]")
    for r in range(8): E(f"v_cvt_pk_bf16_f32 v{32+r}, v{D2+2*r}, v{D2+2*r+1}")
    for r in range(8): E(f"v_cndmask_b32 v{32+r}, v18, v{32+r}, vcc")
    E(f"buffer_store_dwordx4 v[32:35], v29, {WS}, s56 offen offset:2048 sc1")
    E(f"buffer_store_dwordx4 v[36:39], v29, {WS}, s56 offen offset:3072 sc1")
    L("L_gk_pub")
    E(f"v_mov_b32 v25, {L_CNT}"); E("v_mov_b32 v26, 1")
    E("s_waitcnt vmcnt(0)")
    E("s_mov_b64 exec, 1")
    E(f"ds_add_rtn_u32 v24, v25, v26 offset:{KC}"); E("s_waitcnt lgkmcnt(0)")
    E("v_readfirstlane_b32 s63, v24"); nop(1)
    E("s_cmp_lg_u32 s63, 3"); E("s_cbranch_scc1 L_gk_nosig")
    E("v_mov_b32 v24, 1")
    E(f"buffer_atomic_add v24, off, {DBG}, 0 sc0 sc1"); E("s_waitcnt vmcnt(0)")
    E("v_readfirstlane_b32 s63, v24"); nop(1)
    E("s_cmp_lg_u32 s63, 31"); E("s_cbranch_scc1 L_gk_nosig")
    E(f"buffer_store_dword v26, off, {DBG}, 0 offset:128 sc1")
    L("L_gk_nosig")
    E("s_mov_b64 exec, -1")
    stamp(5)
    E("s_barrier")
    E("s_setprio 0")
    prefill()
    assert MAP in (3, 4)
    KPF = opt("kpf", 2)
    def kpf():
        E("s_lshl_b32 s62, s46, 1"); E("s_add_u32 s62, s62, s47"); E("s_sub_u32 s62, s62, 14"); E("s_lshl_b32 s62, s62, 2"); E("s_add_u32 s62, s62, s45")
        E("s_mul_i32 s63, s62, 12544"); E("s_mul_i32 s62, s62, 3200"); E("v_lshlrev_b32 v60, 7, v0"); E("s_add_u32 s64, s63, 6272")
        E("s_mov_b32 exec_hi, 0x1ffff")
        E(f"buffer_load_dword v61, v60, {WD}, s63 offen"); E(f"buffer_load_dword v61, v60, {WD}, s64 offen")
        E("s_mov_b32 exec_hi, 0"); E("s_mov_b32 exec_lo, 0x1ffffff")
        E(f"buffer_load_dword v61, v60, {WO}, s62 offen")
        E("s_mov_b64 exec, -1")
    E("s_barrier")
    if KPF == 2: kpf()
    hf_publish("k")
    E("s_setprio 0")
    if KPF == 3: kpf()
    stamp(3)

def g_down():
    L("L_gd")
    stamp(3)
    if XP & 256: E("s_branch L_gend")
    HB = 64; WFR = 176; ACC = 192
    if XP & 8:
        lds_post(WL); E(f"ds_read_b64 v[22:23], v25 offset:{AD-4}"); E(f"ds_read_b32 v24, v25 offset:{WL}"); E("s_branch L_xp8")
    E("s_setprio 0")
    NB = opt("nb", 8)
    rem = 14 - 2*len(EWS)
    for k in range(min(NB, rem - 2)):
        E("s_waitcnt vmcnt(6)")
        for l in wd_slot(): E(l)
    late_slots = rem - min(NB, rem - 2)
    if NB >= rem - 2:
        E("s_setprio 3")
        lds_spin("L_gd_s1", QD, 4, 25, 24, 2)
        lds_spin("L_gd_s2", GC, 4, 25, 24, 2)
        for k in range(2):
            for l in wd_slot(): E(l)
        late_slots = 0
    E("s_lshl_b32 s70, s11, 7"); E(f"s_add_u32 s70, s70, {WS_G}")
    E(f"buffer_load_dword v9, v42, {WS}, s70 offen sc1")
    E("s_lshr_b32 s70, s48, 1"); E("s_lshl_b32 s70, s70, 11"); E(f"s_add_u32 s70, s70, {WS_HF}")
    E("s_setprio 3")
    if late_slots:
        lds_spin("L_gd_s1", QD, 4, 25, 24, 2)
        lds_spin("L_gd_s2", GC, 4, 25, 24, 2)
    E(f"s_mov_b32 s62, {SPIN}"); E(f"s_mov_b32 s19, {late_slots}")
    L("L_gd_poll")
    E(f"buffer_load_dword v18, v43, {WS}, s70 offen sc1")
    if late_slots:
        E("s_cmp_eq_u32 s19, 0"); E("s_cbranch_scc1 L_gd_p0")
        for l in wd_slot() + wd_slot(): E(l)
        E("s_sub_u32 s19, s19, 2"); E("s_waitcnt vmcnt(4)"); E("s_branch L_gd_p1")
        L("L_gd_p0")
    E("s_waitcnt vmcnt(0)")
    L("L_gd_p1")
    E("v_cmp_ne_u32 vcc, 1, v18"); E("s_sub_u32 s62, s62, 1"); E("s_cmp_eq_u32 s62, 0"); E("s_cbranch_scc1 L_gd_go")
    E("s_cbranch_vccz L_gd_go"); E(f"s_sleep {opt('hsl', 2)}"); E("s_branch L_gd_poll")
    L("L_gd_go")
    stamp(4)
    E("s_setprio 0")
    GS = opt("gs", 99)
    NH = DD + 1 if GS > 27 else 14
    hnext = [0]
    ops = []
    E("s_mul_i32 s59, s13, 14336")
    def hload(s):
        if s == 14: E("s_mul_i32 s59, s14, 14336")
        o = (s % 14) % 4
        r = HB + 8*(s % NH)
        E(f"buffer_load_dwordx4 {v(r,4)}, v40, {WS}, s59 offen offset:{1024*o} sc1"); E(f"buffer_load_dwordx4 {v(r+4,4)}, v41, {WS}, s59 offen offset:{1024*o} sc1")
        if o == 3: E("s_add_u32 s59, s59, 4096")
        ops.extend([("h", s)]*2)
        hnext[0] = s + 1
    def younger(tags):
        idx = [k for k, t in enumerate(ops) if t in tags]
        return len(ops) - 1 - max(idx) if idx else None
    def wreads(s):
        st = s & 1; sl = s % 14
        return [f"ds_read_b64_tr_b16 {v(WFR+8*st+4*ct+2*q,2)}, v{34+ct+2*(sl>>3)} offset:{8192*(sl&7)+1024*q}" for ct in range(2) for q in range(2)]
    for s in range(DD): hload(s)
    if late_slots:
        L("L_gd_rs")
        E("s_cmp_eq_u32 s19, 0"); E("s_cbranch_scc1 L_gd_rx")
        for l in wd_slot(): E(l)
        E("s_sub_u32 s19, s19, 1"); E("s_branch L_gd_rs")
        L("L_gd_rx")
    E("s_mul_i32 s16, s14, 200704"); E("s_add_u32 s16, s16, s15")
    for l in wreads(0): E(l)
    for s in range(28):
        st = s & 1
        if s == GS:
            while hnext[0] < 28:
                E("s_waitcnt vmcnt(6)"); hload(hnext[0])
            lds_spin("L_gd_gate", RC, opt("gv", 256), 25, 24, 2)
        n = younger({("h", s), ("w", s+1)})
        if s == 27 or (GS > 27 and s == 22 + DD): n = min(n, younger({("w", 35)}))
        E(f"s_waitcnt vmcnt({n}) lgkmcnt(0)")
        if s == (22 + DD if GS > 27 else 27):
            lds_post(WL)
        R = wreads(s+1) if s < 27 else [f"ds_read_b64 v[22:23], v25 offset:{AD-4}", f"ds_read_b32 v24, v25 offset:{WL}"]
        for a in range(2):
            for ct in range(2):
                d = ACC + 32*a + 16*ct
                if not (XP & 64): mfma(d, WFR+8*st+4*ct, HB+8*(s % NH)+4*a, None if s == 0 else d)
                if R: E(R.pop(0))
                if a == 0 and ct == 1 and hnext[0] < 28: hload(hnext[0])
        if s == 14:
            E("s_mul_i32 s16, s8, 100352"); E("s_add_u32 s16, s16, s15")
        if s < 22:
            srd_ = WD if s < 14 else WO
            E(f"s_add_u32 m0, s12, {8192*(s % 14)}"); E("s_nop 0")
            E(f"buffer_load_dwordx4 v32, {srd_}, s16 offen lds"); E(f"buffer_load_dwordx4 v33, {srd_}, s16 offen offset:1024 lds")
            E(f"s_add_u32 s16, s16, {14336 if (s < 14 or s % 2 == 0) else 10752}")
            ops.extend([("w", s+14)]*2)
    if XP & 8: L("L_xp8")
    stamp(5)
    OF = 96
    def wo_reg(e): return (64 if (e >> 2) & 1 == 0 else 160) + 8*(e & 3)
    def oloads(g0):
        for g in range(g0, 4):
            for n in range(4): E(f"buffer_load_dwordx4 {v(OF+16*g+4*n,4)}, v45, {WS}, s{52+g} offen offset:{1024*n} sc1")
    def woread(e):
        hh, a = e >> 1, e & 1
        off = (hh >> 2)*2048 + (2*(hh & 3) + a)*8192
        return [f"ds_read_b64_tr_b16 {v(wo_reg(e)+4*ct+2*q,2)}, v{38+ct} offset:{off+1024*q}" for ct in (1, 0) for q in range(2)]
    E("s_setprio 2")
    for g in range(4): E(f"s_mov_b32 s{52+g}, {4096*g}")
    E("s_waitcnt lgkmcnt(0)")
    E("v_readfirstlane_b32 s67, v23"); E("v_readfirstlane_b32 s63, v24"); E("v_sub_f32 v9, 1.0, v9")
    E("s_cmp_lt_u32 s67, 4"); E("s_cbranch_scc1 L_ge_ne")
    oloads(0)
    L("L_ge_ne")
    E("s_cmp_ge_u32 s63, 4"); E("s_cbranch_scc1 L_ge_wl_x")
    lds_spin("L_ge_wl", WL, 4, 25, 24)
    for q in range(8): E(f"ds_write_b128 v47, {v(ACC+32+4*q,4)} offset:{8192*(q>>1)+1024*(q&1)}")
    lds_post(XC)
    for e in range(8):
        for l in woread(e): E(l)
    for r in range(32): E(f"v_mul_f32 v{ACC+r}, v9, v{ACC+r}")
    E("v_xor_b32 v46, 4096, v48")
    E("s_mul_i32 s66, s11, 28672"); E("s_add_u32 s66, s66, s15"); E("s_lshl_b32 s71, s10, 6"); E("s_add_u32 s66, s66, s71")
    E("s_cmp_ge_u32 s67, 4"); E("s_cbranch_scc1 L_ge_ld")
    if not (XP & 16): lds_spin("L_ge_ad", AD, 4, 25, 24, 1)
    if opt("osleep", 0): E(f"s_sleep {opt('osleep', 0)}")
    oloads(0)
    L("L_ge_ld")
    lds_spin("L_gx", XC, 4, 25, 24)
    for q in range(4): E(f"ds_read_b128 {v(ACC+32+4*q,4)}, v48 offset:{8192*(q>>1)+1024*(q&1)}")
    for q in range(4, 8): E(f"ds_read_b128 {v(ACC+32+4*q,4)}, v46 offset:{8192*(q>>1)+1024*(q&1)}")
    E("s_waitcnt lgkmcnt(0)")
    for r in range(16): E(f"v_add_f32 v{ACC+32+r}, v{ACC+32+r}, v{ACC+48+r}")
    for r in range(16): E(f"v_fmac_f32 v{ACC+r}, v9, v{ACC+32+r}")
    E(f"s_mov_b32 s62, {0 if XP & 16 else SPIN}")
    def ocheck(g):
        E(f"v_max3_u32 v17, v{OF+16*g}, v{OF+16*g+1}, v{OF+16*g+2}"); E(f"v_max3_u32 v18, v{OF+16*g+3}, v{OF+16*g+4}, v{OF+16*g+5}")
        E(f"v_max3_u32 v17, v17, v{OF+16*g+6}, v{OF+16*g+7}"); E(f"v_max3_u32 v18, v18, v{OF+16*g+8}, v{OF+16*g+9}")
        E(f"v_max3_u32 v17, v17, v{OF+16*g+10}, v{OF+16*g+11}"); E(f"v_max3_u32 v18, v18, v{OF+16*g+12}, v{OF+16*g+13}")
        E(f"v_max3_u32 v17, v17, v{OF+16*g+14}, v{OF+16*g+15}")
        E("v_max_u32 v17, v17, v18")
        E("v_cmp_eq_u32 vcc, -1, v17")
    def oload1(g):
        for n in range(4): E(f"buffer_load_dwordx4 {v(OF+16*g+4*n,4)}, v45, {WS}, s{52+g} offen offset:{1024*n} sc1")
    def retry_code():
        for g in range(4):
            L(f"L_ge_r{g}")
            E("s_cmp_eq_u32 s62, 0"); E(f"s_cbranch_scc1 L_ge_k{g}")
            E("s_sub_u32 s62, s62, 1"); E(f"s_mov_b32 s67, {g}")
            E("s_waitcnt vmcnt(0)")
            oload1(g)
            E(f"s_branch L_ge_l{g+1}")
        for g in range(1, 4):
            L(f"L_ge_l{g}")
            ocheck(g); E(f"s_cbranch_vccz L_ge_l{g+1}")
            oload1(g)
        L("L_ge_l4")
        E("s_waitcnt vmcnt(0)")
        for g in range(3):
            E(f"s_cmp_eq_u32 s67, {g}"); E(f"s_cbranch_scc1 L_ge_c{g}")
        E("s_branch L_ge_c3")
    tails.append(retry_code)
    for g in range(4):
        L(f"L_ge_c{g}")
        E(f"s_waitcnt vmcnt({12-4*g})")
        ocheck(g)
        E(f"s_cbranch_vccnz L_ge_r{g}")
        L(f"L_ge_k{g}")
        if g >= 2: E(f"s_waitcnt lgkmcnt({0 if g == 3 else 15})")
        for e in range(4*g, 4*g+4):
            mfma(ACC+16, wo_reg(e)+4, OF+4*e, ACC+16)
            if g < 2:
                for l in woread(e+8)[0:2]: E(l)
        if g < 2:
            for e in range(4*g, 4*g+4):
                mfma(ACC, wo_reg(e), OF+4*e, ACC)
                for l in woread(e+8)[2:4]: E(l)
    stamp(6)
    for e in range(8, 16):
        mfma(ACC, wo_reg(e), OF+4*e, ACC)
        if e == 8: nop(6)
        if e == 9:
            nop(4)
            for q in range(4): E(f"ds_write_b128 v47, {v(ACC+16+4*q,4)} offset:{8192*(4+(q>>1))+1024*(q&1)}")
        if e == 12:
            E("s_waitcnt lgkmcnt(0)"); E("s_barrier")
            for q in range(4): E(f"ds_read_b128 {v(ACC+16+4*q,4)}, v49 offset:{8192*(4+(q>>1))+1024*(q&1)}")
    nop(11)
    for p in range(2):
        E(f"s_waitcnt lgkmcnt({2-2*p})")
        for r in range(8*p, 8*p+8): E(f"v_add_f32 v{ACC+r}, v{ACC+r}, v{ACC+16+r}")
        for r in range(4*p, 4*p+4): E(f"v_cvt_pk_bf16_f32 v{56+r}, v{ACC+2*r}, v{ACC+2*r+1}")
        nop(1)
        E(f"v_permlane32_swap_b32 v{56+4*p}, v{58+4*p}"); E(f"v_permlane32_swap_b32 v{57+4*p}, v{59+4*p}")
        E(f"buffer_store_dwordx4 {v(56+4*p,4)}, v50, {OUT}, s66 offen offset:{32*p}" + ["", " sc1", " nt", " sc0 sc1"][opt("ost", 0)])
    stamp(7)
    stamp_flush("g")
    E("s_endpgm")
    for f in tails: f()

loops = []
tails = []
entry()
a_ffn()
a_kv()
attention()
g_entry()
g_ffn()
g_down()
g_kv()
L("L_gend"); stamp_flush("g"); L("L_end"); E("s_endpgm")

errs = hazard.check(out, "main")
for k, b in enumerate(loops): errs += hazard.check(b + b, f"loop{k}")
for e in sorted(set(errs)): print("HAZARD", e, file=sys.stderr)

hdr = open("gated_mix__grouped_kv_mqa__glu_gated_bilinear__prompt.s.ref").read().split("; Override")[0]
print(hdr, end="")
print(f"; @launch grid=(256,1,1) block=(512,1,1) lds={LDS_SIZE}")
print('.amdgcn_target "amdgcn-amd-amdhsa--gfx950"')
print(".text"); print(f".globl {NAME}"); print(".p2align 8"); print(f".type {NAME},@function"); print(f"{NAME}:")
print("\n".join(l for l in out if l is not None))
print('.section .rodata,"a"'); print(".p2align 6"); print(f".amdhsa_kernel {NAME}")
print("  .amdhsa_next_free_vgpr 256\n  .amdhsa_next_free_sgpr 102\n  .amdhsa_accum_offset 256\n  .amdhsa_group_segment_fixed_size 0\n  .amdhsa_kernarg_size 104")
print("  .amdhsa_user_sgpr_count 2\n  .amdhsa_user_sgpr_kernarg_segment_ptr 1\n  .amdhsa_system_sgpr_workgroup_id_x 1\n.end_amdhsa_kernel")
```

```python
import sys
N = "gated_mix__grouped_kv_mqa__glu_gated_bilinear__prompt_kernel"
s = open(sys.argv[1]).read()
mode = sys.argv[3] if len(sys.argv) > 3 else "end"
old = "; @launch grid=(256,1,1) block=(512,1,1) lds=163840"
main = f"; @launch kernel={N} grid=(256,1,1) block=(512,1,1) lds=163840"
KD = open("mk_probe.py").read().split('KD = """')[1].split('"""')[0]
amp = ["s_memrealtime s[10:11]", "s_load_dwordx2 s[4:5], s[0:1], 96", "s_mov_b32 s6, 0x2000000", "s_mov_b32 s7, 0x20000",
       "s_cmp_lg_u32 s2, 0", "s_cbranch_scc1 L_am_end", "s_waitcnt lgkmcnt(0)", "v_lshlrev_b32 v1, 6, v0", "v_mov_b32 v3, 0x7fffffff", "v_mov_b32 v5, 0", "v_mov_b32 v4, s10",
       f"s_mov_b32 s8, {0xA00000 + 32}", "s_mov_b32 s9, 32", "L_am_l:",
       "buffer_load_dwordx2 v[6:7], v1, s[4:7], s8 offen", "s_waitcnt vmcnt(0)", "v_sub_u32 v6, v4, v6", "v_min_u32 v3, v3, v6", "v_sub_u32 v7, v4, v7", "v_max_u32 v5, v5, v7",
       "s_add_u32 s8, s8, 4096", "s_sub_u32 s9, s9, 1", "s_cmp_lg_u32 s9, 0", "s_cbranch_scc1 L_am_l",
       "s_mov_b32 s13, 0x7fffffff", "s_mov_b32 s17, 0", "s_mov_b32 s9, 0", "L_am_r:", "s_nop 4", "v_readlane_b32 s12, v3, s9", "v_readlane_b32 s18, v5, s9", "s_nop 1", "s_min_u32 s13, s13, s12", "s_max_u32 s17, s17, s18",
       "s_add_u32 s9, s9, 1", "s_cmp_lt_u32 s9, 64", "s_cbranch_scc1 L_am_r"]
if mode == "dur": amp += ["s_sub_u32 s13, s17, s13"]
amp += ["s_add_u32 s13, s13, 500", "s_min_u32 s13, s13, 20000", "s_mul_i32 s13, s13, 10", "s_add_u32 s13, s13, s10",
       "L_am_spin:", "s_memrealtime s[14:15]", "s_waitcnt lgkmcnt(0)", "s_sub_u32 s16, s14, s13", "s_cmp_lt_i32 s16, 0", "s_cbranch_scc1 L_am_spin", "L_am_end:"]
code = "\n.text\n.globl amp_kernel\n.p2align 8\n.type amp_kernel,@function\namp_kernel:\n" + "\n".join("    "+l for l in amp) + "\n    s_endpgm\n" + KD
la = "; @launch kernel=amp_kernel grid=(1,1,1) block=(64,1,1) lds=0"
open(sys.argv[2], "w").write(s.replace(old, main + "\n" + la) + code)
```
